```python
import torch

def _softmax(x, axis=-1):
    return torch.softmax(x, dim=axis)
def _gelu(x):
    return torch.nn.functional.gelu(x, approximate="tanh")
def _silu(x):
    return torch.nn.functional.silu(x)
def _sigmoid(x):
    return torch.sigmoid(x)
def _layernorm(x, axis=-1, eps=1e-5):
    m = x.mean(dim=axis, keepdim=True)
    v = x.var(dim=axis, keepdim=True, unbiased=False)
    return (x - m) / torch.sqrt(v + eps)
def _scatter_add(tgt, idx, src, axis=0):
    return tgt.clone().index_add_(axis, idx, src)
def _segment_sum(src, seg, n):
    out = torch.zeros((n,) + src.shape[1:], dtype=src.dtype)
    return out.index_add_(0, seg, src)
def _pad(x, pw):
    flat = tuple(v for pair in reversed(pw) for v in pair)
    return torch.nn.functional.pad(x, flat)

kernel_name = 'standalone__low_rank_proj_linformer__sampling'

def setup_inputs():

    _w = (lambda a: (lambda t: t.to(torch.bfloat16) if t.is_floating_point() else t)(torch.as_tensor(a)))
    B, H, Sq, Skv, Dh, R = 16, 32, 4, 4096, 128, 16
    return {
        "q": _w((lambda *s: torch.randn(*s, dtype=torch.bfloat16) * 0.8)(B, H, Sq, Dh)),
        "k": _w((lambda *s: torch.randn(*s, dtype=torch.bfloat16) * 0.8)(B, H, Skv, Dh)),
        "v": _w((lambda *s: torch.randn(*s, dtype=torch.bfloat16) * 0.05)(B, H, Skv, Dh)),
        "e_proj": _w((lambda *s: torch.randn(*s, dtype=torch.bfloat16) * 0.8)(R, Skv) * (Skv ** -0.5)),
        "f_proj": _w((lambda *s: torch.randn(*s, dtype=torch.bfloat16) * 0.05)(R, Skv) * (Skv ** -0.5)),
    }

def reference(q, k, v, e_proj, f_proj):
    B, H, Sq, Dh = q.shape
    kp = torch.einsum("rn,bhnd->bhrd", e_proj, k)
    vp = torch.einsum("rn,bhnd->bhrd", f_proj, v)
    scores = torch.einsum("bhqd,bhrd->bhqr", q, kp) * (Dh ** -0.5)
    p = _softmax(scores, axis=-1)
    o = torch.einsum("bhqr,bhrd->bhqd", p, vp)
    return o
```

```python
import argparse

NAME = "standalone__low_rank_proj_linformer__sampling"

HEADER = """; Kernarg layout for this problem (64 bytes, ptrs only, base s[0:1]):
"""

S_Q, S_K, S_V, S_E, S_F, S_O = 4, 6, 8, 10, 12, 14
SRD_K, SRD_V, SRD_E, SRD_F, SRD_Q, SRD_O = 16, 20, 24, 28, 32, 36
S_WAVE = 3
S_P = 40
S_PE = 41
S_CNT = 42
S_SEL_LO = 43
S_SEL_HI = 44
S_TMP = 45
S_TMP2 = 46
S_J = 47
S_START = 48
S_T0 = 50
S_T1 = 52
SRD_W = 56
S_WS = 60


class Gen:
    def __init__(self, mode="split", nws=1, D=6, kpol="nt", epol="", rot=0, lds=0,
                 qmode="early", eagpr=False, diag=False, vgpr_min=0, nocompute=False, noe=False):
        self.mode, self.nws, self.D = mode, nws, D
        self.kpol, self.epol, self.rot = kpol, epol, rot
        self.qmode, self.eagpr, self.diag = qmode, eagpr, diag
        self.nocompute, self.noe = nocompute, noe
        self.lines = []
        self.T = 128 // nws
        self.nw = nws * (2 if mode == "split" else 1)
        self.LPT = 8 if noe else 9
        self.vK, self.vE, self.vM = 1, 2, 3
        self.tmp = [4, 8]
        r = 12
        self.accA = r; r += 32
        if mode == "seq":
            self.accB = r; r += 32
        else:
            self.accB = self.accA
        if qmode == "early":
            self.q = r; r += 16
        self.tb = []
        for b in range(D):
            self.tb.append(r); r += 32
        self.eb = []
        self.nagpr = 0
        for b in range(D):
            if eagpr:
                self.eb.append(("a", 4 * b)); self.nagpr += 4
            else:
                self.eb.append(("v", r)); r += 4
        assert r <= 256, r
        self.nv = r
        self.accum_offset = (r + 3) // 4 * 4
        self.nfv = max(self.accum_offset + self.nagpr if eagpr else r, vgpr_min)
        npart = (nws - 1)
        need = 2 * npart * 8192 + 512
        if mode == "seq" and nws == 1:
            need = 0
        self.lds_p = 2 * npart * 8192
        self.lds = max(lds, need)
        self.lab = 0

    def e(self, s):
        self.lines.append("    " + s)

    def label(self, s):
        self.lines.append(s + ":")

    def er(self, b):
        k, r = self.eb[b]
        return f"{k}[{r}:{r+3}]"

    def prefetch(self, b, srd, esrd):
        t = self.tb[b]
        pol = (" " + self.kpol) if self.kpol else ""
        epol = (" " + self.epol) if self.epol else ""
        for i in range(8):
            off = f" offset:{i*256}" if i else ""
            self.e(f"buffer_load_dwordx4 v[{t+4*i}:{t+4*i+3}], v{self.vK}, s[{srd}:{srd+3}], s{S_P} offen{off}{pol}")
        if not self.noe:
            self.e(f"buffer_load_dwordx4 {self.er(b)}, v{self.vE}, s[{esrd}:{esrd+3}], s{S_PE} offen{epol}")
        self.e(f"s_add_u32 s{S_P}, s{S_P}, {self.nws*8192}")
        self.e(f"s_and_b32 s{S_P}, s{S_P}, 0xfffff")
        self.e(f"s_lshr_b32 s{S_PE}, s{S_P}, 7")

    def perms(self, b, ecol):
        t = self.tb[b]
        tm = self.tmp[ecol & 1]
        sel = S_SEL_HI if (ecol & 1) else S_SEL_LO
        c = ecol >> 1
        for m in range(4):
            lo = t + 4 * (2 * m) + c
            hi = t + 4 * (2 * m + 1) + c
            self.e(f"v_perm_b32 v{tm+m}, v{hi}, v{lo}, s{sel}")

    def mfma(self, b, ecol, isK, acc):
        tm = self.tmp[ecol & 1]
        a = acc + 4 * ecol
        x = f"v[{tm}:{tm+3}]"
        if isK:
            self.e(f"v_mfma_f32_16x16x32_bf16 v[{a}:{a+3}], {x}, {self.er(b)}, v[{a}:{a+3}]")
        else:
            self.e(f"v_mfma_f32_16x16x32_bf16 v[{a}:{a+3}], {self.er(b)}, {x}, v[{a}:{a+3}]")

    def consume(self, b, isK, acc, vm):
        self.e(f"s_waitcnt vmcnt({vm})")
        if self.nocompute:
            return
        self.perms(b, 0)
        for ecol in range(1, 8):
            self.perms(b, ecol)
            self.mfma(b, ecol - 1, isK, acc)
        self.e("s_nop 0")
        self.mfma(b, 7, isK, acc)

    def steps(self, s0, n, isK, acc, srd, esrd):
        D = self.D
        vm = self.LPT * (D - 1)
        nl, rem = divmod(n, D)
        if nl >= 2:
            self.lab += 1
            L = f"L_loop{self.lab}"
            self.e(f"s_mov_b32 s{S_CNT}, {nl}")
            self.label(L)
            for i in range(D):
                b = (s0 + i) % D
                self.consume(b, isK, acc, vm)
                self.prefetch(b, srd, esrd)
            self.e(f"s_sub_u32 s{S_CNT}, s{S_CNT}, 1")
            self.e(f"s_cmp_lg_u32 s{S_CNT}, 0")
            self.e(f"s_cbranch_scc1 {L}")
        else:
            rem += nl * D
        for i in range(rem):
            b = (s0 + i) % D
            self.consume(b, isK, acc, vm)
            self.prefetch(b, srd, esrd)

    def qloads(self, q):
        for g in range(4):
            off = f" offset:{g*16}" if g else ""
            self.e(f"buffer_load_dwordx4 v[{q+4*g}:{q+4*g+3}], v{self.vM}, s[{SRD_Q}:{SRD_Q+3}], 0 offen{off}")

    def tail(self, s0, isK, acc, want_q):
        D = self.D
        qb = None
        extra = 0
        for i in range(D):
            b = (s0 + i) % D
            self.consume(b, isK, acc, self.LPT * (D - 1 - i) + extra)
            if i == 0 and want_q:
                qb = b
                self.qloads(self.tb[b])
                extra = 4
        return qb

    def zero(self, acc):
        for i in range(32):
            self.e(f"v_mov_b32 v{acc+i}, 0")

    def write_partial(self, acc, base):
        self.e(f"v_and_b32 v{self.vM}, 63, v0")
        self.e(f"v_lshlrev_b32 v{self.vM}, 4, v{self.vM}")
        self.e(f"s_lshl_b32 s{S_TMP}, s{S_J}, 13")
        self.e(f"s_add_u32 s{S_TMP}, s{S_TMP}, {base - 8192}")
        self.e(f"v_add_u32 v{self.vM}, s{S_TMP}, v{self.vM}")
        self.e("s_nop 7")
        for i in range(8):
            self.e(f"ds_write_b128 v{self.vM}, v[{acc+4*i}:{acc+4*i+3}] offset:{i*1024}")
        self.e("s_waitcnt lgkmcnt(0)")

    def read_partials(self, acc, base, scratch):
        tm = self.tmp[0]
        self.e(f"v_and_b32 v{tm}, 63, v0")
        self.e(f"v_lshlrev_b32 v{tm}, 4, v{tm}")
        n = self.nws - 1
        ns = len(scratch)
        def rd(s):
            sc = scratch[s % ns]
            off0 = base + s * 8192
            for i in range(8):
                off = off0 + i * 1024
                if off < 65536:
                    self.e(f"ds_read_b128 v[{sc+4*i}:{sc+4*i+3}], v{tm} offset:{off}")
                else:
                    self.e(f"ds_read_b128 v[{sc+4*i}:{sc+4*i+3}], v{tm+1} offset:{off-65536}")
        self.e(f"v_add_u32 v{tm+1}, 0x10000, v{tm}")
        pre = min(ns, n, 2)
        for s in range(pre):
            rd(s)
        for s in range(n):
            more = min(n - 1 - s, pre - 1)
            self.e(f"s_waitcnt lgkmcnt({8*more})")
            sc = scratch[s % ns]
            for i in range(32):
                self.e(f"v_add_f32 v{acc+i}, v{acc+i}, v{sc+i}")
            if s + pre < n:
                rd(s + pre)

    def xlane(self, op, a, b):
        self.e(f"v_mov_b32 v{b}, v{a}")
        self.e("s_nop 1")
        self.e(f"v_permlane16_swap_b32 v{a}, v{b}")
        self.e("s_nop 1")
        self.e(f"{op} v{a}, v{a}, v{b}")
        self.e(f"v_mov_b32 v{b}, v{a}")
        self.e("s_nop 1")
        self.e(f"v_permlane32_swap_b32 v{a}, v{b}")
        self.e("s_nop 1")
        self.e(f"{op} v{a}, v{a}, v{b}")

    def k_epilogue(self, acc, q):
        self.e("s_nop 7")
        S = self.tmp[0]
        A = self.tmp[1]
        for i in range(4):
            self.e(f"v_mov_b32 v{S+i}, 0")
        for g in range(4):
            for m in range(4):
                self.e(f"v_cvt_pk_bf16_f32 v{A+m}, v{acc+4*(2*m)+g}, v{acc+4*(2*m+1)+g}")
            self.e("s_nop 1")
            self.e(f"v_mfma_f32_16x16x32_bf16 v[{S}:{S+3}], v[{A}:{A+3}], v[{q+4*g}:{q+4*g+3}], v[{S}:{S+3}]")
            if g < 3:
                self.e("s_nop 3")
        self.e("s_nop 7")
        x = acc
        self.e(f"v_cvt_pk_bf16_f32 v{x+4}, v{S}, v{S+1}")
        self.e(f"v_cvt_pk_bf16_f32 v{x+5}, v{S+2}, v{S+3}")
        self.e(f"s_mov_b32 s{S_TMP}, 0x3db504f3")
        self.e(f"s_mov_b32 s{S_TMP2}, 0x3fb8aa3b")
        self.e(f"v_lshlrev_b32 v{x+0}, 16, v{x+4}")
        self.e(f"v_and_b32 v{x+1}, 0xffff0000, v{x+4}")
        self.e(f"v_lshlrev_b32 v{x+2}, 16, v{x+5}")
        self.e(f"v_and_b32 v{x+3}, 0xffff0000, v{x+5}")
        for i in range(4):
            self.e(f"v_mul_f32 v{x+i}, s{S_TMP}, v{x+i}")
        self.e(f"v_cvt_pk_bf16_f32 v{x+4}, v{x}, v{x+1}")
        self.e(f"v_cvt_pk_bf16_f32 v{x+5}, v{x+2}, v{x+3}")
        self.e(f"v_lshlrev_b32 v{x+0}, 16, v{x+4}")
        self.e(f"v_and_b32 v{x+1}, 0xffff0000, v{x+4}")
        self.e(f"v_lshlrev_b32 v{x+2}, 16, v{x+5}")
        self.e(f"v_and_b32 v{x+3}, 0xffff0000, v{x+5}")
        self.e(f"v_max3_f32 v{x+6}, v{x}, v{x+1}, v{x+2}")
        self.e(f"v_max_f32 v{x+6}, v{x+6}, v{x+3}")
        self.xlane("v_max_f32", x + 6, x + 7)
        for i in range(4):
            self.e(f"v_sub_f32 v{x+i}, v{x+i}, v{x+6}")
        for i in range(4):
            self.e(f"v_mul_f32 v{x+i}, s{S_TMP2}, v{x+i}")
        for i in range(4):
            self.e(f"v_exp_f32 v{x+i}, v{x+i}")
        self.e("s_nop 0")
        self.e(f"v_add_f32 v{x+6}, v{x}, v{x+1}")
        self.e(f"v_add_f32 v{x+7}, v{x+2}, v{x+3}")
        self.e(f"v_add_f32 v{x+6}, v{x+6}, v{x+7}")
        self.xlane("v_add_f32", x + 6, x + 7)
        self.e(f"v_rcp_f32 v{x+6}, v{x+6}")
        self.e("s_nop 0")
        for i in range(4):
            self.e(f"v_mul_f32 v{x+i}, v{x+i}, v{x+6}")
        P = x + 8
        self.e(f"v_cvt_pk_bf16_f32 v{P}, v{x}, v{x+1}")
        self.e(f"v_cvt_pk_bf16_f32 v{P+1}, v{x+2}, v{x+3}")
        return P

    def v_pack(self, acc, dst):
        for ecol in range(8):
            a = acc + 4 * ecol
            self.e(f"v_cvt_pk_bf16_f32 v{dst+2*ecol}, v{a}, v{a+1}")
            self.e(f"v_cvt_pk_bf16_f32 v{dst+2*ecol+1}, v{a+2}, v{a+3}")

    def v_epilogue(self, acc, packed, P):
        self.e("s_nop 1")
        for ecol in range(8):
            a = acc + 4 * ecol
            self.e(f"v_mfma_f32_16x16x16_bf16 v[{a}:{a+3}], v[{P}:{P+1}], v[{packed+2*ecol}:{packed+2*ecol+1}], 0")
        self.e(f"v_and_b32 v{self.vM}, 63, v0")
        self.e(f"v_lshlrev_b32 v{self.vM}, 4, v{self.vM}")
        self.e("s_nop 7")
        o = self.tmp[0]
        for m in range(4):
            self.e(f"v_cvt_pk_bf16_f32 v{o+m}, v{acc+4*(2*m)}, v{acc+4*(2*m+1)}")
        self.e(f"buffer_store_dwordx4 v[{o}:{o+3}], v{self.vM}, s[{SRD_O}:{SRD_O+3}], 0 offen")

    def diag_end(self, slot):
        if not self.diag:
            return
        self.e("s_waitcnt vmcnt(0)")
        self.e(f"s_memrealtime s[{S_T1}:{S_T1+1}]")
        self.e(f"s_getreg_b32 s{S_TMP2}, hwreg(HW_REG_XCC_ID)")
        self.e(f"s_getreg_b32 s{S_CNT}, hwreg(HW_REG_HW_ID)")
        self.e(f"s_mul_i32 s{S_TMP}, s2, {self.nw}")
        self.e(f"s_add_u32 s{S_TMP}, s{S_TMP}, s{S_WAVE}")
        self.e(f"s_lshl_b32 s{S_TMP}, s{S_TMP}, 4")
        self.e("s_waitcnt lgkmcnt(0)")
        o = self.tmp[1]
        self.e(f"v_mov_b32 v{o}, s{S_T0}")
        self.e(f"v_mov_b32 v{o+1}, s{S_T1}")
        self.e(f"v_mov_b32 v{o+2}, s{S_TMP2}")
        self.e(f"v_mov_b32 v{o+3}, s{S_CNT}")
        self.e(f"v_mov_b32 v{self.vM}, s{S_TMP}")
        self.e("s_mov_b64 exec, 1")
        self.e(f"buffer_store_dwordx4 v[{o}:{o+3}], v{self.vM}, s[{SRD_W}:{SRD_W+3}], 0 offen")

    def srd(self, d, ptr, offreg, nrec):
        if offreg is None:
            self.e(f"s_mov_b32 s{d}, s{ptr}")
            self.e(f"s_mov_b32 s{d+1}, s{ptr+1}")
        else:
            self.e(f"s_add_u32 s{d}, s{ptr}, s{offreg}")
            self.e(f"s_addc_u32 s{d+1}, s{ptr+1}, 0")
        self.e(f"s_mov_b32 s{d+2}, {nrec:#x}")
        self.e(f"s_mov_b32 s{d+3}, 0x20000")

    def build(self):
        D, T, nws = self.D, self.T, self.nws
        e = self.e
        e("s_cmp_ge_u32 s2, 512")
        e("s_cbranch_scc1 L_end")
        if self.diag:
            e(f"s_memrealtime s[{S_T0}:{S_T0+1}]")
            e(f"s_load_dwordx2 s[{S_WS}:{S_WS+1}], s[0:1], 56")
        e("s_load_dwordx8 s[4:11], s[0:1], 0")
        e("s_load_dwordx4 s[12:15], s[0:1], 32")
        e(f"v_readfirstlane_b32 s{S_WAVE}, v0")
        t0, t1 = self.tmp[0], self.tmp[0] + 1
        e(f"v_and_b32 v{t0}, 15, v0")
        e(f"v_bfe_u32 v{t1}, v0, 4, 2")
        e(f"v_lshlrev_b32 v{self.vK}, 4, v{t0}")
        e(f"v_lshl_add_u32 v{self.vK}, v{t1}, 11, v{self.vK}")
        e(f"v_lshlrev_b32 v{self.vE}, 13, v{t0}")
        e(f"v_lshl_add_u32 v{self.vE}, v{t1}, 4, v{self.vE}")
        e(f"v_lshrrev_b32 v{self.vM}, 2, v{t0}")
        e(f"v_lshlrev_b32 v{self.vM}, 8, v{self.vM}")
        e(f"v_lshl_add_u32 v{self.vM}, v{t1}, 6, v{self.vM}")
        e(f"s_lshr_b32 s{S_WAVE}, s{S_WAVE}, 6")
        e(f"s_and_b32 s{S_J}, s{S_WAVE}, {nws-1}")
        e(f"s_mov_b32 s{S_SEL_LO}, 0x05040100")
        e(f"s_mov_b32 s{S_SEL_HI}, 0x07060302")
        e(f"s_lshl_b32 s{S_P}, s{S_J}, 13")
        if self.rot:
            e(f"s_mul_i32 s{S_TMP}, s2, {self.rot * 8192}")
            e(f"s_add_u32 s{S_P}, s{S_P}, s{S_TMP}")
            e(f"s_and_b32 s{S_P}, s{S_P}, 0xfffff")
        e(f"s_lshr_b32 s{S_PE}, s{S_P}, 7")
        e(f"s_mov_b32 s{S_START}, s{S_P}")
        e(f"s_lshl_b32 s{S_TMP}, s2, 20")
        e(f"s_lshl_b32 s{S_TMP2}, s2, 10")
        e("s_waitcnt lgkmcnt(0)")
        self.srd(SRD_K, S_K, S_TMP, 0x100000)
        self.srd(SRD_E, S_E, None, 0x20000)
        self.srd(SRD_V, S_V, S_TMP, 0x100000)
        self.srd(SRD_F, S_F, None, 0x20000)
        self.srd(SRD_Q, S_Q, S_TMP2, 0x400)
        self.srd(SRD_O, S_O, S_TMP2, 0x400)
        if self.diag:
            self.srd(SRD_W, S_WS, None, 0x1000000)

        if self.mode == "split":
            e(f"s_cmp_ge_u32 s{S_WAVE}, {nws}")
            e("s_cbranch_scc1 L_vwave")
            if self.qmode == "early":
                self.qloads(self.q)
            for b in range(D):
                self.prefetch(b, SRD_K, SRD_E)
            self.zero(self.accA)
            self.steps(0, T - D, True, self.accA, SRD_K, SRD_E)
            qb = self.tail(T - D, True, self.accA, self.qmode == "tail")
            q = self.q if self.qmode == "early" else self.tb[qb]
            if nws > 1:
                e(f"s_cmp_eq_u32 s{S_J}, 0")
                e("s_cbranch_scc1 L_klead")
                self.write_partial(self.accA, 0)
                e("s_barrier")
                self.diag_end(0)
                e("s_endpgm")
                self.label("L_klead")
                e("s_barrier")
                self.read_partials(self.accA, 0, [self.tb[b] for b in range(D) if b != qb])
            e("s_waitcnt vmcnt(0)")
            P = self.k_epilogue(self.accA, q)
            e(f"v_and_b32 v{self.vM}, 63, v0")
            e(f"v_lshlrev_b32 v{self.vM}, 3, v{self.vM}")
            hi = self.lds_p >= 65536
            if hi:
                e(f"v_add_u32 v{self.vM}, 0x10000, v{self.vM}")
            e(f"ds_write_b64 v{self.vM}, v[{P}:{P+1}] offset:{self.lds_p - (65536 if hi else 0)}")
            e("s_waitcnt lgkmcnt(0)")
            e("s_barrier")
            self.diag_end(0)
            e("s_endpgm")
            self.label("L_vwave")
            for b in range(D):
                self.prefetch(b, SRD_V, SRD_F)
            self.zero(self.accA)
            self.steps(0, T - D, False, self.accA, SRD_V, SRD_F)
            self.tail(T - D, False, self.accA, False)
            if nws > 1:
                e(f"s_cmp_eq_u32 s{S_J}, 0")
                e("s_cbranch_scc1 L_vlead")
                self.write_partial(self.accA, (nws - 1) * 8192)
                e("s_barrier")
                self.diag_end(0)
                e("s_endpgm")
                self.label("L_vlead")
                e("s_barrier")
                self.read_partials(self.accA, (nws - 1) * 8192, list(self.tb))
            e("s_nop 7")
            pk = self.tb[0]
            self.v_pack(self.accA, pk)
            e(f"v_and_b32 v{self.vM}, 63, v0")
            e(f"v_lshlrev_b32 v{self.vM}, 3, v{self.vM}")
            if hi:
                e(f"v_add_u32 v{self.vM}, 0x10000, v{self.vM}")
            e("s_barrier")
            P = pk + 16
            e(f"ds_read_b64 v[{P}:{P+1}], v{self.vM} offset:{self.lds_p - (65536 if hi else 0)}")
            e("s_waitcnt lgkmcnt(0)")
            self.v_epilogue(self.accA, pk, P)
            self.diag_end(0)
        else:
            assert self.qmode == "early"
            self.qloads(self.q)
            for b in range(D):
                self.prefetch(b, SRD_K, SRD_E)
            self.zero(self.accA)
            self.steps(0, T - D, True, self.accA, SRD_K, SRD_E)
            e(f"s_mov_b32 s{S_P}, s{S_START}")
            e(f"s_lshr_b32 s{S_PE}, s{S_P}, 7")
            s0 = T - D
            for i in range(D):
                b = (s0 + i) % D
                self.consume(b, True, self.accA, self.LPT * (D - 1))
                self.prefetch(b, SRD_V, SRD_F)
            if nws > 1:
                e(f"s_cmp_eq_u32 s{S_J}, 0")
                e("s_cbranch_scc1 L_klead")
                self.write_partial(self.accA, 0)
                e("s_barrier")
                e("s_branch L_kdone")
                self.label("L_klead")
                e("s_barrier")
                self.read_partials(self.accA, 0, [self.accB])
            P = self.k_epilogue(self.accA, self.q)
            if nws > 1:
                self.label("L_kdone")
            self.zero(self.accB)
            self.steps(T, T - D, False, self.accB, SRD_V, SRD_F)
            self.tail(2 * T - D, False, self.accB, False)
            if nws > 1:
                e(f"s_cmp_eq_u32 s{S_J}, 0")
                e("s_cbranch_scc1 L_vlead")
                self.write_partial(self.accB, (nws - 1) * 8192)
                e("s_barrier")
                self.diag_end(0)
                e("s_endpgm")
                self.label("L_vlead")
                e("s_barrier")
                self.read_partials(self.accB, (nws - 1) * 8192, list(self.tb))
            e("s_nop 7")
            pk = self.tb[0]
            self.v_pack(self.accB, pk)
            self.v_epilogue(self.accB, pk, P)
            self.diag_end(0)
        self.label("L_end")
        e("s_endpgm")

        out = HEADER
        out += f"; @launch grid=(512,1,1) block=({64*self.nw},1,1) lds={self.lds}\n"
        out += '.amdgcn_target "amdgcn-amd-amdhsa--gfx950"\n.text\n'
        out += f".globl {NAME}_kernel\n.p2align 8\n.type {NAME}_kernel,@function\n{NAME}_kernel:\n"
        out += "\n".join(self.lines) + "\n"
        out += '.section .rodata,"a"\n.p2align 6\n'
        out += f".amdhsa_kernel {NAME}_kernel\n"
        out += f"  .amdhsa_next_free_vgpr {self.nfv}\n"
        out += f"  .amdhsa_next_free_sgpr 64\n"
        out += f"  .amdhsa_accum_offset {self.accum_offset}\n"
        out += "  .amdhsa_group_segment_fixed_size 0\n  .amdhsa_kernarg_size 64\n"
        out += "  .amdhsa_user_sgpr_count 2\n  .amdhsa_user_sgpr_kernarg_segment_ptr 1\n"
        out += "  .amdhsa_system_sgpr_workgroup_id_x 1\n"
        out += "  .amdhsa_float_denorm_mode_32 3\n"
        out += ".end_amdhsa_kernel\n"
        return out


if __name__ == "__main__":
    ap = argparse.ArgumentParser()
    ap.add_argument("-o", default=f"cdna_kernels/{NAME}.s")
    ap.add_argument("--mode", default="split")
    ap.add_argument("--nws", type=int, default=1)
    ap.add_argument("--D", type=int, default=6)
    ap.add_argument("--kpol", default="nt")
    ap.add_argument("--epol", default="")
    ap.add_argument("--rot", type=int, default=0)
    ap.add_argument("--lds", type=int, default=0)
    ap.add_argument("--qmode", default="early")
    ap.add_argument("--eagpr", action="store_true")
    ap.add_argument("--diag", action="store_true")
    ap.add_argument("--vgpr_min", type=int, default=0)
    ap.add_argument("--nocompute", action="store_true")
    ap.add_argument("--noe", action="store_true")
    a = ap.parse_args()
    g = Gen(a.mode, a.nws, a.D, a.kpol, a.epol, a.rot, a.lds, a.qmode, a.eagpr, a.diag, a.vgpr_min,
            a.nocompute, a.noe)
    s = g.build()
    open(a.o, "w").write(s)
    print(f"wrote {a.o}: nv={g.nv} nfv={g.nfv} lds={g.lds} waves={g.nw} lines={len(g.lines)}")
```

```python
import argparse

NAME = "standalone__low_rank_proj_linformer__sampling"

HEADER = """; Kernarg layout for this problem (64 bytes, ptrs only, base s[0:1]):
"""

S_Q, S_K, S_V, S_E, S_F, S_O = 4, 6, 8, 10, 12, 14
SRD_K, SRD_V, SRD_E, SRD_F, SRD_Q, SRD_O = 16, 20, 24, 28, 32, 36
S_WAVE = 3
S_P = 40
S_PE = 41
S_CNT = 42
S_SEL_LO = 43
S_SEL_HI = 44
S_TMP = 45
S_TMP2 = 46
S_J = 47
S_START = 48
S_T0 = 50
S_T1 = 52
SRD_W = 56
S_WS = 60


class Gen:
    def __init__(self, mode="split", nws=1, D=6, kpol="nt", epol="", rot=0, lds=0,
                 qmode="early", eagpr=False, diag=False, vgpr_min=0, nocompute=False, noe=False,
                 xmask=0, ts=False, cumask=0, bhxor=0):
        self.bhxor = bhxor
        self.xmask, self.ts, self.cumask = xmask, ts, cumask
        self.mode, self.nws, self.D = mode, nws, D
        self.kpol, self.epol, self.rot = kpol, epol, rot
        self.qmode, self.eagpr, self.diag = qmode, eagpr, diag
        self.nocompute, self.noe = nocompute, noe
        self.lines = []
        self.T = 128 // nws
        self.nw = nws * (2 if mode == "split" else 1)
        self.LPT = 8 if noe else 9
        self.vK, self.vE, self.vM = 1, 2, 3
        self.tmp = [4, 8]
        r = 12
        self.accA = r; r += 32
        if mode == "seq":
            self.accB = r; r += 32
        else:
            self.accB = self.accA
        if qmode == "early":
            self.q = r; r += 16
        self.tb = []
        for b in range(D):
            self.tb.append(r); r += 32
        self.eb = []
        self.nagpr = 0
        for b in range(D):
            if eagpr:
                self.eb.append(("a", 4 * b)); self.nagpr += 4
            else:
                self.eb.append(("v", r)); r += 4
        if ts:
            self.vS = r; r += 1
            self.vS2 = r; r += 1
        assert r <= 256, r
        self.nv = r
        self.accum_offset = (r + 3) // 4 * 4
        self.nfv = max(self.accum_offset + self.nagpr if eagpr else r, vgpr_min)
        npart = (nws - 1)
        need = 2 * npart * 8192 + 512
        if mode == "seq" and nws == 1:
            need = 0
        self.lds_p = 2 * npart * 8192
        self.lds = max(lds, need)
        self.lab = 0

    def e(self, s):
        self.lines.append("    " + s)

    def label(self, s):
        self.lines.append(s + ":")

    def er(self, b):
        k, r = self.eb[b]
        return f"{k}[{r}:{r+3}]"

    def prefetch(self, b, srd, esrd):
        t = self.tb[b]
        pol = (" " + self.kpol) if self.kpol else ""
        epol = (" " + self.epol) if self.epol else ""
        for i in range(8):
            off = f" offset:{i*256}" if i else ""
            self.e(f"buffer_load_dwordx4 v[{t+4*i}:{t+4*i+3}], v{self.vK}, s[{srd}:{srd+3}], s{S_P} offen{off}{pol}")
        if not self.noe:
            self.e(f"buffer_load_dwordx4 {self.er(b)}, v{self.vE}, s[{esrd}:{esrd+3}], s{S_PE} offen{epol}")
        self.e(f"s_add_u32 s{S_P}, s{S_P}, {self.nws*8192}")
        self.e(f"s_and_b32 s{S_P}, s{S_P}, 0xfffff")
        self.e(f"s_lshr_b32 s{S_PE}, s{S_P}, 7")

    def perms(self, b, ecol):
        t = self.tb[b]
        tm = self.tmp[ecol & 1]
        sel = S_SEL_HI if (ecol & 1) else S_SEL_LO
        c = ecol >> 1
        for m in range(4):
            lo = t + 4 * (2 * m) + c
            hi = t + 4 * (2 * m + 1) + c
            self.e(f"v_perm_b32 v{tm+m}, v{hi}, v{lo}, s{sel}")

    def mfma(self, b, ecol, isK, acc):
        tm = self.tmp[ecol & 1]
        a = acc + 4 * ecol
        x = f"v[{tm}:{tm+3}]"
        if isK:
            self.e(f"v_mfma_f32_16x16x32_bf16 v[{a}:{a+3}], {x}, {self.er(b)}, v[{a}:{a+3}]")
        else:
            self.e(f"v_mfma_f32_16x16x32_bf16 v[{a}:{a+3}], {self.er(b)}, {x}, v[{a}:{a+3}]")

    def consume(self, b, isK, acc, vm):
        self.e(f"s_waitcnt vmcnt({vm})")
        if self.nocompute:
            return
        self.perms(b, 0)
        for ecol in range(1, 8):
            self.perms(b, ecol)
            self.mfma(b, ecol - 1, isK, acc)
        self.e("s_nop 0")
        self.mfma(b, 7, isK, acc)

    def steps(self, s0, n, isK, acc, srd, esrd):
        D = self.D
        vm = self.LPT * (D - 1)
        nl, rem = divmod(n, D)
        if nl >= 2:
            self.lab += 1
            L = f"L_loop{self.lab}"
            self.e(f"s_mov_b32 s{S_CNT}, {nl}")
            self.label(L)
            for i in range(D):
                b = (s0 + i) % D
                self.consume(b, isK, acc, vm)
                self.prefetch(b, srd, esrd)
            if self.ts:
                self.e(f"s_memrealtime s[{S_T1}:{S_T1+1}]")
                self.e("s_waitcnt lgkmcnt(0)")
                self.e(f"v_writelane_b32 v{self.vS}, s{S_T1}, m0")
                self.e("s_add_u32 m0, m0, 1")
            self.e(f"s_sub_u32 s{S_CNT}, s{S_CNT}, 1")
            self.e(f"s_cmp_lg_u32 s{S_CNT}, 0")
            self.e(f"s_cbranch_scc1 {L}")
        else:
            rem += nl * D
        for i in range(rem):
            b = (s0 + i) % D
            self.consume(b, isK, acc, vm)
            self.prefetch(b, srd, esrd)

    def qloads(self, q):
        for g in range(4):
            off = f" offset:{g*16}" if g else ""
            self.e(f"buffer_load_dwordx4 v[{q+4*g}:{q+4*g+3}], v{self.vM}, s[{SRD_Q}:{SRD_Q+3}], 0 offen{off}")

    def tail(self, s0, isK, acc, want_q):
        D = self.D
        qb = None
        extra = 0
        for i in range(D):
            b = (s0 + i) % D
            self.consume(b, isK, acc, self.LPT * (D - 1 - i) + extra)
            if i == 0 and want_q:
                qb = b
                self.qloads(self.tb[b])
                extra = 4
        return qb

    def zero(self, acc):
        for i in range(32):
            self.e(f"v_mov_b32 v{acc+i}, 0")

    def write_partial(self, acc, base):
        self.e(f"v_and_b32 v{self.vM}, 63, v0")
        self.e(f"v_lshlrev_b32 v{self.vM}, 4, v{self.vM}")
        self.e(f"s_lshl_b32 s{S_TMP}, s{S_J}, 13")
        self.e(f"s_add_u32 s{S_TMP}, s{S_TMP}, {base - 8192}")
        self.e(f"v_add_u32 v{self.vM}, s{S_TMP}, v{self.vM}")
        self.e("s_nop 7")
        for i in range(8):
            self.e(f"ds_write_b128 v{self.vM}, v[{acc+4*i}:{acc+4*i+3}] offset:{i*1024}")
        self.e("s_waitcnt lgkmcnt(0)")

    def read_partials(self, acc, base, scratch):
        tm = self.tmp[0]
        self.e(f"v_and_b32 v{tm}, 63, v0")
        self.e(f"v_lshlrev_b32 v{tm}, 4, v{tm}")
        n = self.nws - 1
        ns = len(scratch)
        def rd(s):
            sc = scratch[s % ns]
            off0 = base + s * 8192
            for i in range(8):
                off = off0 + i * 1024
                if off < 65536:
                    self.e(f"ds_read_b128 v[{sc+4*i}:{sc+4*i+3}], v{tm} offset:{off}")
                else:
                    self.e(f"ds_read_b128 v[{sc+4*i}:{sc+4*i+3}], v{tm+1} offset:{off-65536}")
        self.e(f"v_add_u32 v{tm+1}, 0x10000, v{tm}")
        pre = min(ns, n, 2)
        for s in range(pre):
            rd(s)
        for s in range(n):
            more = min(n - 1 - s, pre - 1)
            self.e(f"s_waitcnt lgkmcnt({8*more})")
            sc = scratch[s % ns]
            for i in range(32):
                self.e(f"v_add_f32 v{acc+i}, v{acc+i}, v{sc+i}")
            if s + pre < n:
                rd(s + pre)

    def xlane(self, op, a, b):
        self.e(f"v_mov_b32 v{b}, v{a}")
        self.e("s_nop 1")
        self.e(f"v_permlane16_swap_b32 v{a}, v{b}")
        self.e("s_nop 1")
        self.e(f"{op} v{a}, v{a}, v{b}")
        self.e(f"v_mov_b32 v{b}, v{a}")
        self.e("s_nop 1")
        self.e(f"v_permlane32_swap_b32 v{a}, v{b}")
        self.e("s_nop 1")
        self.e(f"{op} v{a}, v{a}, v{b}")

    def k_epilogue(self, acc, q):
        self.e("s_nop 7")
        S = self.tmp[0]
        A = self.tmp[1]
        for i in range(4):
            self.e(f"v_mov_b32 v{S+i}, 0")
        for g in range(4):
            for m in range(4):
                self.e(f"v_cvt_pk_bf16_f32 v{A+m}, v{acc+4*(2*m)+g}, v{acc+4*(2*m+1)+g}")
            self.e("s_nop 1")
            self.e(f"v_mfma_f32_16x16x32_bf16 v[{S}:{S+3}], v[{A}:{A+3}], v[{q+4*g}:{q+4*g+3}], v[{S}:{S+3}]")
            if g < 3:
                self.e("s_nop 3")
        self.e("s_nop 7")
        x = acc
        self.e(f"v_cvt_pk_bf16_f32 v{x+4}, v{S}, v{S+1}")
        self.e(f"v_cvt_pk_bf16_f32 v{x+5}, v{S+2}, v{S+3}")
        self.e(f"s_mov_b32 s{S_TMP}, 0x3db504f3")
        self.e(f"s_mov_b32 s{S_TMP2}, 0x3fb8aa3b")
        self.e(f"v_lshlrev_b32 v{x+0}, 16, v{x+4}")
        self.e(f"v_and_b32 v{x+1}, 0xffff0000, v{x+4}")
        self.e(f"v_lshlrev_b32 v{x+2}, 16, v{x+5}")
        self.e(f"v_and_b32 v{x+3}, 0xffff0000, v{x+5}")
        for i in range(4):
            self.e(f"v_mul_f32 v{x+i}, s{S_TMP}, v{x+i}")
        self.e(f"v_cvt_pk_bf16_f32 v{x+4}, v{x}, v{x+1}")
        self.e(f"v_cvt_pk_bf16_f32 v{x+5}, v{x+2}, v{x+3}")
        self.e(f"v_lshlrev_b32 v{x+0}, 16, v{x+4}")
        self.e(f"v_and_b32 v{x+1}, 0xffff0000, v{x+4}")
        self.e(f"v_lshlrev_b32 v{x+2}, 16, v{x+5}")
        self.e(f"v_and_b32 v{x+3}, 0xffff0000, v{x+5}")
        self.e(f"v_max3_f32 v{x+6}, v{x}, v{x+1}, v{x+2}")
        self.e(f"v_max_f32 v{x+6}, v{x+6}, v{x+3}")
        self.xlane("v_max_f32", x + 6, x + 7)
        for i in range(4):
            self.e(f"v_sub_f32 v{x+i}, v{x+i}, v{x+6}")
        for i in range(4):
            self.e(f"v_mul_f32 v{x+i}, s{S_TMP2}, v{x+i}")
        for i in range(4):
            self.e(f"v_exp_f32 v{x+i}, v{x+i}")
        self.e("s_nop 0")
        self.e(f"v_add_f32 v{x+6}, v{x}, v{x+1}")
        self.e(f"v_add_f32 v{x+7}, v{x+2}, v{x+3}")
        self.e(f"v_add_f32 v{x+6}, v{x+6}, v{x+7}")
        self.xlane("v_add_f32", x + 6, x + 7)
        self.e(f"v_rcp_f32 v{x+6}, v{x+6}")
        self.e("s_nop 0")
        for i in range(4):
            self.e(f"v_mul_f32 v{x+i}, v{x+i}, v{x+6}")
        P = x + 8
        self.e(f"v_cvt_pk_bf16_f32 v{P}, v{x}, v{x+1}")
        self.e(f"v_cvt_pk_bf16_f32 v{P+1}, v{x+2}, v{x+3}")
        return P

    def v_pack(self, acc, dst):
        for ecol in range(8):
            a = acc + 4 * ecol
            self.e(f"v_cvt_pk_bf16_f32 v{dst+2*ecol}, v{a}, v{a+1}")
            self.e(f"v_cvt_pk_bf16_f32 v{dst+2*ecol+1}, v{a+2}, v{a+3}")

    def v_epilogue(self, acc, packed, P):
        self.e("s_nop 1")
        for ecol in range(8):
            a = acc + 4 * ecol
            self.e(f"v_mfma_f32_16x16x16_bf16 v[{a}:{a+3}], v[{P}:{P+1}], v[{packed+2*ecol}:{packed+2*ecol+1}], 0")
        self.e(f"v_and_b32 v{self.vM}, 63, v0")
        self.e(f"v_lshlrev_b32 v{self.vM}, 4, v{self.vM}")
        self.e("s_nop 7")
        o = self.tmp[0]
        for m in range(4):
            self.e(f"v_cvt_pk_bf16_f32 v{o+m}, v{acc+4*(2*m)}, v{acc+4*(2*m+1)}")
        self.e(f"buffer_store_dwordx4 v[{o}:{o+3}], v{self.vM}, s[{SRD_O}:{SRD_O+3}], 0 offen")

    def diag_end(self, slot):
        if not self.diag:
            return
        self.e("s_waitcnt vmcnt(0)")
        self.e(f"s_memrealtime s[{S_T1}:{S_T1+1}]")
        self.e(f"s_getreg_b32 s{S_TMP2}, hwreg(HW_REG_XCC_ID)")
        self.e(f"s_getreg_b32 s{S_CNT}, hwreg(HW_REG_HW_ID)")
        self.e(f"s_mul_i32 s{S_TMP}, s2, {self.nw}")
        self.e(f"s_add_u32 s{S_TMP}, s{S_TMP}, s{S_WAVE}")
        self.e(f"s_lshl_b32 s{S_TMP}, s{S_TMP}, 4")
        self.e("s_waitcnt lgkmcnt(0)")
        o = self.tmp[1]
        self.e(f"v_mov_b32 v{o}, s{S_T0}")
        self.e(f"v_mov_b32 v{o+1}, s{S_T1}")
        self.e(f"v_mov_b32 v{o+2}, s{S_TMP2}")
        self.e(f"v_mov_b32 v{o+3}, s{S_CNT}")
        self.e(f"v_mov_b32 v{self.vM}, s{S_TMP}")
        if self.ts:
            self.e(f"v_and_b32 v{self.vK}, 63, v0")
            self.e(f"v_lshlrev_b32 v{self.vK}, 2, v{self.vK}")
            self.e(f"s_lshl_b32 s{S_TMP}, s{S_TMP}, 4")
            self.e(f"s_add_u32 s{S_TMP}, s{S_TMP}, 0x100000")
            self.e(f"buffer_store_dword v{self.vS}, v{self.vK}, s[{SRD_W}:{SRD_W+3}], s{S_TMP} offen")
            self.e(f"s_add_u32 s{S_TMP}, s{S_TMP}, 0x100000")
            self.e(f"buffer_store_dword v{self.vS2}, v{self.vK}, s[{SRD_W}:{SRD_W+3}], s{S_TMP} offen")
        self.e("s_mov_b64 exec, 1")
        self.e(f"buffer_store_dwordx4 v[{o}:{o+3}], v{self.vM}, s[{SRD_W}:{SRD_W+3}], 0 offen")

    def stamp(self, lane):
        if not self.ts:
            return
        self.e(f"s_memrealtime s[{S_T1}:{S_T1+1}]")
        self.e("s_waitcnt lgkmcnt(0)")
        self.e(f"v_writelane_b32 v{self.vS2}, s{S_T1}, {lane}")

    def srd(self, d, ptr, offreg, nrec):
        if offreg is None:
            self.e(f"s_mov_b32 s{d}, s{ptr}")
            self.e(f"s_mov_b32 s{d+1}, s{ptr+1}")
        else:
            self.e(f"s_add_u32 s{d}, s{ptr}, s{offreg}")
            self.e(f"s_addc_u32 s{d+1}, s{ptr+1}, 0")
        self.e(f"s_mov_b32 s{d+2}, {nrec:#x}")
        self.e(f"s_mov_b32 s{d+3}, 0x20000")

    def build(self):
        D, T, nws = self.D, self.T, self.nws
        e = self.e
        e("s_cmp_ge_u32 s2, 512")
        e("s_cbranch_scc1 L_end")
        if self.diag:
            e(f"s_memrealtime s[{S_T0}:{S_T0+1}]")
            e(f"s_load_dwordx2 s[{S_WS}:{S_WS+1}], s[0:1], 56")
        if self.xmask:
            e(f"s_getreg_b32 s{S_TMP2}, hwreg(HW_REG_XCC_ID)")
            e(f"s_and_b32 s{S_TMP2}, s{S_TMP2}, 15")
            e(f"s_lshr_b32 s{S_TMP2}, {self.xmask}, s{S_TMP2}")
            e(f"s_and_b32 s{S_TMP2}, s{S_TMP2}, 1")
            e("s_cbranch_scc0 L_end")
        if self.cumask:
            e(f"s_getreg_b32 s{S_TMP2}, hwreg(HW_REG_HW_ID, 8, 4)")
            e(f"s_lshr_b32 s{S_TMP2}, {self.cumask}, s{S_TMP2}")
            e(f"s_and_b32 s{S_TMP2}, s{S_TMP2}, 1")
            e("s_cbranch_scc0 L_end")
        if self.ts:
            e("s_mov_b32 m0, 0")
            e(f"v_mov_b32 v{self.vS}, 0")
            e(f"v_mov_b32 v{self.vS2}, 0")
        e("s_load_dwordx8 s[4:11], s[0:1], 0")
        e("s_load_dwordx4 s[12:15], s[0:1], 32")
        e(f"v_readfirstlane_b32 s{S_WAVE}, v0")
        t0, t1 = self.tmp[0], self.tmp[0] + 1
        e(f"v_and_b32 v{t0}, 15, v0")
        e(f"v_bfe_u32 v{t1}, v0, 4, 2")
        e(f"v_lshlrev_b32 v{self.vK}, 4, v{t0}")
        e(f"v_lshl_add_u32 v{self.vK}, v{t1}, 11, v{self.vK}")
        e(f"v_lshlrev_b32 v{self.vE}, 13, v{t0}")
        e(f"v_lshl_add_u32 v{self.vE}, v{t1}, 4, v{self.vE}")
        e(f"v_lshrrev_b32 v{self.vM}, 2, v{t0}")
        e(f"v_lshlrev_b32 v{self.vM}, 8, v{self.vM}")
        e(f"v_lshl_add_u32 v{self.vM}, v{t1}, 6, v{self.vM}")
        e(f"s_lshr_b32 s{S_WAVE}, s{S_WAVE}, 6")
        e(f"s_and_b32 s{S_J}, s{S_WAVE}, {nws-1}")
        e(f"s_mov_b32 s{S_SEL_LO}, 0x05040100")
        e(f"s_mov_b32 s{S_SEL_HI}, 0x07060302")
        e(f"s_lshl_b32 s{S_P}, s{S_J}, 13")
        if self.rot:
            e(f"s_mul_i32 s{S_TMP}, s2, {self.rot * 8192}")
            e(f"s_add_u32 s{S_P}, s{S_P}, s{S_TMP}")
            e(f"s_and_b32 s{S_P}, s{S_P}, 0xfffff")
        e(f"s_lshr_b32 s{S_PE}, s{S_P}, 7")
        e(f"s_mov_b32 s{S_START}, s{S_P}")
        e(f"s_xor_b32 s{S_TMP2}, s2, {self.bhxor}")
        e(f"s_lshl_b32 s{S_TMP}, s{S_TMP2}, 20")
        e(f"s_lshl_b32 s{S_TMP2}, s{S_TMP2}, 10")
        e("s_waitcnt lgkmcnt(0)")
        self.stamp(0)
        self.srd(SRD_K, S_K, S_TMP, 0x100000)
        self.srd(SRD_E, S_E, None, 0x20000)
        self.srd(SRD_V, S_V, S_TMP, 0x100000)
        self.srd(SRD_F, S_F, None, 0x20000)
        self.srd(SRD_Q, S_Q, S_TMP2, 0x400)
        self.srd(SRD_O, S_O, S_TMP2, 0x400)
        if self.diag:
            self.srd(SRD_W, S_WS, None, 0x1000000)

        if self.mode == "split":
            e(f"s_cmp_ge_u32 s{S_WAVE}, {nws}")
            e("s_cbranch_scc1 L_vwave")
            if self.qmode == "early":
                self.qloads(self.q)
            for b in range(D):
                self.prefetch(b, SRD_K, SRD_E)
            self.zero(self.accA)
            self.steps(0, T - D, True, self.accA, SRD_K, SRD_E)
            qb = self.tail(T - D, True, self.accA, self.qmode == "tail")
            q = self.q if self.qmode == "early" else self.tb[qb]
            if nws > 1:
                e(f"s_cmp_eq_u32 s{S_J}, 0")
                e("s_cbranch_scc1 L_klead")
                self.write_partial(self.accA, 0)
                e("s_barrier")
                self.diag_end(0)
                e("s_endpgm")
                self.label("L_klead")
                e("s_barrier")
                self.read_partials(self.accA, 0, [self.tb[b] for b in range(D) if b != qb])
            e("s_waitcnt vmcnt(0)")
            P = self.k_epilogue(self.accA, q)
            e(f"v_and_b32 v{self.vM}, 63, v0")
            e(f"v_lshlrev_b32 v{self.vM}, 3, v{self.vM}")
            hi = self.lds_p >= 65536
            if hi:
                e(f"v_add_u32 v{self.vM}, 0x10000, v{self.vM}")
            e(f"ds_write_b64 v{self.vM}, v[{P}:{P+1}] offset:{self.lds_p - (65536 if hi else 0)}")
            e("s_waitcnt lgkmcnt(0)")
            e("s_barrier")
            self.diag_end(0)
            e("s_endpgm")
            self.label("L_vwave")
            for b in range(D):
                self.prefetch(b, SRD_V, SRD_F)
            self.zero(self.accA)
            self.steps(0, T - D, False, self.accA, SRD_V, SRD_F)
            self.tail(T - D, False, self.accA, False)
            if nws > 1:
                e(f"s_cmp_eq_u32 s{S_J}, 0")
                e("s_cbranch_scc1 L_vlead")
                self.write_partial(self.accA, (nws - 1) * 8192)
                e("s_barrier")
                self.diag_end(0)
                e("s_endpgm")
                self.label("L_vlead")
                e("s_barrier")
                self.read_partials(self.accA, (nws - 1) * 8192, list(self.tb))
            e("s_nop 7")
            pk = self.tb[0]
            self.v_pack(self.accA, pk)
            e(f"v_and_b32 v{self.vM}, 63, v0")
            e(f"v_lshlrev_b32 v{self.vM}, 3, v{self.vM}")
            if hi:
                e(f"v_add_u32 v{self.vM}, 0x10000, v{self.vM}")
            e("s_barrier")
            P = pk + 16
            e(f"ds_read_b64 v[{P}:{P+1}], v{self.vM} offset:{self.lds_p - (65536 if hi else 0)}")
            e("s_waitcnt lgkmcnt(0)")
            self.v_epilogue(self.accA, pk, P)
            self.diag_end(0)
        else:
            assert self.qmode == "early"
            self.qloads(self.q)
            for b in range(D):
                self.prefetch(b, SRD_K, SRD_E)
                self.stamp(1 + b)
            self.zero(self.accA)
            if self.ts:
                for b in range(D):
                    e(f"s_waitcnt vmcnt({self.LPT*(D-1-b)})")
                    self.stamp(10 + b)
            self.steps(0, T - D, True, self.accA, SRD_K, SRD_E)
            e(f"s_mov_b32 s{S_P}, s{S_START}")
            e(f"s_lshr_b32 s{S_PE}, s{S_P}, 7")
            s0 = T - D
            for i in range(D):
                b = (s0 + i) % D
                self.consume(b, True, self.accA, self.LPT * (D - 1))
                self.prefetch(b, SRD_V, SRD_F)
            if nws > 1:
                e(f"s_cmp_eq_u32 s{S_J}, 0")
                e("s_cbranch_scc1 L_klead")
                self.write_partial(self.accA, 0)
                e("s_barrier")
                e("s_branch L_kdone")
                self.label("L_klead")
                e("s_barrier")
                self.read_partials(self.accA, 0, [self.accB])
            P = self.k_epilogue(self.accA, self.q)
            if nws > 1:
                self.label("L_kdone")
            self.zero(self.accB)
            self.steps(T, T - D, False, self.accB, SRD_V, SRD_F)
            self.stamp(20)
            self.tail(2 * T - D, False, self.accB, False)
            self.stamp(21)
            if nws > 1:
                e(f"s_cmp_eq_u32 s{S_J}, 0")
                e("s_cbranch_scc1 L_vlead")
                self.write_partial(self.accB, (nws - 1) * 8192)
                e("s_barrier")
                self.diag_end(0)
                e("s_endpgm")
                self.label("L_vlead")
                e("s_barrier")
                self.read_partials(self.accB, (nws - 1) * 8192, list(self.tb))
            e("s_nop 7")
            pk = self.tb[0]
            self.v_pack(self.accB, pk)
            self.v_epilogue(self.accB, pk, P)
            self.diag_end(0)
        self.label("L_end")
        e("s_endpgm")

        out = HEADER
        out += f"; @launch grid=(512,1,1) block=({64*self.nw},1,1) lds={self.lds}\n"
        out += '.amdgcn_target "amdgcn-amd-amdhsa--gfx950"\n.text\n'
        out += f".globl {NAME}_kernel\n.p2align 8\n.type {NAME}_kernel,@function\n{NAME}_kernel:\n"
        out += "\n".join(self.lines) + "\n"
        out += '.section .rodata,"a"\n.p2align 6\n'
        out += f".amdhsa_kernel {NAME}_kernel\n"
        out += f"  .amdhsa_next_free_vgpr {self.nfv}\n"
        out += f"  .amdhsa_next_free_sgpr 64\n"
        out += f"  .amdhsa_accum_offset {self.accum_offset}\n"
        out += "  .amdhsa_group_segment_fixed_size 0\n  .amdhsa_kernarg_size 64\n"
        out += "  .amdhsa_user_sgpr_count 2\n  .amdhsa_user_sgpr_kernarg_segment_ptr 1\n"
        out += "  .amdhsa_system_sgpr_workgroup_id_x 1\n"
        out += "  .amdhsa_float_denorm_mode_32 3\n"
        out += ".end_amdhsa_kernel\n"
        return out


if __name__ == "__main__":
    ap = argparse.ArgumentParser()
    ap.add_argument("-o", default=f"cdna_kernels/{NAME}.s")
    ap.add_argument("--mode", default="split")
    ap.add_argument("--nws", type=int, default=1)
    ap.add_argument("--D", type=int, default=6)
    ap.add_argument("--kpol", default="nt")
    ap.add_argument("--epol", default="")
    ap.add_argument("--rot", type=int, default=0)
    ap.add_argument("--lds", type=int, default=0)
    ap.add_argument("--qmode", default="early")
    ap.add_argument("--eagpr", action="store_true")
    ap.add_argument("--diag", action="store_true")
    ap.add_argument("--vgpr_min", type=int, default=0)
    ap.add_argument("--nocompute", action="store_true")
    ap.add_argument("--noe", action="store_true")
    ap.add_argument("--xmask", type=lambda x: int(x, 0), default=0)
    ap.add_argument("--cumask", type=lambda x: int(x, 0), default=0)
    ap.add_argument("--ts", action="store_true")
    ap.add_argument("--bhxor", type=lambda x: int(x, 0), default=0)
    a = ap.parse_args()
    g = Gen(a.mode, a.nws, a.D, a.kpol, a.epol, a.rot, a.lds, a.qmode, a.eagpr, a.diag, a.vgpr_min,
            a.nocompute, a.noe, a.xmask, a.ts, a.cumask, a.bhxor)
    s = g.build()
    open(a.o, "w").write(s)
    print(f"wrote {a.o}: nv={g.nv} nfv={g.nfv} lds={g.lds} waves={g.nw} lines={len(g.lines)}")
```

```python
import argparse
from gen import HEADER, NAME

S_Q, S_K, S_V, S_E, S_F, S_O, S_DBG, S_WS = 4, 6, 8, 10, 12, 14, 16, 18
SRD_K, SRD_V, SRD_E, SRD_F, SRD_Q, SRD_O, SRD_W = 20, 24, 28, 32, 36, 40, 44
S_P, S_P2, S_PE, S_CNT, S_SEL_LO, S_SEL_HI, S_TMP, S_TMP2 = 48, 49, 50, 51, 52, 53, 54, 55
S_SCALE, S_LOG2E = 56, 57
S_T0, S_T1 = 60, 62


class Gen6:
    def __init__(self, N=22, NB=5, LAGT=4, contig=True, kpol="nt", epol="", diag=False, vgpr_min=0,
                 order="KKVV", epos=8, outpol="", lds=0, weave=True, noe=False, nocompute=False):
        self.noe, self.nocompute = noe, nocompute
        self.N, self.NB, self.LAGT, self.contig = N, NB, LAGT, contig
        self.kpol, self.epol, self.diag, self.order, self.epos = kpol, epol, diag, order, epos
        self.outpol, self.lds, self.weave = outpol, lds, weave
        assert LAGT <= NB - 1
        self.p0 = max(0, 8 + N - 9 * LAGT)
        assert self.p0 <= 7
        self.lines = []
        self.vK, self.vE, self.vQ, self.vO = 1, 2, 3, 4
        self.P = [6, 8]
        self.tmp = [12, 16]
        self.W = 20
        self.X = 24
        r = 36
        self.acc = r; r += 32
        self.tb = []
        for b in range(NB):
            self.tb.append(r); r += 32
        self.eb = []
        for b in range(NB):
            self.eb.append(r); r += 4
        assert r <= 256, r
        self.nv = r
        self.accum_offset = (r + 3) // 4 * 4
        self.nagpr = 32
        self.nfv = max(self.accum_offset + self.nagpr, vgpr_min)
        self.lab = 0
        self.nops = 0
        self.done = -1
        self.opidx = {}

    def e(self, s):
        self.lines.append("    " + s)

    def label(self, s):
        self.lines.append(s + ":")

    def stream(self, tau):
        s = tau // 128
        kind = self.order[s]
        head = self.order[:s].count(kind)
        return s, kind, head

    def wait(self, n):
        self.e(f"s_waitcnt vmcnt({n})")
        self.done = max(self.done, self.nops - n - 1)

    def vmem(self, s):
        self.e(s)
        self.nops += 1

    def load(self, tau, i):
        b = tau % self.NB
        s, kind, head = self.stream(tau)
        srd, esrd = (SRD_K, SRD_E) if kind == "K" else (SRD_V, SRD_F)
        if i == self.epos:
            r = self.eb[b]
            pol = (" " + self.epol) if self.epol else ""
            if not self.noe:
                self.vmem(f"buffer_load_dwordx4 v[{r}:{r+3}], v{self.vE}, s[{esrd}:{esrd+3}], s{S_PE} offen{pol}")
        else:
            k = i if i < self.epos else i - 1
            t = self.tb[b] + 4 * k
            pol = (" " + self.kpol) if self.kpol else ""
            o = k * (1024 if self.contig else 256)
            so = S_P
            if o >= 4096:
                o -= 4096; so = S_P2
            off = f" offset:{o}" if o else ""
            self.vmem(f"buffer_load_dwordx4 v[{t}:{t+3}], v{self.vK}, s[{srd}:{srd+3}], s{so} offen{off}{pol}")
        if i == 8:
            self.opidx[tau] = self.nops - 1
            self.advance(tau)

    def advance(self, tau):
        nxt = tau + 1
        if nxt >= 512:
            return
        if nxt % 128 == 0:
            s, kind, head = self.stream(nxt)
            self.e(f"s_lshl_b32 s{S_P}, s2, 21")
            if head:
                self.e(f"s_add_u32 s{S_P}, s{S_P}, 0x100000")
            self.e(f"s_mov_b32 s{S_PE}, 0")
        else:
            self.e(f"s_add_u32 s{S_P}, s{S_P}, 8192")
            self.e(f"s_add_u32 s{S_PE}, s{S_PE}, 64")
        if self.contig:
            self.e(f"s_add_u32 s{S_P2}, s{S_P}, 4096")

    def groups(self, tau):
        b = tau % self.NB
        s, kind, head = self.stream(tau)
        first = tau % 128 == 0
        t = self.tb[b]
        R = self.eb[b]
        W = self.W if self.contig else R
        G = []
        if self.contig:
            G.append([f"v_perm_b32 v{W}, v{R+2}, v{R}, s{S_SEL_LO}",
                      f"v_perm_b32 v{W+2}, v{R+3}, v{R+1}, s{S_SEL_LO}",
                      f"v_perm_b32 v{W+1}, v{R+2}, v{R}, s{S_SEL_HI}",
                      f"v_perm_b32 v{W+3}, v{R+3}, v{R+1}, s{S_SEL_HI}",
                      f"v_permlane32_swap_b32 v{W}, v{W+2}",
                      "s_nop 0",
                      f"v_permlane32_swap_b32 v{W+1}, v{W+3}",
                      "s_nop 1",
                      f"v_permlane16_swap_b32 v{W}, v{W+1}",
                      f"v_permlane16_swap_b32 v{W+2}, v{W+3}"])

        def perms(ec):
            tm = self.tmp[ec & 1]
            sel = S_SEL_HI if ec & 1 else S_SEL_LO
            c = ec >> 1
            return [f"v_perm_b32 v{tm+m}, v{t+4*(2*m+1)+c}, v{t+4*(2*m)+c}, s{sel}" for m in range(4)]

        def mfma(ec):
            tm = self.tmp[ec & 1]
            a = self.acc + 4 * ec
            x, y = f"v[{tm}:{tm+3}]", f"v[{W}:{W+3}]"
            c = "0" if first else f"v[{a}:{a+3}]"
            if kind == "K":
                return f"v_mfma_f32_16x16x32_bf16 v[{a}:{a+3}], {x}, {y}, {c}"
            return f"v_mfma_f32_16x16x32_bf16 v[{a}:{a+3}], {y}, {x}, {c}"
        G.append(perms(0))
        for ec in range(1, 8):
            G.append(perms(ec) + [mfma(ec - 1)])
        G.append(["s_nop 0", mfma(7)])
        if self.nocompute:
            return [[] for g in G]
        return G

    def xlane(self, op, a, b):
        return [f"v_mov_b32 v{b}, v{a}", "s_nop 1", f"v_permlane16_swap_b32 v{a}, v{b}", "s_nop 1",
                f"{op} v{a}, v{a}, v{b}",
                f"v_mov_b32 v{b}, v{a}", "s_nop 1", f"v_permlane32_swap_b32 v{a}, v{b}", "s_nop 1",
                f"{op} v{a}, v{a}, v{b}"]

    def k_epilogue(self, head):
        acc, X = self.acc, self.X
        S = X
        A = [X + 4, X + 8]
        p1 = ["s_nop 7"]
        for g in range(4):
            a = A[g & 1]
            for m in range(4):
                p1.append(f"v_cvt_pk_bf16_f32 v{a+m}, v{acc+4*(2*m)+g}, v{acc+4*(2*m+1)+g}")
            p1.append("s_nop 1")
            q = 16 * head + 4 * g
            c = "0" if g == 0 else f"v[{S}:{S+3}]"
            p1.append(f"v_mfma_f32_16x16x32_bf16 v[{S}:{S+3}], v[{a}:{a+3}], a[{q}:{q+3}], {c}")
        x = X + 4
        p2 = ["s_nop 7",
              f"v_cvt_pk_bf16_f32 v{x+4}, v{S}, v{S+1}", f"v_cvt_pk_bf16_f32 v{x+5}, v{S+2}, v{S+3}"]
        unpack = [f"v_lshlrev_b32 v{x+0}, 16, v{x+4}", f"v_and_b32 v{x+1}, 0xffff0000, v{x+4}",
                  f"v_lshlrev_b32 v{x+2}, 16, v{x+5}", f"v_and_b32 v{x+3}, 0xffff0000, v{x+5}"]
        p2 += unpack
        p2 += [f"v_mul_f32 v{x+i}, s{S_SCALE}, v{x+i}" for i in range(4)]
        p2 += [f"v_cvt_pk_bf16_f32 v{x+4}, v{x}, v{x+1}", f"v_cvt_pk_bf16_f32 v{x+5}, v{x+2}, v{x+3}"]
        p2 += unpack
        p2 += [f"v_max3_f32 v{x+6}, v{x}, v{x+1}, v{x+2}", f"v_max_f32 v{x+6}, v{x+6}, v{x+3}"]
        p2 += self.xlane("v_max_f32", x + 6, x + 7)
        p2 += [f"v_sub_f32 v{x+i}, v{x+i}, v{x+6}" for i in range(4)]
        p2 += [f"v_mul_f32 v{x+i}, s{S_LOG2E}, v{x+i}" for i in range(4)]
        p2 += [f"v_exp_f32 v{x+i}, v{x+i}" for i in range(4)]
        p2 += ["s_nop 0", f"v_add_f32 v{x+6}, v{x}, v{x+1}", f"v_add_f32 v{x+7}, v{x+2}, v{x+3}",
               f"v_add_f32 v{x+6}, v{x+6}, v{x+7}"]
        p2 += self.xlane("v_add_f32", x + 6, x + 7)
        p2 += [f"v_rcp_f32 v{x+6}, v{x+6}", "s_nop 0"]
        p2 += [f"v_mul_f32 v{x+i}, v{x+i}, v{x+6}" for i in range(4)]
        P = self.P[head]
        p2 += [f"v_cvt_pk_bf16_f32 v{P}, v{x}, v{x+1}", f"v_cvt_pk_bf16_f32 v{P+1}, v{x+2}, v{x+3}"]
        return p1, p2

    def v_epilogue(self, head):
        acc, X, P = self.acc, self.X, self.P[head]
        p1 = ["s_nop 7"]
        for ec in range(8):
            a = acc + 4 * ec
            p1.append(f"v_cvt_pk_bf16_f32 v{a}, v{a}, v{a+1}")
            p1.append(f"v_cvt_pk_bf16_f32 v{a+1}, v{a+2}, v{a+3}")
        p1.append("s_nop 1")
        dst = {}
        for ec in range(8):
            a = acc + 4 * ec
            d = X if ec == 0 else acc + 4 * (ec - 1)
            dst[ec] = d
            p1.append(f"v_mfma_f32_16x16x16_bf16 v[{d}:{d+3}], v[{P}:{P+1}], v[{a}:{a+1}], 0")
        p1.append("s_nop 7")
        o = X + 4
        for m in range(4):
            p1.append(f"v_cvt_pk_bf16_f32 v{o+m}, v{dst[2*m]}, v{dst[2*m+1]}")
        off = " offset:1024" if head else ""
        pol = (" " + self.outpol) if self.outpol else ""
        p2 = [f"buffer_store_dwordx4 v[{o}:{o+3}], v{self.vO}, s[{SRD_O}:{SRD_O+3}], 0 offen{off}{pol}"]
        return p1, p2

    def emit(self, ins):
        for s in ins:
            if s.startswith("buffer_"):
                self.vmem(s)
            else:
                self.e(s)

    def need(self, tau):
        if self.noe:
            return
        assert self.opidx[tau] <= self.done, (tau, self.opidx[tau], self.done)

    def tile_slots(self, tau, check=True):
        c = tau - self.LAGT
        plan = [[] for _ in range(9)]
        if c >= 0:
            G = self.groups(c)
            ns = 9 - self.p0
            for k, g in enumerate(G):
                plan[self.p0 + k * ns // len(G)] += g
            if c % 128 == 127:
                s, kind, head = self.stream(c)
                p1, p2 = self.k_epilogue(head) if kind == "K" else self.v_epilogue(head)
                plan[8] += p1
                self.pending = p2
        for i in range(9):
            if not (self.noe and i == self.epos):
                self.wait(self.N - 1)
            self.load(tau, i)
            if plan[i]:
                if check:
                    self.need(c)
                self.emit(plan[i])
            if self.pending and not (c >= 0 and c % 128 == 127):
                n = len(self.pending) if not self.weave else self.cut(self.pending, 8)
                self.emit(self.pending[:n])
                self.pending = self.pending[n:]

    @staticmethod
    def cut(ins, n):
        return min(n, len(ins))

    def srd(self, d, ptr, offreg, nrec):
        if offreg is None:
            self.e(f"s_mov_b32 s{d}, s{ptr}")
            self.e(f"s_mov_b32 s{d+1}, s{ptr+1}")
        else:
            self.e(f"s_add_u32 s{d}, s{ptr}, s{offreg}")
            self.e(f"s_addc_u32 s{d+1}, s{ptr+1}, 0")
        self.e(f"s_mov_b32 s{d+2}, {nrec:#x}")
        self.e(f"s_mov_b32 s{d+3}, 0x20000")

    def build(self):
        e = self.e
        NB, LAGT, N = self.NB, self.LAGT, self.N
        self.pending = []
        first_kind = self.order[0]
        fs, fe = (SRD_K, SRD_E) if first_kind == "K" else (SRD_V, SRD_F)
        fp, fq = (S_K, S_E) if first_kind == "K" else (S_V, S_F)
        e("s_cmp_ge_u32 s2, 256")
        e("s_cbranch_scc1 L_end")
        e("s_load_dwordx16 s[4:19], s[0:1], 0")
        if self.diag:
            e(f"s_memrealtime s[{S_T0}:{S_T0+1}]")
        t0, t1 = self.X, self.X + 1
        e(f"v_and_b32 v{t0}, 15, v0")
        e(f"v_lshrrev_b32 v{t1}, 4, v0")
        if self.contig:
            e(f"v_lshlrev_b32 v{self.vK}, 4, v0")
        else:
            e(f"v_lshlrev_b32 v{self.vK}, 4, v{t0}")
            e(f"v_lshl_add_u32 v{self.vK}, v{t1}, 11, v{self.vK}")
        e(f"v_lshlrev_b32 v{self.vE}, 13, v{t0}")
        e(f"v_lshl_add_u32 v{self.vE}, v{t1}, 4, v{self.vE}")
        e(f"s_lshl_b32 s{S_P}, s2, 21")
        e(f"s_add_u32 s{S_P2}, s{S_P}, 4096")
        e(f"s_mov_b32 s{S_PE}, 0")
        e(f"s_mov_b32 s{fs+2}, 0x20000000")
        e(f"s_mov_b32 s{fs+3}, 0x20000")
        e(f"s_mov_b32 s{fe+2}, 0x20000")
        e(f"s_mov_b32 s{fe+3}, 0x20000")
        e("s_waitcnt lgkmcnt(0)")
        e(f"s_mov_b32 s{fs}, s{fp}")
        e(f"s_mov_b32 s{fs+1}, s{fp+1}")
        e(f"s_mov_b32 s{fe}, s{fq}")
        e(f"s_mov_b32 s{fe+1}, s{fq+1}")
        n0 = 0
        tau = 0
        while n0 + 9 <= N:
            for i in range(9):
                self.load(tau, i)
            n0 += 9
            tau += 1
        e(f"v_lshrrev_b32 v{self.vQ}, 2, v{t0}")
        e(f"v_lshlrev_b32 v{self.vQ}, 8, v{self.vQ}")
        e(f"v_lshl_add_u32 v{self.vQ}, v{t1}, 6, v{self.vQ}")
        e(f"v_lshlrev_b32 v{self.vO}, 4, v0")
        e(f"s_mov_b32 s{S_SEL_LO}, 0x05040100")
        e(f"s_mov_b32 s{S_SEL_HI}, 0x07060302")
        e(f"s_mov_b32 s{S_SCALE}, 0x3db504f3")
        e(f"s_mov_b32 s{S_LOG2E}, 0x3fb8aa3b")
        if first_kind == "K":
            self.srd(SRD_V, S_V, None, 0x20000000)
            self.srd(SRD_F, S_F, None, 0x20000)
        else:
            self.srd(SRD_K, S_K, None, 0x20000000)
            self.srd(SRD_E, S_E, None, 0x20000)
        e(f"s_lshl_b32 s{S_TMP}, s2, 11")
        self.srd(SRD_Q, S_Q, S_TMP, 0x800)
        self.srd(SRD_O, S_O, S_TMP, 0x800)
        if self.diag:
            self.srd(SRD_W, S_WS, None, 0x1000000)
        qdone = False
        while tau < 512:
            s = tau // 128
            lo = 128 * s + LAGT + 1
            hi = 128 * s + 128
            steady = tau >= lo and not self.pending
            left = hi - tau
            if steady and left >= 2 * NB and (qdone or s > 0):
                nl = left // NB
                self.lab += 1
                L = f"L_loop{self.lab}"
                e(f"s_mov_b32 s{S_CNT}, {nl}")
                self.label(L)
                body_tiles = list(range(tau, tau + NB))
                end_switch = (tau + nl * NB) == hi
                for t in body_tiles:
                    self.tile_slots(t)
                e(f"s_sub_u32 s{S_CNT}, s{S_CNT}, 1")
                e(f"s_cmp_lg_u32 s{S_CNT}, 0")
                e(f"s_cbranch_scc1 {L}")
                skip = (nl - 1) * NB
                for t in range(tau + NB, tau + nl * NB):
                    self.opidx[t] = self.opidx[t - NB] + 9 * NB
                self.nops += 9 * skip
                self.done += 9 * skip
                tau += nl * NB
                if end_switch:
                    self.advance(tau - 1)
                continue
            self.tile_slots(tau)
            if tau == LAGT + 1 and not qdone:
                for h in range(2):
                    for g in range(4):
                        q = 16 * h + 4 * g
                        self.wait(N - 1)
                        self.vmem(f"buffer_load_dwordx4 a[{q}:{q+3}], v{self.vQ}, s[{SRD_Q}:{SRD_Q+3}], 0 offen offset:{h*1024+g*16}")
                qdone = True
            tau += 1
        assert not self.pending
        for c in range(512 - LAGT, 512):
            n = self.nops - 1 - self.opidx[c]
            if self.noe:
                n = min(n, 8 * (511 - c)); self.done = -1
            if self.opidx[c] > self.done:
                self.wait(n)
            for g in self.groups(c):
                self.emit(g)
        s, kind, head = self.stream(511)
        p1, p2 = self.v_epilogue(head)
        self.emit(p1 + p2)
        if self.diag:
            e("s_waitcnt vmcnt(0)")
            e(f"s_memrealtime s[{S_T1}:{S_T1+1}]")
            e(f"s_getreg_b32 s{S_TMP2}, hwreg(HW_REG_XCC_ID)")
            e(f"s_and_b32 s{S_TMP2}, s{S_TMP2}, 15")
            e(f"s_lshl_b32 s{S_TMP}, s2, 4")
            e("s_waitcnt lgkmcnt(0)")
            o = self.tmp[1]
            e(f"v_mov_b32 v{o}, s{S_T0}")
            e(f"v_mov_b32 v{o+1}, s{S_T1}")
            e(f"v_mov_b32 v{o+2}, s{S_TMP2}")
            e(f"v_mov_b32 v{o+3}, 0")
            e(f"v_mov_b32 v{t0}, s{S_TMP}")
            e("s_mov_b64 exec, 1")
            e(f"buffer_store_dwordx4 v[{o}:{o+3}], v{t0}, s[{SRD_W}:{SRD_W+3}], 0 offen")
        self.label("L_end")
        e("s_endpgm")

        out = HEADER
        out += f"; @launch grid=(256,1,1) block=(64,1,1) lds={self.lds}\n"
        out += '.amdgcn_target "amdgcn-amd-amdhsa--gfx950"\n.text\n'
        out += f".globl {NAME}_kernel\n.p2align 8\n.type {NAME}_kernel,@function\n{NAME}_kernel:\n"
        out += "\n".join(self.lines) + "\n"
        out += '.section .rodata,"a"\n.p2align 6\n'
        out += f".amdhsa_kernel {NAME}_kernel\n"
        out += f"  .amdhsa_next_free_vgpr {self.nfv}\n"
        out += f"  .amdhsa_next_free_sgpr 64\n"
        out += f"  .amdhsa_accum_offset {self.accum_offset}\n"
        out += "  .amdhsa_group_segment_fixed_size 0\n  .amdhsa_kernarg_size 64\n"
        out += "  .amdhsa_user_sgpr_count 2\n  .amdhsa_user_sgpr_kernarg_segment_ptr 1\n"
        out += "  .amdhsa_system_sgpr_workgroup_id_x 1\n"
        out += "  .amdhsa_float_denorm_mode_32 3\n"
        out += ".end_amdhsa_kernel\n"
        return out


if __name__ == "__main__":
    ap = argparse.ArgumentParser()
    ap.add_argument("-o", default=f"cdna_kernels/{NAME}.s")
    ap.add_argument("--N", type=int, default=22)
    ap.add_argument("--NB", type=int, default=5)
    ap.add_argument("--LAGT", type=int, default=4)
    ap.add_argument("--nocontig", action="store_true")
    ap.add_argument("--kpol", default="nt")
    ap.add_argument("--epol", default="")
    ap.add_argument("--outpol", default="")
    ap.add_argument("--order", default="KKVV")
    ap.add_argument("--epos", type=int, default=8)
    ap.add_argument("--diag", action="store_true")
    ap.add_argument("--vgpr_min", type=int, default=0)
    ap.add_argument("--lds", type=int, default=0)
    ap.add_argument("--noe", action="store_true")
    ap.add_argument("--nocompute", action="store_true")
    a = ap.parse_args()
    g = Gen6(a.N, a.NB, a.LAGT, not a.nocontig, a.kpol, a.epol, a.diag, a.vgpr_min, a.order, a.epos,
             a.outpol, a.lds, True, a.noe, a.nocompute)
    s = g.build()
    open(a.o, "w").write(s)
    print(f"wrote {a.o}: nv={g.nv} nfv={g.nfv} p0={g.p0} lines={len(g.lines)}")
```

```python
import argparse
from gen import HEADER, NAME

S_Q, S_K, S_V, S_E, S_F, S_O, S_DBG, S_WS = 4, 6, 8, 10, 12, 14, 16, 18
SRD_K, SRD_V, SRD_E, SRD_F, SRD_Q, SRD_O, SRD_W = 20, 24, 28, 32, 36, 40, 44
S_P, S_P2, S_CNT, S_SEL_LO, S_SEL_HI, S_TMP, S_TMP2 = 48, 49, 51, 52, 53, 54, 55
S_SCALE, S_LOG2E = 56, 57
S_PC, S_PO = 58, 59
S_T0, S_T1 = 60, 62
S_ROT = 50
ROWB = 8192 + 16
LDS_BYTES = 16 * ROWB


class Gen8:
    def __init__(self, N9=23, N8=20, NB=5, LAGT=4, kpol="nt", epol="", diag=False, outpol="", warm=2,
                 rot=False, NEND=0, REND=0, N0=40, nocompute=False, NST=42):
        self.NST = NST
        self.N9, self.N8, self.NB, self.LAGT = N9, N8, NB, LAGT
        self.kpol, self.epol, self.diag, self.outpol, self.warm = kpol, epol, diag, outpol, warm
        self.rot, self.NEND, self.REND, self.N0, self.nocompute = rot, NEND, REND, N0, nocompute
        self.order = "KKVV"
        assert LAGT <= NB - 1
        self.lines = []
        self.vK, self.vE, self.vQ, self.vE0 = 1, 2, 3, 4
        self.P = [6, 8]
        self.tmp = [12, 16]
        self.W = 20
        self.X = 24
        self.R = 36
        r = 40
        self.acc = r; r += 32
        self.tb = []
        for b in range(NB):
            self.tb.append(r); r += 32
        assert r <= 256, r
        self.nv = r
        self.accum_offset = (r + 3) // 4 * 4
        self.nagpr = 48 if warm else 32
        self.nfv = self.accum_offset + self.nagpr
        self.lab = 0
        self.nops = 0
        self.done = -1
        self.opidx = {}
        self.pieceidx = {}
        self.F0 = 128 + 16 + LAGT

    def e(self, s):
        self.lines.append("    " + s)

    def label(self, s):
        self.lines.append(s + ":")

    def stream(self, tau):
        s = tau // 128
        kind = self.order[s]
        return s, kind, self.order[:s].count(kind)

    def piece_of(self, tau):
        if tau < 112:
            return ("E", 16 + tau)
        if self.F0 <= tau < self.F0 + 128:
            return ("F", tau - self.F0)
        return None

    def window(self, tau):
        if tau == 2:
            return self.NST
        if self.REND and tau >= 512 - self.REND:
            return self.NEND
        return self.N9 if self.piece_of(tau) else self.N8

    def wait(self, n):
        self.e(f"s_waitcnt vmcnt({n})")
        self.done = max(self.done, self.nops - n - 1)

    def vmem(self, s):
        self.e(s)
        self.nops += 1

    def piece_setup(self):
        e = self.e
        if self.rot:
            e(f"s_add_u32 s{S_TMP}, s{S_PC}, s{S_ROT}")
            e(f"s_and_b32 s{S_TMP}, s{S_TMP}, 15")
        else:
            e(f"s_and_b32 s{S_TMP}, s{S_PC}, 15")
        e(f"s_lshr_b32 s{S_TMP2}, s{S_PC}, 4")
        e(f"s_lshl_b32 s{S_TMP2}, s{S_TMP2}, 10")
        e(f"s_lshl_b32 s{S_PO}, s{S_TMP}, 13")
        e(f"s_add_u32 s{S_PO}, s{S_PO}, s{S_TMP2}")
        e(f"s_mul_i32 s{S_TMP}, s{S_TMP}, {ROWB}")
        e(f"s_add_u32 m0, s{S_TMP}, s{S_TMP2}")
        e(f"s_add_u32 s{S_PC}, s{S_PC}, 1")

    def piece(self, which, p):
        srd = SRD_E if which == "E" else SRD_F
        pol = (" " + self.epol) if self.epol else ""
        self.vmem(f"buffer_load_dwordx4 v{self.vK}, s[{srd}:{srd+3}], s{S_PO} offen lds{pol}")
        if p % 16 == 15:
            self.pieceidx[(which, p // 16)] = self.nops - 1

    def kload(self, tau, k):
        b = tau % self.NB
        s, kind, head = self.stream(tau)
        srd = SRD_K if kind == "K" else SRD_V
        t = self.tb[b] + 4 * k
        pol = (" " + self.kpol) if self.kpol else ""
        o, so = k * 1024, S_P
        if o >= 4096:
            o -= 4096; so = S_P2
        off = f" offset:{o}" if o else ""
        self.vmem(f"buffer_load_dwordx4 v[{t}:{t+3}], v{self.vK}, s[{srd}:{srd+3}], s{so} offen{off}{pol}")
        if k == 7:
            self.opidx[tau] = self.nops - 1
            self.advance(tau)

    def advance(self, tau):
        nxt = tau + 1
        if nxt >= 512:
            return
        if nxt % 128 == 0:
            s, kind, head = self.stream(nxt)
            self.e(f"s_lshl_b32 s{S_P}, s2, 21")
            if head:
                self.e(f"s_add_u32 s{S_P}, s{S_P}, 0x100000")
        else:
            self.e(f"s_add_u32 s{S_P}, s{S_P}, 8192")
        self.e(f"s_add_u32 s{S_P2}, s{S_P}, 4096")

    def dsread(self, c):
        R = self.R
        if c % 128 == 0:
            adv = f"v_mov_b32 v{self.vE}, v{self.vE0}"
        else:
            adv = f"v_add_u32 v{self.vE}, 64, v{self.vE}"
        return [adv, f"ds_read_b128 v[{R}:{R+3}], v{self.vE}"]

    def groups(self, c):
        b = c % self.NB
        s, kind, head = self.stream(c)
        first = c % 128 == 0
        t, R, W = self.tb[b], self.R, self.W
        g0 = ["s_waitcnt lgkmcnt(0)",
              f"v_perm_b32 v{W}, v{R+2}, v{R}, s{S_SEL_LO}",
              f"v_perm_b32 v{W+2}, v{R+3}, v{R+1}, s{S_SEL_LO}",
              f"v_perm_b32 v{W+1}, v{R+2}, v{R}, s{S_SEL_HI}",
              f"v_perm_b32 v{W+3}, v{R+3}, v{R+1}, s{S_SEL_HI}",
              f"v_permlane32_swap_b32 v{W}, v{W+2}"]
        nx = self.dsread(c + 1) if c + 1 < 512 else ["s_nop 0", "s_nop 0"]
        g0 += [nx[0], f"v_permlane32_swap_b32 v{W+1}, v{W+3}", nx[1], "s_nop 0",
               f"v_permlane16_swap_b32 v{W}, v{W+1}",
               f"v_permlane16_swap_b32 v{W+2}, v{W+3}"]
        G = [g0]

        def perms(ec):
            tm = self.tmp[ec & 1]
            sel = S_SEL_HI if ec & 1 else S_SEL_LO
            cc = ec >> 1
            return [f"v_perm_b32 v{tm+m}, v{t+4*(2*m+1)+cc}, v{t+4*(2*m)+cc}, s{sel}" for m in range(4)]

        def mfma(ec):
            tm = self.tmp[ec & 1]
            a = self.acc + 4 * ec
            x, y = f"v[{tm}:{tm+3}]", f"v[{W}:{W+3}]"
            cin = "0" if first else f"v[{a}:{a+3}]"
            if kind == "K":
                return f"v_mfma_f32_16x16x32_bf16 v[{a}:{a+3}], {x}, {y}, {cin}"
            return f"v_mfma_f32_16x16x32_bf16 v[{a}:{a+3}], {y}, {x}, {cin}"
        G.append(perms(0))
        for ec in range(1, 8):
            G.append(perms(ec) + [mfma(ec - 1)])
        G.append(["s_nop 0", mfma(7)])
        if self.nocompute:
            return [[] for g in G]
        return G

    def xlane(self, op, a, b):
        return [f"v_mov_b32 v{b}, v{a}", "s_nop 1", f"v_permlane16_swap_b32 v{a}, v{b}", "s_nop 1",
                f"{op} v{a}, v{a}, v{b}",
                f"v_mov_b32 v{b}, v{a}", "s_nop 1", f"v_permlane32_swap_b32 v{a}, v{b}", "s_nop 1",
                f"{op} v{a}, v{a}, v{b}"]

    def k_epilogue(self, head):
        acc, X = self.acc, self.X
        S = X
        A = [X + 4, X + 8]
        p1 = ["s_nop 7"]
        for g in range(4):
            a = A[g & 1]
            for m in range(4):
                p1.append(f"v_cvt_pk_bf16_f32 v{a+m}, v{acc+4*(2*m)+g}, v{acc+4*(2*m+1)+g}")
            p1.append("s_nop 1")
            q = 16 * head + 4 * g
            c = "0" if g == 0 else f"v[{S}:{S+3}]"
            p1.append(f"v_mfma_f32_16x16x32_bf16 v[{S}:{S+3}], v[{a}:{a+3}], a[{q}:{q+3}], {c}")
        x = X + 4
        p2 = ["s_nop 7",
              f"v_cvt_pk_bf16_f32 v{x+4}, v{S}, v{S+1}", f"v_cvt_pk_bf16_f32 v{x+5}, v{S+2}, v{S+3}"]
        unpack = [f"v_lshlrev_b32 v{x+0}, 16, v{x+4}", f"v_and_b32 v{x+1}, 0xffff0000, v{x+4}",
                  f"v_lshlrev_b32 v{x+2}, 16, v{x+5}", f"v_and_b32 v{x+3}, 0xffff0000, v{x+5}"]
        p2 += unpack
        p2 += [f"v_mul_f32 v{x+i}, s{S_SCALE}, v{x+i}" for i in range(4)]
        p2 += [f"v_cvt_pk_bf16_f32 v{x+4}, v{x}, v{x+1}", f"v_cvt_pk_bf16_f32 v{x+5}, v{x+2}, v{x+3}"]
        p2 += unpack
        p2 += [f"v_max3_f32 v{x+6}, v{x}, v{x+1}, v{x+2}", f"v_max_f32 v{x+6}, v{x+6}, v{x+3}"]
        p2 += self.xlane("v_max_f32", x + 6, x + 7)
        p2 += [f"v_sub_f32 v{x+i}, v{x+i}, v{x+6}" for i in range(4)]
        p2 += [f"v_mul_f32 v{x+i}, s{S_LOG2E}, v{x+i}" for i in range(4)]
        p2 += [f"v_exp_f32 v{x+i}, v{x+i}" for i in range(4)]
        p2 += ["s_nop 0", f"v_add_f32 v{x+6}, v{x}, v{x+1}", f"v_add_f32 v{x+7}, v{x+2}, v{x+3}",
               f"v_add_f32 v{x+6}, v{x+6}, v{x+7}"]
        p2 += self.xlane("v_add_f32", x + 6, x + 7)
        p2 += [f"v_rcp_f32 v{x+6}, v{x+6}", "s_nop 0"]
        p2 += [f"v_mul_f32 v{x+i}, v{x+i}, v{x+6}" for i in range(4)]
        P = self.P[head]
        p2 += [f"v_cvt_pk_bf16_f32 v{P}, v{x}, v{x+1}", f"v_cvt_pk_bf16_f32 v{P+1}, v{x+2}, v{x+3}"]
        return p1, p2

    def v_epilogue(self, head):
        acc, X, P = self.acc, self.X, self.P[head]
        p1 = ["s_nop 7"]
        for ec in range(8):
            a = acc + 4 * ec
            p1.append(f"v_cvt_pk_bf16_f32 v{a}, v{a}, v{a+1}")
            p1.append(f"v_cvt_pk_bf16_f32 v{a+1}, v{a+2}, v{a+3}")
        p1.append("s_nop 1")
        dst = {}
        for ec in range(8):
            a = acc + 4 * ec
            d = X if ec == 0 else acc + 4 * (ec - 1)
            dst[ec] = d
            p1.append(f"v_mfma_f32_16x16x16_bf16 v[{d}:{d+3}], v[{P}:{P+1}], v[{a}:{a+1}], 0")
        p1.append("s_nop 7")
        o = X + 4
        for m in range(4):
            p1.append(f"v_cvt_pk_bf16_f32 v{o+m}, v{dst[2*m]}, v{dst[2*m+1]}")
        off = " offset:1024" if head else ""
        pol = (" " + self.outpol) if self.outpol else ""
        p2 = [f"buffer_store_dwordx4 v[{o}:{o+3}], v{self.vK}, s[{SRD_O}:{SRD_O+3}], 0 offen{off}{pol}"]
        return p1, p2

    def emit(self, ins):
        for s in ins:
            if s.startswith("buffer_"):
                self.vmem(s)
            else:
                self.e(s)

    def need(self, c):
        assert self.opidx[c] <= self.done, ("tile", c, self.opidx[c], self.done)
        n = c + 1
        if n < 512:
            key = ("E" if n < 256 else "F", (n % 128) // 16)
            assert self.pieceidx[key] <= self.done, ("piece", c, key, self.pieceidx[key], self.done)

    def sig(self, tau):
        c = tau - self.LAGT
        special = c < 1 or c % 128 in (0, 127) or tau % 128 == 127 or tau in self.extras
        pc = self.piece_of(tau)
        return (None if special else (tau // 128, c // 128, pc[0] if pc else None, self.window(tau)))

    def tile_slots(self, tau):
        c = tau - self.LAGT
        pc = self.piece_of(tau)
        N = self.window(tau)
        ns = 9 if pc else 8
        p0 = max(0, ns - 1 + N - ns * self.LAGT)
        plan = [[] for _ in range(ns)]
        last = c >= 0 and c % 128 == 127
        if c >= 0:
            G = self.groups(c)
            if c == 0:
                G[0] = self.dsread(0) + G[0]
            for k, g in enumerate(G):
                plan[p0 + k * (ns - p0) // len(G)] += g
            if last:
                s, kind, head = self.stream(c)
                p1, p2 = self.k_epilogue(head) if kind == "K" else self.v_epilogue(head)
                plan[ns - 1] += p1
                self.pending = p2
        for i in range(ns):
            if pc and i == 0:
                self.piece_setup()
                self.wait(N - 1)
                self.piece(*pc)
            else:
                self.wait(N - 1)
                self.kload(tau, i - (1 if pc else 0))
            if plan[i]:
                if c == 0 and i == p0:
                    idx = self.pieceidx[("E", 0)]
                    if idx > self.done:
                        self.wait(self.nops - 1 - idx)
                self.need(c)
                self.emit(plan[i])
            if self.pending and not last:
                self.emit(self.pending[:8])
                self.pending = self.pending[8:]

    def srd(self, d, ptr, offreg, nrec):
        if offreg is None:
            self.e(f"s_mov_b32 s{d}, s{ptr}")
            self.e(f"s_mov_b32 s{d+1}, s{ptr+1}")
        else:
            self.e(f"s_add_u32 s{d}, s{ptr}, s{offreg}")
            self.e(f"s_addc_u32 s{d+1}, s{ptr+1}, 0")
        self.e(f"s_mov_b32 s{d+2}, {nrec:#x}")
        self.e(f"s_mov_b32 s{d+3}, 0x20000")

    def warmup(self, srd, N):
        e = self.e
        e(f"s_lshr_b32 s{S_TMP}, s2, 3")
        e(f"s_lshl_b32 s{S_TMP}, s{S_TMP}, 12")
        for i in range(4):
            self.wait(N - 1)
            off = f" offset:{i*1024}" if i else ""
            self.vmem(f"buffer_load_dwordx4 a[{32+4*i}:{35+4*i}], v{self.vK}, s[{srd}:{srd+3}], s{S_TMP} offen{off}")

    def build(self):
        e = self.e
        NB, LAGT = self.NB, self.LAGT
        self.pending = []
        QT = LAGT + 1
        WT = 128 + LAGT
        self.extras = {QT, WT}
        e("s_cmp_ge_u32 s2, 256")
        e("s_cbranch_scc1 L_end")
        e("s_load_dwordx16 s[4:19], s[0:1], 0")
        if self.diag:
            e(f"s_memrealtime s[{S_T0}:{S_T0+1}]")
        t0, t1 = self.X, self.X + 1
        e(f"v_lshlrev_b32 v{self.vK}, 4, v0")
        e(f"s_lshl_b32 s{S_P}, s2, 21")
        e(f"s_add_u32 s{S_P2}, s{S_P}, 4096")
        e(f"s_mov_b32 s{SRD_K+2}, 0x20000000")
        e(f"s_mov_b32 s{SRD_K+3}, 0x20000")
        e(f"s_mov_b32 s{SRD_E+2}, 0x20000")
        e(f"s_mov_b32 s{SRD_E+3}, 0x20000")
        e(f"s_mov_b32 s{S_PO}, 0")
        e("s_mov_b32 m0, 0")
        e("s_waitcnt lgkmcnt(0)")
        e(f"s_mov_b32 s{SRD_K}, s{S_K}")
        e(f"s_mov_b32 s{SRD_K+1}, s{S_K+1}")
        e(f"s_mov_b32 s{SRD_E}, s{S_E}")
        e(f"s_mov_b32 s{SRD_E+1}, s{S_E+1}")
        for k in range(8):
            self.kload(0, k)
        for p in range(16):
            self.piece("E", p)
            if p < 15:
                e(f"s_add_u32 s{S_PO}, s{S_PO}, 8192")
                e(f"s_add_u32 m0, m0, {ROWB}")
                e("s_nop 0")
        for k in range(8):
            self.kload(1, k)
        e(f"s_mov_b32 s{S_PC}, 16")
        e(f"s_lshr_b32 s{S_ROT}, s2, 3")
        for tau in range(2):
            self.piece_setup()
            e("s_nop 0")
            self.piece(*self.piece_of(tau))
        e(f"v_and_b32 v{t0}, 15, v0")
        e(f"v_lshrrev_b32 v{t1}, 4, v0")
        e(f"v_mul_u32_u24 v{self.vE0}, {ROWB}, v{t0}")
        e(f"v_lshl_add_u32 v{self.vE0}, v{t1}, 4, v{self.vE0}")
        e(f"v_lshrrev_b32 v{self.vQ}, 2, v{t0}")
        e(f"v_lshlrev_b32 v{self.vQ}, 8, v{self.vQ}")
        e(f"v_lshl_add_u32 v{self.vQ}, v{t1}, 6, v{self.vQ}")
        e(f"s_mov_b32 s{S_SEL_LO}, 0x05040100")
        e(f"s_mov_b32 s{S_SEL_HI}, 0x07060302")
        e(f"s_mov_b32 s{S_SCALE}, 0x3db504f3")
        e(f"s_mov_b32 s{S_LOG2E}, 0x3fb8aa3b")
        self.srd(SRD_V, S_V, None, 0x20000000)
        self.srd(SRD_F, S_F, None, 0x20000)
        e(f"s_lshl_b32 s{S_TMP}, s2, 11")
        self.srd(SRD_Q, S_Q, S_TMP, 0x800)
        self.srd(SRD_O, S_O, S_TMP, 0x800)
        if self.diag:
            self.srd(SRD_W, S_WS, None, 0x1000000)
        if self.warm:
            self.warmup(SRD_E, self.N0)
        if self.warm == 1:
            self.warmup(SRD_F, self.N0)
        tau = 2
        while tau < 512:
            sg = self.sig(tau)
            run = 0
            if sg is not None and not self.pending:
                while tau + run < 512 and self.sig(tau + run) == sg:
                    run += 1
            if run >= 2 * NB:
                nl = run // NB
                self.lab += 1
                L = f"L_loop{self.lab}"
                e(f"s_mov_b32 s{S_CNT}, {nl}")
                self.label(L)
                n_before = self.nops
                for t in range(tau, tau + NB):
                    self.tile_slots(t)
                per = self.nops - n_before
                e(f"s_sub_u32 s{S_CNT}, s{S_CNT}, 1")
                e(f"s_cmp_lg_u32 s{S_CNT}, 0")
                e(f"s_cbranch_scc1 {L}")
                keep = self.lines
                self.lines = []
                for t in range(tau + NB, tau + nl * NB):
                    self.tile_slots(t)
                self.lines = keep
                tau += nl * NB
                continue
            N = self.window(tau)
            self.tile_slots(tau)
            if tau == QT:
                for h in range(2):
                    for g in range(4):
                        q = 16 * h + 4 * g
                        self.wait(N - 1)
                        self.vmem(f"buffer_load_dwordx4 a[{q}:{q+3}], v{self.vQ}, s[{SRD_Q}:{SRD_Q+3}], 0 offen offset:{h*1024+g*16}")
            if tau == WT:
                e(f"s_mov_b32 s{S_PC}, 0")
            if tau == WT and self.warm == 2:
                self.warmup(SRD_F, N)
            tau += 1
        assert not self.pending
        for c in range(512 - LAGT, 512):
            if self.opidx[c] > self.done:
                self.wait(self.nops - 1 - self.opidx[c])
            self.need(c)
            for g in self.groups(c):
                self.emit(g)
        p1, p2 = self.v_epilogue(1)
        self.emit(p1 + p2)
        if self.diag:
            e("s_waitcnt vmcnt(0)")
            e(f"s_memrealtime s[{S_T1}:{S_T1+1}]")
            e(f"s_getreg_b32 s{S_TMP2}, hwreg(HW_REG_XCC_ID)")
            e(f"s_and_b32 s{S_TMP2}, s{S_TMP2}, 15")
            e(f"s_lshl_b32 s{S_TMP}, s2, 4")
            e("s_waitcnt lgkmcnt(0)")
            o = self.tmp[1]
            e(f"v_mov_b32 v{o}, s{S_T0}")
            e(f"v_mov_b32 v{o+1}, s{S_T1}")
            e(f"v_mov_b32 v{o+2}, s{S_TMP2}")
            e(f"s_getreg_b32 s{S_CNT}, hwreg(HW_REG_HW_ID)")
            e(f"v_mov_b32 v{o+3}, s{S_CNT}")
            e(f"v_mov_b32 v{t0}, s{S_TMP}")
            e("s_mov_b64 exec, 1")
            e(f"buffer_store_dwordx4 v[{o}:{o+3}], v{t0}, s[{SRD_W}:{SRD_W+3}], 0 offen")
        self.label("L_end")
        e("s_endpgm")

        out = HEADER
        out += f"; @launch grid=(256,1,1) block=(64,1,1) lds={LDS_BYTES}\n"
        out += '.amdgcn_target "amdgcn-amd-amdhsa--gfx950"\n.text\n'
        out += f".globl {NAME}_kernel\n.p2align 8\n.type {NAME}_kernel,@function\n{NAME}_kernel:\n"
        out += "\n".join(self.lines) + "\n"
        out += '.section .rodata,"a"\n.p2align 6\n'
        out += f".amdhsa_kernel {NAME}_kernel\n"
        out += f"  .amdhsa_next_free_vgpr {self.nfv}\n"
        out += f"  .amdhsa_next_free_sgpr 64\n"
        out += f"  .amdhsa_accum_offset {self.accum_offset}\n"
        out += "  .amdhsa_group_segment_fixed_size 0\n  .amdhsa_kernarg_size 64\n"
        out += "  .amdhsa_user_sgpr_count 2\n  .amdhsa_user_sgpr_kernarg_segment_ptr 1\n"
        out += "  .amdhsa_system_sgpr_workgroup_id_x 1\n"
        out += "  .amdhsa_float_denorm_mode_32 3\n"
        out += ".end_amdhsa_kernel\n"
        return out


if __name__ == "__main__":
    ap = argparse.ArgumentParser()
    ap.add_argument("-o", default=f"cdna_kernels/{NAME}.s")
    ap.add_argument("--N9", type=int, default=23)
    ap.add_argument("--N8", type=int, default=20)
    ap.add_argument("--NB", type=int, default=5)
    ap.add_argument("--LAGT", type=int, default=4)
    ap.add_argument("--kpol", default="nt")
    ap.add_argument("--epol", default="")
    ap.add_argument("--outpol", default="")
    ap.add_argument("--warm", type=int, default=2)
    ap.add_argument("--rot", action="store_true")
    ap.add_argument("--NEND", type=int, default=0)
    ap.add_argument("--REND", type=int, default=0)
    ap.add_argument("--N0", type=int, default=40)
    ap.add_argument("--diag", action="store_true")
    ap.add_argument("--nocompute", action="store_true")
    ap.add_argument("--NST", type=int, default=42)
    a = ap.parse_args()
    g = Gen8(a.N9, a.N8, a.NB, a.LAGT, a.kpol, a.epol, a.diag, a.outpol, a.warm, a.rot, a.NEND, a.REND, a.N0,
             a.nocompute, a.NST)
    s = g.build()
    open(a.o, "w").write(s)
    print(f"wrote {a.o}: nv={g.nv} nfv={g.nfv} lines={len(g.lines)} loops={g.lab}")
```

```python
import argparse
from gen import HEADER, NAME

S_Q, S_K, S_V, S_E, S_F, S_O, S_DBG, S_WS = 4, 6, 8, 10, 12, 14, 16, 18
SRD_D, SRD_P, SRD_O, SRD_W, SRD_Q, SRD_H = 20, 24, 28, 32, 56, 60
S_P, S_P2, S_CNT, S_SEL_LO, S_SEL_HI, S_TMP, S_TMP2 = 36, 37, 38, 39, 40, 41, 42
S_SCALE, S_LOG2E, S_END = 43, 44, 45
S_PO, S_PH, S_MARK, S_MODE = 46, 47, 52, 53
S_CMP = 54
S_T0, S_T1 = 48, 50
S_NHI = 68
ROWB = 9 * 1024 + 16
LDS_Q = 16 * ROWB
LDS_BYTES = LDS_Q + 2048
NB = 4
PRE = 20


class Gen12:
    def __init__(self, NK=(23, 28), NV=(21, 26), delta=6, th=24, every=2, kpol="nt", epol="", diag=False,
                 outpol="", sslot=3, pslot=2, N0=52, warm=1, tl=None, endhi=0):
        self.NK, self.NV, self.delta, self.th, self.every = NK, NV, delta, th, every
        self.kpol, self.epol, self.diag, self.outpol = kpol, epol, diag, outpol
        self.sslot, self.pslot, self.N0, self.warm = sslot, pslot, N0, warm
        self.tl, self.endhi = tl, endhi
        self.nm = len(NK)
        self.lines = []
        self.vK, self.vE, self.vQ, self.vE0 = 1, 2, 3, 4
        self.vH, self.vHS, self.vM = 5, 10, 11
        self.P = [6, 8]
        self.W, self.R, self.X = 12, 16, 20
        r = 32
        self.T = r; r += 32
        self.acc = r; r += 32
        self.tb = []
        for b in range(NB):
            self.tb.append(r); r += 32
        self.nv = r
        self.nagpr = 16 if warm else 0
        self.nops = 0
        self.done = -1
        self.ldidx = {}
        self.blk = {}
        self.freed = set()

    def e(self, s):
        self.lines.append("    " + s)

    def label(self, s):
        self.lines.append(s + ":")

    def emit(self, ins):
        for s in ins:
            self.lines.append(s if s.endswith(":") else "    " + s)

    def wait(self, n):
        self.e(f"s_waitcnt vmcnt({n})")
        self.done = max(self.done, self.nops - n - 1)

    def kload(self, L):
        tau, k = divmod(L, 8)
        if tau >= NB:
            assert (tau - NB, k >> 1) in self.freed, (tau, k)
        t = self.tb[tau % NB] + 4 * k
        pol = (" " + self.kpol) if self.kpol else ""
        o, so = k * 1024, S_P
        if o >= 4096:
            o -= 4096; so = S_P2
        off = f" offset:{o}" if o else ""
        self.e(f"buffer_load_dwordx4 v[{t}:{t+3}], v{self.vK}, s[{SRD_D}:{SRD_D+3}], s{so} offen{off}{pol}")
        self.ldidx[(tau, k)] = self.nops
        self.nops += 1
        if k == 3:
            self.e(f"s_add_u32 s{S_P}, s{S_P}, 8192")
        if k == 7:
            self.e(f"s_add_u32 s{S_P2}, s{S_P2}, 8192")

    def piece_of(self, c):
        if c < 128 - PRE:
            return PRE + c
        if 128 <= c < 256:
            return c
        return None

    def note_piece(self, p):
        which, b = ("E", p // 16) if p < 128 else ("F", (p - 128) // 16)
        pos = b if which == "E" else (b + 8) % 9
        if p % 16 == 0 and pos in self.blk:
            old = self.blk[pos][0]
            assert old[0] == "E" and self.lastread >= 128 + 16 * old[1] + 15, (p, old, self.lastread)
        self.blk[pos] = ((which, b), self.nops if p % 16 == 15 else 1 << 30)
        self.nops += 1

    def piece_ins(self):
        pol = (" " + self.epol) if self.epol else ""
        return f"buffer_load_dwordx4 v{self.vK}, s[{SRD_P}:{SRD_P+3}], s{S_PO} offen{pol} lds"

    def piece_next(self, j, tag):
        out = [f"s_add_u32 s{S_PO}, s{S_PO}, 8192", f"s_add_u32 m0, m0, {ROWB}"]
        if j == 3:
            out += [f"s_cmp_ge_u32 s{S_PO}, 0x20000", f"s_cbranch_scc0 L_{tag}_np",
                    f"s_sub_u32 s{S_PO}, s{S_PO}, {0x20000-1024}", f"s_sub_u32 m0, m0, {16*ROWB-1024}",
                    f"s_cmp_eq_u32 m0, {9*1024}", f"s_cselect_b32 m0, 0, m0"]
        return out

    def check_read(self, n):
        which, b = ("E" if n < 256 else "F"), (n % 128) // 16
        pos = b if which == "E" else (b + 8) % 9
        content, idx = self.blk[pos]
        assert content == (which, b) and idx <= self.done, (n, content, idx, self.done)

    def perms(self, c, m, half):
        t = self.tb[c % NB]
        out = []
        for ec in range(4 * half, 4 * half + 4):
            sel = S_SEL_HI if ec & 1 else S_SEL_LO
            cc = ec >> 1
            out.append(f"v_perm_b32 v{self.T+4*ec+m}, v{t+4*(2*m+1)+cc}, v{t+4*(2*m)+cc}, s{sel}")
        return out

    def mfmas(self, kind, es):
        W = self.W
        out = []
        for ec in es:
            a, tm = self.acc + 4 * ec, self.T + 4 * ec
            x, y = f"v[{tm}:{tm+3}]", f"v[{W}:{W+3}]"
            if kind == "V":
                x, y = y, x
            out.append(f"v_mfma_f32_16x16x32_bf16 v[{a}:{a+3}], {x}, {y}, v[{a}:{a+3}]")
        return out

    def shuffle(self, fix, nxt=True):
        W, R = self.W, self.R
        g = ["s_waitcnt lgkmcnt(0)",
             f"v_perm_b32 v{W}, v{R+2}, v{R}, s{S_SEL_LO}",
             f"v_perm_b32 v{W+2}, v{R+3}, v{R+1}, s{S_SEL_LO}",
             f"v_perm_b32 v{W+1}, v{R+2}, v{R}, s{S_SEL_HI}",
             f"v_perm_b32 v{W+3}, v{R+3}, v{R+1}, s{S_SEL_HI}",
             f"v_permlane32_swap_b32 v{W}, v{W+2}"]
        g += [f"v_add_u32 v{self.vE}, 64, v{self.vE}" if nxt else "s_nop 0"]
        g += [f"v_permlane32_swap_b32 v{W+1}, v{W+3}"]
        if fix:
            g += fix
        g += [f"ds_read_b128 v[{R}:{R+3}], v{self.vE}" if nxt else "s_nop 0"]
        g2 = [f"v_permlane16_swap_b32 v{W}, v{W+1}", f"v_permlane16_swap_b32 v{W+2}, v{W+3}"]
        return g, g2

    def tile(self, c, kind, N, j=0, fix=None, post=None, skip=None, tag="x", carry=True):
        nxt = c + 1 < 512
        late = []
        for i in range(8):
            m, half = i >> 1, i & 1
            if kind == "K" and i == self.pslot:
                p = self.piece_of(c)
                self.e(f"s_cbranch_vccz L_{tag}_np")
                if p is not None:
                    self.wait(N - 1)
                    self.note_piece(p)
                else:
                    self.e(f"s_waitcnt vmcnt({N-1})")
                self.e(self.piece_ins())
                self.emit(self.piece_next(j, tag))
                self.label(f"L_{tag}_np")
            L = 8 * (c + 3) + i + self.delta
            if L < 4096:
                self.wait(N - 1)
                self.kload(L)
                if L % 8 == 7 and post:
                    self.emit(post)
            idx = self.ldidx[(c, 2 * m + 1)]
            if L >= 4096 and idx > self.done:
                self.wait(self.nops - 1 - idx)
            assert idx <= self.done, (c, i)
            pm = self.perms(c, m, half)
            if i == 0 and carry:
                mf = self.mfmas(kind, range(4, 8))
                if skip:
                    self.emit(skip[0] + mf + skip[1] + pm)
                else:
                    for a, b in zip(mf, pm):
                        self.emit([a, b])
            elif i == 7:
                for a, b in zip(self.mfmas(kind, range(4)), pm):
                    self.emit([a, b])
            else:
                self.emit(pm)
            if half:
                self.freed.add((c, m))
            if late:
                self.emit(late)
                late = []
            if i == self.sslot:
                self.lastread = c
                if nxt:
                    self.check_read(c + 1)
                g, late = self.shuffle(fix, nxt)
                self.emit(g)

    def xlane(self, op, a, b):
        return [f"v_mov_b32 v{b}, v{a}", "s_nop 1", f"v_permlane16_swap_b32 v{a}, v{b}", "s_nop 1",
                f"{op} v{a}, v{a}, v{b}",
                f"v_mov_b32 v{b}, v{a}", "s_nop 1", f"v_permlane32_swap_b32 v{a}, v{b}", "s_nop 1",
                f"{op} v{a}, v{a}, v{b}"]

    def zero(self):
        return [f"v_mov_b32 v{self.acc+i}, 0" for i in range(32)]

    def k_epilogue(self):
        acc, X, T = self.acc, self.X, self.T
        S = X
        A = [X + 4, X + 8]
        p = ["s_nop 3"]
        p += [f"ds_read_b128 v[{T+4*g}:{T+4*g+3}], v{self.vQ} offset:{g*16}" for g in range(4)]
        for g in range(4):
            a = A[g & 1]
            for m in range(4):
                p.append(f"v_cvt_pk_bf16_f32 v{a+m}, v{acc+4*(2*m)+g}, v{acc+4*(2*m+1)+g}")
            p += ["s_waitcnt lgkmcnt(0)", "s_nop 0"] if g == 0 else ["s_nop 1"]
            c = "0" if g == 0 else f"v[{S}:{S+3}]"
            p.append(f"v_mfma_f32_16x16x32_bf16 v[{S}:{S+3}], v[{a}:{a+3}], v[{T+4*g}:{T+4*g+3}], {c}")
        p += self.zero()
        p += [f"v_add_u32 v{self.vQ}, 1024, v{self.vQ}"]
        x = X + 4
        p += [f"v_cvt_pk_bf16_f32 v{x+4}, v{S}, v{S+1}", f"v_cvt_pk_bf16_f32 v{x+5}, v{S+2}, v{S+3}"]
        unpack = [f"v_lshlrev_b32 v{x+0}, 16, v{x+4}", f"v_and_b32 v{x+1}, 0xffff0000, v{x+4}",
                  f"v_lshlrev_b32 v{x+2}, 16, v{x+5}", f"v_and_b32 v{x+3}, 0xffff0000, v{x+5}"]
        p += unpack
        p += [f"v_mul_f32 v{x+i}, s{S_SCALE}, v{x+i}" for i in range(4)]
        p += [f"v_cvt_pk_bf16_f32 v{x+4}, v{x}, v{x+1}", f"v_cvt_pk_bf16_f32 v{x+5}, v{x+2}, v{x+3}"]
        p += unpack
        p += [f"v_max3_f32 v{x+6}, v{x}, v{x+1}, v{x+2}", f"v_max_f32 v{x+6}, v{x+6}, v{x+3}"]
        p += self.xlane("v_max_f32", x + 6, x + 7)
        p += [f"v_sub_f32 v{x+i}, v{x+i}, v{x+6}" for i in range(4)]
        p += [f"v_mul_f32 v{x+i}, s{S_LOG2E}, v{x+i}" for i in range(4)]
        p += [f"v_exp_f32 v{x+i}, v{x+i}" for i in range(4)]
        p += ["s_nop 0", f"v_add_f32 v{x+6}, v{x}, v{x+1}", f"v_add_f32 v{x+7}, v{x+2}, v{x+3}",
              f"v_add_f32 v{x+6}, v{x+6}, v{x+7}"]
        p += self.xlane("v_add_f32", x + 6, x + 7)
        p += [f"v_rcp_f32 v{x+6}, v{x+6}", "s_nop 0"]
        p += [f"v_mul_f32 v{x+i}, v{x+i}, v{x+6}" for i in range(4)]
        P0, P1 = self.P
        p += [f"v_mov_b32 v{P0}, v{P1}", f"v_mov_b32 v{P0+1}, v{P1+1}",
              f"v_cvt_pk_bf16_f32 v{P1}, v{x}, v{x+1}", f"v_cvt_pk_bf16_f32 v{P1+1}, v{x+2}, v{x+3}"]
        return p

    def v_epilogue(self, head):
        acc, X, P, T = self.acc, self.X, self.P[head], self.T
        p = ["s_nop 3"]
        for ec in range(8):
            a = acc + 4 * ec
            p.append(f"v_cvt_pk_bf16_f32 v{a}, v{a}, v{a+1}")
            p.append(f"v_cvt_pk_bf16_f32 v{a+1}, v{a+2}, v{a+3}")
            if ec:
                a = acc + 4 * (ec - 1)
                p.append(f"v_mfma_f32_16x16x16_bf16 v[{T+4*(ec-1)}:{T+4*(ec-1)+3}], v[{P}:{P+1}], v[{a}:{a+1}], 0")
        a = acc + 28
        p.append("s_nop 0")
        p.append(f"v_mfma_f32_16x16x16_bf16 v[{T+28}:{T+31}], v[{P}:{P+1}], v[{a}:{a+1}], 0")
        p += self.zero() if head == 0 else ["s_nop 4"]
        o = X + 4
        for m in range(4):
            p.append(f"v_cvt_pk_bf16_f32 v{o+m}, v{T+4*(2*m)}, v{T+4*(2*m+1)}")
        off = " offset:1024" if head else ""
        pol = (" " + self.outpol) if self.outpol else ""
        p.append(f"buffer_store_dwordx4 v[{o}:{o+3}], v{self.vK}, s[{SRD_O}:{SRD_O+3}], 0 offen{off}{pol}")
        return p

    def flush(self, kind):
        self.emit(["s_nop 1"] + self.mfmas(kind, range(4, 8)))

    def srd(self, d, ptr, offreg, nrec):
        if offreg is None:
            self.e(f"s_mov_b32 s{d}, s{ptr}")
            self.e(f"s_mov_b32 s{d+1}, s{ptr+1}")
        else:
            self.e(f"s_add_u32 s{d}, s{ptr}, s{offreg}")
            self.e(f"s_addc_u32 s{d+1}, s{ptr+1}, 0")
        self.e(f"s_mov_b32 s{d+2}, {nrec:#x}")
        self.e(f"s_mov_b32 s{d+3}, 0x20000")

    def hooks(self, kind, j, tag):
        fix = post = skip = None
        if j == 0:
            skip = ([f"s_cmp_eq_u32 s{S_CNT}, 32", f"s_cbranch_scc1 L_{tag}_nc"], [f"L_{tag}_nc:"])
        if j == 3 and kind == "K":
            fix = [f"s_cmp_eq_u32 s{S_CNT}, 1", f"s_cbranch_scc0 L_{tag}_nw",
                   f"v_add_u32 v{self.vE}, s{S_PH}, v{self.vE0}", f"L_{tag}_nw:"]
        if j == 3 and kind == "V":
            fix = [f"s_cmp_eq_u32 s{S_CNT}, 29", f"s_cbranch_scc0 L_{tag}_nw",
                   f"v_mov_b32 v{self.vE}, v{self.vE0}", f"L_{tag}_nw:",
                   f"s_cmp_eq_u32 s{S_CNT}, 1", f"s_cbranch_scc0 L_{tag}_nx",
                   f"v_add_u32 v{self.vE}, 8192, v{self.vE0}", f"L_{tag}_nx:"]
        if j == 0 and kind == "K":
            post = [f"s_add_u32 s{S_TMP}, s{S_CNT}, s{S_PH}",
                    f"s_cmp_eq_u32 s{S_TMP}, 8193",
                    f"s_cbranch_scc0 L_{tag}_ns",
                    f"s_mov_b32 s{SRD_D}, s{S_V}",
                    f"s_mov_b32 s{SRD_D+1}, s{S_V+1}",
                    f"s_lshl_b32 s{S_P}, s2, 21",
                    f"s_add_u32 s{S_P2}, s{S_P}, 4096",
                    f"L_{tag}_ns:"]
        return dict(fix=fix, post=post, skip=skip)

    def control(self, tag):
        e = self.e
        if self.nm == 1:
            return
        e(f"s_and_b32 s{S_TMP}, s{S_CNT}, {self.every-1}")
        e(f"s_cbranch_scc1 L_{tag}_sel")
        e(f"v_cmp_le_u32 s[{S_CMP}:{S_CMP+1}], s{S_MARK}, v{self.vH}")
        e(f"s_add_u32 s{S_MARK}, s{S_MARK}, 1")
        e(f"v_mov_b32 v{self.vM}, s{S_MARK}")
        e(f"s_bcnt1_i32_b64 s{S_TMP}, s[{S_CMP}:{S_CMP+1}]")
        e(f"buffer_store_byte v{self.vM}, v{self.vHS}, s[{SRD_H}:{SRD_H+3}], 0 offen")
        e(f"buffer_load_ubyte v{self.vH}, v0, s[{SRD_H}:{SRD_H+3}], 0 offen sc1")
        e(f"s_cmp_ge_u32 s{S_TMP}, {self.th}")
        e(f"s_cselect_b32 s{S_MODE}, 1, 0")
        if self.nm == 3:
            e(f"s_cmp_lt_u32 s{S_TMP}, {self.tl}")
            e(f"s_cselect_b32 s{S_MODE}, 2, s{S_MODE}")
        self.label(f"L_{tag}_sel")
        if tag == "v" and self.endhi:
            e(f"s_sub_u32 s{S_TMP}, s{S_CNT}, s{S_END}")
            e(f"s_mul_i32 s{S_TMP2}, s{S_END}, {self.endhi}")
            e(f"s_cmp_le_u32 s{S_TMP}, s{S_TMP2}")
            e(f"s_cselect_b32 s{S_MODE}, 1, s{S_MODE}")
        if self.diag:
            e(f"s_add_u32 s{S_NHI}, s{S_NHI}, s{S_MODE}")
        for md in range(1, self.nm):
            e(f"s_cmp_eq_u32 s{S_MODE}, {md}")
            e(f"s_cbranch_scc1 L_{tag}m{md}")

    def bodies(self, kind, c0, tag, Ns):
        state = (self.nops, self.done, dict(self.ldidx), dict(self.blk), set(self.freed), self.lastread)
        nmax = max(Ns)
        for md, N in enumerate(Ns):
            self.nops, self.done, self.ldidx, self.blk, self.freed, self.lastread = \
                state[0], state[1], dict(state[2]), dict(state[3]), set(state[4]), state[5]
            self.label(f"L_{tag}m{md}")
            for j in range(4):
                t = f"{tag}{md}_{j}"
                self.tile(c0 + j, kind, N, j=j, tag=t, **self.hooks(kind, j, t))
            if md < len(Ns) - 1:
                self.e(f"s_branch L_{tag}_next")
        self.label(f"L_{tag}_next")
        self.nops, self.done, self.ldidx, self.blk, self.freed, self.lastread = \
            state[0], state[1], dict(state[2]), dict(state[3]), set(state[4]), state[5]

    def replay(self, kind, c_from, c_to, N):
        keep = self.lines
        self.lines = []
        for c in range(c_from, c_to):
            self.tile(c, kind, N, j=c % 4)
        self.lines = keep

    def warmup(self, waits):
        e = self.e
        e(f"s_lshr_b32 s{S_TMP}, s2, 3")
        e(f"s_lshl_b32 s{S_TMP}, s{S_TMP}, 12")
        for i in range(4):
            off = f" offset:{i*1024}" if i else ""
            e(f"buffer_load_dwordx4 a[{4*i}:{3+4*i}], v{self.vK}, s[{SRD_P}:{SRD_P+3}], s{S_TMP} offen{off}")
            if waits:
                self.nops += 1

    def build(self):
        e = self.e
        NK, NV = self.NK, self.NV
        t0, t1 = self.X, self.X + 1
        self.lastread = -1
        e("s_cmp_ge_u32 s2, 256")
        e("s_cbranch_scc1 L_end")
        e("s_load_dwordx16 s[4:19], s[0:1], 0")
        if self.diag:
            e(f"s_memrealtime s[{S_T0}:{S_T0+1}]")
        e(f"v_lshlrev_b32 v{self.vK}, 4, v0")
        e(f"s_lshl_b32 s{S_P}, s2, 21")
        e(f"s_add_u32 s{S_P2}, s{S_P}, 4096")
        e(f"s_mov_b32 s{SRD_D+2}, 0x20000000")
        e(f"s_mov_b32 s{SRD_D+3}, 0x20000")
        e(f"s_mov_b32 s{SRD_P+2}, 0x20000")
        e(f"s_mov_b32 s{SRD_P+3}, 0x20000")
        e(f"s_mov_b32 s{S_PO}, 0")
        e("s_mov_b32 m0, 0")
        e("s_waitcnt lgkmcnt(0)")
        e(f"s_mov_b32 s{SRD_D}, s{S_K}")
        e(f"s_mov_b32 s{SRD_D+1}, s{S_K+1}")
        e(f"s_mov_b32 s{SRD_P}, s{S_E}")
        e(f"s_mov_b32 s{SRD_P+1}, s{S_E+1}")
        NB0 = 20
        for L in range(NB0):
            self.kload(L)
        for p in range(PRE):
            e(self.piece_ins())
            self.note_piece(p)
            if p == 15:
                e(f"s_mov_b32 m0, 1024")
                e(f"s_mov_b32 s{S_PO}, 1024")
            else:
                e(f"s_add_u32 m0, m0, {ROWB}")
                e(f"s_add_u32 s{S_PO}, s{S_PO}, 8192")
        if self.warm:
            self.warmup(True)
        e(f"s_mov_b32 s{S_TMP2}, m0")
        e(f"s_lshl_b32 s{S_TMP}, s2, 11")
        e(f"s_mov_b32 m0, {LDS_Q}")
        self.srd(SRD_Q, S_Q, S_TMP, 0x800)
        e(f"buffer_load_dwordx4 v{self.vK}, s[{SRD_Q}:{SRD_Q+3}], 0 offen lds")
        e(f"buffer_load_dwordx4 v{self.vK}, s[{SRD_Q}:{SRD_Q+3}], 0 offen offset:1024 lds")
        self.nops += 2
        e(f"s_mov_b32 m0, s{S_TMP2}")
        self.srd(SRD_O, S_O, S_TMP, 0x800)
        e(f"v_and_b32 v{t0}, 15, v0")
        e(f"v_lshrrev_b32 v{t1}, 4, v0")
        e(f"v_mul_u32_u24 v{self.vE0}, {ROWB}, v{t0}")
        e(f"v_lshl_add_u32 v{self.vE0}, v{t1}, 4, v{self.vE0}")
        e(f"v_mov_b32 v{self.vE}, v{self.vE0}")
        e(f"v_lshrrev_b32 v{self.vQ}, 2, v{t0}")
        e(f"v_lshlrev_b32 v{self.vQ}, 8, v{self.vQ}")
        e(f"v_lshl_add_u32 v{self.vQ}, v{t1}, 6, v{self.vQ}")
        e(f"v_add_u32 v{self.vQ}, {LDS_Q}, v{self.vQ}")
        e(f"s_mov_b32 s{S_SEL_LO}, 0x05040100")
        e(f"s_mov_b32 s{S_SEL_HI}, 0x07060302")
        e(f"s_mov_b32 s{S_SCALE}, 0x3db504f3")
        e(f"s_mov_b32 s{S_LOG2E}, 0x3fb8aa3b")
        if self.nm > 1:
            self.srd(SRD_H, S_DBG, None, 64)
            e(f"s_getreg_b32 s{S_TMP}, hwreg(HW_REG_HW_ID, 8, 4)")
            e(f"s_getreg_b32 s{S_TMP2}, hwreg(HW_REG_HW_ID, 13, 2)")
            e(f"s_lshl_b32 s{S_TMP2}, s{S_TMP2}, 4")
            e(f"s_or_b32 s{S_TMP}, s{S_TMP}, s{S_TMP2}")
            e(f"v_mov_b32 v{self.vHS}, s{S_TMP}")
            e(f"v_mov_b32 v{self.vH}, 0")
            e(f"s_mov_b32 s{S_MARK}, 1")
            e(f"s_mov_b32 s{S_MODE}, 0")
        if self.diag:
            self.srd(SRD_W, S_WS, None, 0x1000000)
            e(f"s_mov_b32 s{S_NHI}, 0")
        self.emit(self.zero())
        extra = self.nops - NB0
        for L in range(NB0, 24 + self.delta):
            self.wait(NB0 + extra - 1)
            self.kload(L)
        idx = self.blk[0][1]
        self.wait(self.nops - 1 - idx)
        self.check_read(0)
        e(f"ds_read_b128 v[{self.R}:{self.R+3}], v{self.vE}")
        e(f"s_mov_b32 s{S_PH}, 0")
        e(f"s_mov_b32 s{S_END}, {PRE//4}")
        self.label("L_khead")
        e(f"s_mov_b32 s{S_CNT}, 32")
        self.label("L_k")
        e(f"s_cmp_eq_u32 s{S_CNT}, s{S_END}")
        e("s_cbranch_scc0 L_nf")
        e(f"s_mov_b32 s{SRD_P}, s{S_F}")
        e(f"s_mov_b32 s{SRD_P+1}, s{S_F+1}")
        e(f"s_mov_b32 s{S_PO}, 0")
        e(f"s_mov_b32 m0, 8192")
        if self.warm:
            self.warmup(False)
        self.label("L_nf")
        e(f"s_cmp_gt_u32 s{S_CNT}, s{S_END}")
        e("s_cselect_b64 vcc, -1, 0")
        self.control("k")
        self.bodies("K", 0, "k", NK)
        e(f"s_sub_u32 s{S_CNT}, s{S_CNT}, 1")
        e(f"s_cmp_lg_u32 s{S_CNT}, 0")
        e("s_cbranch_scc1 L_k")
        self.flush("K")
        self.emit(self.k_epilogue())
        e(f"s_cmp_eq_u32 s{S_PH}, 0")
        e(f"s_mov_b32 s{S_END}, 0")
        e(f"s_mov_b32 s{S_PH}, 8192")
        e("s_cbranch_scc1 L_khead")
        self.replay("K", 0, 256, max(NK))
        self.label("L_vhead")
        e(f"s_mov_b32 s{S_CNT}, 32")
        self.label("L_v")
        self.control("v")
        self.bodies("V", 256, "v", NV)
        e(f"s_sub_u32 s{S_CNT}, s{S_CNT}, 1")
        e(f"s_cmp_lg_u32 s{S_CNT}, s{S_END}")
        e("s_cbranch_scc1 L_v")
        e(f"s_cmp_eq_u32 s{S_END}, 1")
        e("s_cbranch_scc1 L_tail")
        self.flush("V")
        self.emit(self.v_epilogue(0))
        e(f"s_mov_b32 s{S_END}, 1")
        e("s_branch L_vhead")
        self.label("L_tail")
        self.replay("V", 256, 508, max(NV))
        for c in range(508, 512):
            self.tile(c, "V", max(NV))
        self.flush("V")
        self.emit(self.v_epilogue(1))
        if self.diag:
            e("s_waitcnt vmcnt(0)")
            e(f"s_memrealtime s[{S_T1}:{S_T1+1}]")
            e(f"s_getreg_b32 s{S_TMP2}, hwreg(HW_REG_XCC_ID)")
            e(f"s_and_b32 s{S_TMP2}, s{S_TMP2}, 15")
            e(f"s_lshl_b32 s{S_TMP}, s2, 4")
            e("s_waitcnt lgkmcnt(0)")
            o = self.W
            e(f"v_mov_b32 v{o}, s{S_T0}")
            e(f"v_mov_b32 v{o+1}, s{S_T1}")
            e(f"v_mov_b32 v{o+2}, s{S_TMP2}")
            e(f"s_lshl_b32 s{S_NHI}, s{S_NHI}, 8")
            e(f"v_mov_b32 v{o+3}, s{S_NHI}")
            e(f"v_mov_b32 v{t0}, s{S_TMP}")
            e("s_mov_b64 exec, 1")
            e(f"buffer_store_dwordx4 v[{o}:{o+3}], v{t0}, s[{SRD_W}:{SRD_W+3}], 0 offen")
        self.label("L_end")
        e("s_endpgm")

        out = HEADER
        out += f"; @launch grid=(256,1,1) block=(64,1,1) lds={LDS_BYTES}\n"
        out += '.amdgcn_target "amdgcn-amd-amdhsa--gfx950"\n.text\n'
        out += f".globl {NAME}_kernel\n.p2align 8\n.type {NAME}_kernel,@function\n{NAME}_kernel:\n"
        out += "\n".join(self.lines) + "\n"
        out += '.section .rodata,"a"\n.p2align 6\n'
        out += f".amdhsa_kernel {NAME}_kernel\n"
        out += f"  .amdhsa_next_free_vgpr {self.nv + self.nagpr}\n"
        out += f"  .amdhsa_next_free_sgpr 72\n"
        out += f"  .amdhsa_accum_offset {self.nv}\n"
        out += "  .amdhsa_group_segment_fixed_size 0\n  .amdhsa_kernarg_size 64\n"
        out += "  .amdhsa_user_sgpr_count 2\n  .amdhsa_user_sgpr_kernarg_segment_ptr 1\n"
        out += "  .amdhsa_system_sgpr_workgroup_id_x 1\n"
        out += "  .amdhsa_float_denorm_mode_32 3\n"
        out += ".end_amdhsa_kernel\n"
        return out


if __name__ == "__main__":
    ap = argparse.ArgumentParser()
    tup = lambda s: tuple(int(x) for x in s.split(","))
    ap.add_argument("-o", default=f"cdna_kernels/{NAME}.s")
    ap.add_argument("--NK", type=tup, default=(23, 28))
    ap.add_argument("--NV", type=tup, default=(21, 26))
    ap.add_argument("--delta", type=int, default=6)
    ap.add_argument("--th", type=int, default=24)
    ap.add_argument("--tl", type=int, default=9)
    ap.add_argument("--every", type=int, default=2)
    ap.add_argument("--kpol", default="nt")
    ap.add_argument("--epol", default="")
    ap.add_argument("--outpol", default="")
    ap.add_argument("--sslot", type=int, default=3)
    ap.add_argument("--pslot", type=int, default=2)
    ap.add_argument("--warm", type=int, default=1)
    ap.add_argument("--endhi", type=int, default=0)
    ap.add_argument("--diag", action="store_true")
    a = ap.parse_args()
    g = Gen12(a.NK, a.NV, a.delta, a.th, a.every, a.kpol, a.epol, a.diag, a.outpol, a.sslot, a.pslot,
              warm=a.warm, tl=a.tl, endhi=a.endhi)
    s = g.build()
    open(a.o, "w").write(s)
    print(f"wrote {a.o}: nv={g.nv} lines={len(g.lines)}")
```

```python
import argparse
from gen import HEADER, NAME

S_Q, S_K, S_V, S_E, S_F, S_O, S_DBG, S_WS = 4, 6, 8, 10, 12, 14, 16, 18
SRD_D, SRD_P, SRD_O, SRD_W, SRD_Q, SRD_H = 20, 24, 28, 32, 56, 60
S_P, S_P2, S_CNT, S_SEL_LO, S_SEL_HI, S_TMP, S_TMP2 = 36, 37, 38, 39, 40, 41, 42
S_SCALE, S_LOG2E, S_END = 43, 44, 45
S_PO, S_PH, S_MARK, S_MODE = 46, 47, 52, 53
S_CMP = 54
S_T0, S_T1 = 48, 50
S_NHI = 68
ROWB = 9 * 1024 + 16
LDS_Q = 16 * ROWB
LDS_BYTES = LDS_Q + 2048
NB = 4
PRE = 20


class Gen12:
    def __init__(self, NK=(23, 28), NV=(21, 26), delta=6, th=24, every=2, kpol="nt", epol="", diag=False,
                 outpol="", sslot=3, pslot=2, N0=52, warm=1, tl=None, endhi=0, dbgt=False):
        self.dbgt = dbgt
        self.NK, self.NV, self.delta, self.th, self.every = NK, NV, delta, th, every
        self.kpol, self.epol, self.diag, self.outpol = kpol, epol, diag, outpol
        self.sslot, self.pslot, self.N0, self.warm = sslot, pslot, N0, warm
        self.tl, self.endhi = tl, endhi
        self.nm = len(NK)
        self.lines = []
        self.vK, self.vE, self.vQ, self.vE0 = 1, 2, 3, 4
        self.vH, self.vHS, self.vM = 5, 10, 11
        self.P = [6, 8]
        self.W, self.R, self.X = 12, 16, 20
        r = 32
        self.T = r; r += 32
        self.acc = r; r += 32
        self.tb = []
        for b in range(NB):
            self.tb.append(r); r += 32
        self.nv = r
        self.nagpr = 16 if warm else 0
        self.nops = 0
        self.done = -1
        self.ldidx = {}
        self.blk = {}
        self.freed = set()

    def e(self, s):
        self.lines.append("    " + s)

    def label(self, s):
        self.lines.append(s + ":")

    def emit(self, ins):
        for s in ins:
            self.lines.append(s if s.endswith(":") else "    " + s)

    def wait(self, n):
        self.e(f"s_waitcnt vmcnt({n})")
        self.done = max(self.done, self.nops - n - 1)

    def kload(self, L):
        tau, k = divmod(L, 8)
        if tau >= NB:
            assert (tau - NB, k >> 1) in self.freed, (tau, k)
        t = self.tb[tau % NB] + 4 * k
        pol = (" " + self.kpol) if self.kpol else ""
        o, so = k * 1024, S_P
        if o >= 4096:
            o -= 4096; so = S_P2
        off = f" offset:{o}" if o else ""
        self.e(f"buffer_load_dwordx4 v[{t}:{t+3}], v{self.vK}, s[{SRD_D}:{SRD_D+3}], s{so} offen{off}{pol}")
        self.ldidx[(tau, k)] = self.nops
        self.nops += 1
        if k == 3:
            self.e(f"s_add_u32 s{S_P}, s{S_P}, 8192")
        if k == 7:
            self.e(f"s_add_u32 s{S_P2}, s{S_P2}, 8192")

    def piece_of(self, c):
        if c < 128 - PRE:
            return PRE + c
        if 128 <= c < 256:
            return c
        return None

    def note_piece(self, p):
        which, b = ("E", p // 16) if p < 128 else ("F", (p - 128) // 16)
        pos = b if which == "E" else (b + 8) % 9
        if p % 16 == 0 and pos in self.blk:
            old = self.blk[pos][0]
            assert old[0] == "E" and self.lastread >= 128 + 16 * old[1] + 15, (p, old, self.lastread)
        self.blk[pos] = ((which, b), self.nops if p % 16 == 15 else 1 << 30)
        self.nops += 1

    def piece_ins(self):
        pol = (" " + self.epol) if self.epol else ""
        return f"buffer_load_dwordx4 v{self.vK}, s[{SRD_P}:{SRD_P+3}], s{S_PO} offen{pol} lds"

    def piece_next(self, j, tag):
        out = [f"s_add_u32 s{S_PO}, s{S_PO}, 8192", f"s_add_u32 m0, m0, {ROWB}"]
        if j == 3:
            out += [f"s_cmp_ge_u32 s{S_PO}, 0x20000", f"s_cbranch_scc0 L_{tag}_np",
                    f"s_sub_u32 s{S_PO}, s{S_PO}, {0x20000-1024}", f"s_sub_u32 m0, m0, {16*ROWB-1024}",
                    f"s_cmp_eq_u32 m0, {9*1024}", f"s_cselect_b32 m0, 0, m0"]
        return out

    def check_read(self, n):
        which, b = ("E" if n < 256 else "F"), (n % 128) // 16
        pos = b if which == "E" else (b + 8) % 9
        content, idx = self.blk[pos]
        assert content == (which, b) and idx <= self.done, (n, content, idx, self.done)

    def perms(self, c, m, half):
        t = self.tb[c % NB]
        out = []
        for ec in range(4 * half, 4 * half + 4):
            sel = S_SEL_HI if ec & 1 else S_SEL_LO
            cc = ec >> 1
            out.append(f"v_perm_b32 v{self.T+4*ec+m}, v{t+4*(2*m+1)+cc}, v{t+4*(2*m)+cc}, s{sel}")
        return out

    def mfmas(self, kind, es):
        W = self.W
        out = []
        for ec in es:
            a, tm = self.acc + 4 * ec, self.T + 4 * ec
            x, y = f"v[{tm}:{tm+3}]", f"v[{W}:{W+3}]"
            if kind == "V":
                x, y = y, x
            out.append(f"v_mfma_f32_16x16x32_bf16 v[{a}:{a+3}], {x}, {y}, v[{a}:{a+3}]")
        return out

    def shuffle(self, fix, nxt=True):
        W, R = self.W, self.R
        g = ["s_waitcnt lgkmcnt(0)",
             f"v_perm_b32 v{W}, v{R+2}, v{R}, s{S_SEL_LO}",
             f"v_perm_b32 v{W+2}, v{R+3}, v{R+1}, s{S_SEL_LO}",
             f"v_perm_b32 v{W+1}, v{R+2}, v{R}, s{S_SEL_HI}",
             f"v_perm_b32 v{W+3}, v{R+3}, v{R+1}, s{S_SEL_HI}",
             f"v_permlane32_swap_b32 v{W}, v{W+2}"]
        g += [f"v_add_u32 v{self.vE}, 64, v{self.vE}" if nxt else "s_nop 0"]
        g += [f"v_permlane32_swap_b32 v{W+1}, v{W+3}"]
        if fix:
            g += fix
        g += [f"ds_read_b128 v[{R}:{R+3}], v{self.vE}" if nxt else "s_nop 0"]
        g2 = [f"v_permlane16_swap_b32 v{W}, v{W+1}", f"v_permlane16_swap_b32 v{W+2}, v{W+3}"]
        return g, g2

    def tile(self, c, kind, N, j=0, fix=None, post=None, skip=None, tag="x", carry=True):
        nxt = c + 1 < 512
        late = []
        for i in range(8):
            m, half = i >> 1, i & 1
            if kind == "K" and i == self.pslot:
                p = self.piece_of(c)
                self.e(f"s_cbranch_vccz L_{tag}_np")
                if p is not None:
                    self.wait(N - 1)
                    self.note_piece(p)
                else:
                    self.e(f"s_waitcnt vmcnt({N-1})")
                self.e(self.piece_ins())
                self.emit(self.piece_next(j, tag))
                self.label(f"L_{tag}_np")
            L = 8 * (c + 3) + i + self.delta
            if L < 4096:
                self.wait(N - 1)
                self.kload(L)
                if L % 8 == 7 and post:
                    self.emit(post)
            idx = self.ldidx[(c, 2 * m + 1)]
            if L >= 4096 and idx > self.done:
                self.wait(self.nops - 1 - idx)
            assert idx <= self.done, (c, i)
            pm = self.perms(c, m, half)
            if i == 0 and carry:
                mf = self.mfmas(kind, range(4, 8))
                if skip:
                    self.emit(skip[0] + mf + skip[1] + pm)
                else:
                    for a, b in zip(mf, pm):
                        self.emit([a, b])
            elif i == 7:
                for a, b in zip(self.mfmas(kind, range(4)), pm):
                    self.emit([a, b])
            else:
                self.emit(pm)
            if half:
                self.freed.add((c, m))
            if late:
                self.emit(late)
                late = []
            if i == self.sslot:
                self.lastread = c
                if nxt:
                    self.check_read(c + 1)
                g, late = self.shuffle(fix, nxt)
                self.emit(g)

    def xlane(self, op, a, b):
        return [f"v_mov_b32 v{b}, v{a}", "s_nop 1", f"v_permlane16_swap_b32 v{a}, v{b}", "s_nop 1",
                f"{op} v{a}, v{a}, v{b}",
                f"v_mov_b32 v{b}, v{a}", "s_nop 1", f"v_permlane32_swap_b32 v{a}, v{b}", "s_nop 1",
                f"{op} v{a}, v{a}, v{b}"]

    def zero(self):
        return [f"v_mov_b32 v{self.acc+i}, 0" for i in range(32)]

    def k_epilogue(self):
        acc, X, T = self.acc, self.X, self.T
        S = X
        A = [X + 4, X + 8]
        p = ["s_nop 3"]
        p += [f"ds_read_b128 v[{T+4*g}:{T+4*g+3}], v{self.vQ} offset:{g*16}" for g in range(4)]
        for g in range(4):
            a = A[g & 1]
            for m in range(4):
                p.append(f"v_cvt_pk_bf16_f32 v{a+m}, v{acc+4*(2*m)+g}, v{acc+4*(2*m+1)+g}")
            p += ["s_waitcnt lgkmcnt(0)", "s_nop 0"] if g == 0 else ["s_nop 1"]
            c = "0" if g == 0 else f"v[{S}:{S+3}]"
            p.append(f"v_mfma_f32_16x16x32_bf16 v[{S}:{S+3}], v[{a}:{a+3}], v[{T+4*g}:{T+4*g+3}], {c}")
        p += self.zero()
        p += [f"v_add_u32 v{self.vQ}, 1024, v{self.vQ}"]
        x = X + 4
        p += [f"v_cvt_pk_bf16_f32 v{x+4}, v{S}, v{S+1}", f"v_cvt_pk_bf16_f32 v{x+5}, v{S+2}, v{S+3}"]
        unpack = [f"v_lshlrev_b32 v{x+0}, 16, v{x+4}", f"v_and_b32 v{x+1}, 0xffff0000, v{x+4}",
                  f"v_lshlrev_b32 v{x+2}, 16, v{x+5}", f"v_and_b32 v{x+3}, 0xffff0000, v{x+5}"]
        p += unpack
        p += [f"v_mul_f32 v{x+i}, s{S_SCALE}, v{x+i}" for i in range(4)]
        p += [f"v_cvt_pk_bf16_f32 v{x+4}, v{x}, v{x+1}", f"v_cvt_pk_bf16_f32 v{x+5}, v{x+2}, v{x+3}"]
        p += unpack
        p += [f"v_max3_f32 v{x+6}, v{x}, v{x+1}, v{x+2}", f"v_max_f32 v{x+6}, v{x+6}, v{x+3}"]
        p += self.xlane("v_max_f32", x + 6, x + 7)
        p += [f"v_sub_f32 v{x+i}, v{x+i}, v{x+6}" for i in range(4)]
        p += [f"v_mul_f32 v{x+i}, s{S_LOG2E}, v{x+i}" for i in range(4)]
        p += [f"v_exp_f32 v{x+i}, v{x+i}" for i in range(4)]
        p += ["s_nop 0", f"v_add_f32 v{x+6}, v{x}, v{x+1}", f"v_add_f32 v{x+7}, v{x+2}, v{x+3}",
              f"v_add_f32 v{x+6}, v{x+6}, v{x+7}"]
        p += self.xlane("v_add_f32", x + 6, x + 7)
        p += [f"v_rcp_f32 v{x+6}, v{x+6}", "s_nop 0"]
        p += [f"v_mul_f32 v{x+i}, v{x+i}, v{x+6}" for i in range(4)]
        P0, P1 = self.P
        p += [f"v_mov_b32 v{P0}, v{P1}", f"v_mov_b32 v{P0+1}, v{P1+1}",
              f"v_cvt_pk_bf16_f32 v{P1}, v{x}, v{x+1}", f"v_cvt_pk_bf16_f32 v{P1+1}, v{x+2}, v{x+3}"]
        return p

    def v_epilogue(self, head):
        acc, X, P, T = self.acc, self.X, self.P[head], self.T
        p = ["s_nop 3"]
        for ec in range(8):
            a = acc + 4 * ec
            p.append(f"v_cvt_pk_bf16_f32 v{a}, v{a}, v{a+1}")
            p.append(f"v_cvt_pk_bf16_f32 v{a+1}, v{a+2}, v{a+3}")
            if ec:
                a = acc + 4 * (ec - 1)
                p.append(f"v_mfma_f32_16x16x16_bf16 v[{T+4*(ec-1)}:{T+4*(ec-1)+3}], v[{P}:{P+1}], v[{a}:{a+1}], 0")
        a = acc + 28
        p.append("s_nop 0")
        p.append(f"v_mfma_f32_16x16x16_bf16 v[{T+28}:{T+31}], v[{P}:{P+1}], v[{a}:{a+1}], 0")
        p += self.zero() if head == 0 else ["s_nop 4"]
        o = X + 4
        for m in range(4):
            p.append(f"v_cvt_pk_bf16_f32 v{o+m}, v{T+4*(2*m)}, v{T+4*(2*m+1)}")
        off = " offset:1024" if head else ""
        pol = (" " + self.outpol) if self.outpol else ""
        p.append(f"buffer_store_dwordx4 v[{o}:{o+3}], v{self.vK}, s[{SRD_O}:{SRD_O+3}], 0 offen{off}{pol}")
        return p

    def flush(self, kind):
        self.emit(["s_nop 1"] + self.mfmas(kind, range(4, 8)))

    def srd(self, d, ptr, offreg, nrec):
        if offreg is None:
            self.e(f"s_mov_b32 s{d}, s{ptr}")
            self.e(f"s_mov_b32 s{d+1}, s{ptr+1}")
        else:
            self.e(f"s_add_u32 s{d}, s{ptr}, s{offreg}")
            self.e(f"s_addc_u32 s{d+1}, s{ptr+1}, 0")
        self.e(f"s_mov_b32 s{d+2}, {nrec:#x}")
        self.e(f"s_mov_b32 s{d+3}, 0x20000")

    def hooks(self, kind, j, tag):
        fix = post = skip = None
        if j == 0:
            skip = ([f"s_cmp_eq_u32 s{S_CNT}, 32", f"s_cbranch_scc1 L_{tag}_nc"], [f"L_{tag}_nc:"])
        if j == 3 and kind == "K":
            fix = [f"s_cmp_eq_u32 s{S_CNT}, 1", f"s_cbranch_scc0 L_{tag}_nw",
                   f"v_add_u32 v{self.vE}, s{S_PH}, v{self.vE0}", f"L_{tag}_nw:"]
        if j == 3 and kind == "V":
            fix = [f"s_cmp_eq_u32 s{S_CNT}, 29", f"s_cbranch_scc0 L_{tag}_nw",
                   f"v_mov_b32 v{self.vE}, v{self.vE0}", f"L_{tag}_nw:",
                   f"s_cmp_eq_u32 s{S_CNT}, 1", f"s_cbranch_scc0 L_{tag}_nx",
                   f"v_add_u32 v{self.vE}, 8192, v{self.vE0}", f"L_{tag}_nx:"]
        if j == 0 and kind == "K":
            post = [f"s_add_u32 s{S_TMP}, s{S_CNT}, s{S_PH}",
                    f"s_cmp_eq_u32 s{S_TMP}, 8193",
                    f"s_cbranch_scc0 L_{tag}_ns",
                    f"s_mov_b32 s{SRD_D}, s{S_V}",
                    f"s_mov_b32 s{SRD_D+1}, s{S_V+1}",
                    f"s_lshl_b32 s{S_P}, s2, 21",
                    f"s_add_u32 s{S_P2}, s{S_P}, 4096",
                    f"L_{tag}_ns:"]
        return dict(fix=fix, post=post, skip=skip)

    def control(self, tag):
        e = self.e
        if self.nm == 1:
            return
        e(f"s_and_b32 s{S_TMP}, s{S_CNT}, {self.every-1}")
        e(f"s_cbranch_scc1 L_{tag}_sel")
        e(f"v_cmp_le_u32 s[{S_CMP}:{S_CMP+1}], s{S_MARK}, v{self.vH}")
        e(f"s_add_u32 s{S_MARK}, s{S_MARK}, 1")
        e(f"v_mov_b32 v{self.vM}, s{S_MARK}")
        e(f"s_bcnt1_i32_b64 s{S_TMP}, s[{S_CMP}:{S_CMP+1}]")
        e(f"buffer_store_byte v{self.vM}, v{self.vHS}, s[{SRD_H}:{SRD_H+3}], 0 offen")
        e(f"buffer_load_ubyte v{self.vH}, v0, s[{SRD_H}:{SRD_H+3}], 0 offen sc1")
        e(f"s_cmp_ge_u32 s{S_TMP}, {self.th}")
        e(f"s_cselect_b32 s{S_MODE}, 1, 0")
        if self.nm == 3:
            e(f"s_cmp_lt_u32 s{S_TMP}, {self.tl}")
            e(f"s_cselect_b32 s{S_MODE}, 2, s{S_MODE}")
        self.label(f"L_{tag}_sel")
        if tag == "v" and self.endhi:
            e(f"s_sub_u32 s{S_TMP}, s{S_CNT}, s{S_END}")
            e(f"s_mul_i32 s{S_TMP2}, s{S_END}, {self.endhi}")
            e(f"s_cmp_le_u32 s{S_TMP}, s{S_TMP2}")
            e(f"s_cselect_b32 s{S_MODE}, 1, s{S_MODE}")
        if self.diag:
            e(f"s_add_u32 s{S_NHI}, s{S_NHI}, s{S_MODE}")
        for md in range(1, self.nm):
            e(f"s_cmp_eq_u32 s{S_MODE}, {md}")
            e(f"s_cbranch_scc1 L_{tag}m{md}")

    def bodies(self, kind, c0, tag, Ns):
        state = (self.nops, self.done, dict(self.ldidx), dict(self.blk), set(self.freed), self.lastread)
        nmax = max(Ns)
        for md, N in enumerate(Ns):
            self.nops, self.done, self.ldidx, self.blk, self.freed, self.lastread = \
                state[0], state[1], dict(state[2]), dict(state[3]), set(state[4]), state[5]
            self.label(f"L_{tag}m{md}")
            for j in range(4):
                t = f"{tag}{md}_{j}"
                self.tile(c0 + j, kind, N, j=j, tag=t, **self.hooks(kind, j, t))
            if md < len(Ns) - 1:
                self.e(f"s_branch L_{tag}_next")
        self.label(f"L_{tag}_next")
        self.nops, self.done, self.ldidx, self.blk, self.freed, self.lastread = \
            state[0], state[1], dict(state[2]), dict(state[3]), set(state[4]), state[5]

    def replay(self, kind, c_from, c_to, N):
        keep = self.lines
        self.lines = []
        for c in range(c_from, c_to):
            self.tile(c, kind, N, j=c % 4)
        self.lines = keep

    def warmup(self, waits):
        e = self.e
        e(f"s_lshr_b32 s{S_TMP}, s2, 3")
        e(f"s_lshl_b32 s{S_TMP}, s{S_TMP}, 12")
        for i in range(4):
            off = f" offset:{i*1024}" if i else ""
            e(f"buffer_load_dwordx4 a[{4*i}:{3+4*i}], v{self.vK}, s[{SRD_P}:{SRD_P+3}], s{S_TMP} offen{off}")
            if waits:
                self.nops += 1

    def build(self):
        e = self.e
        NK, NV = self.NK, self.NV
        t0, t1 = self.X, self.X + 1
        self.lastread = -1
        e("s_cmp_ge_u32 s2, 256")
        e("s_cbranch_scc1 L_end")
        e("s_load_dwordx16 s[4:19], s[0:1], 0")
        if self.diag:
            e(f"s_memrealtime s[{S_T0}:{S_T0+1}]")
        if self.dbgt:
            e(f"s_memrealtime s[{S_T0}:{S_T0+1}]")
        e(f"v_lshlrev_b32 v{self.vK}, 4, v0")
        e(f"s_lshl_b32 s{S_P}, s2, 21")
        e(f"s_add_u32 s{S_P2}, s{S_P}, 4096")
        e(f"s_mov_b32 s{SRD_D+2}, 0x20000000")
        e(f"s_mov_b32 s{SRD_D+3}, 0x20000")
        e(f"s_mov_b32 s{SRD_P+2}, 0x20000")
        e(f"s_mov_b32 s{SRD_P+3}, 0x20000")
        e(f"s_mov_b32 s{S_PO}, 0")
        e("s_mov_b32 m0, 0")
        e("s_waitcnt lgkmcnt(0)")
        e(f"s_mov_b32 s{SRD_D}, s{S_K}")
        e(f"s_mov_b32 s{SRD_D+1}, s{S_K+1}")
        e(f"s_mov_b32 s{SRD_P}, s{S_E}")
        e(f"s_mov_b32 s{SRD_P+1}, s{S_E+1}")
        NB0 = 20
        for L in range(NB0):
            self.kload(L)
        for p in range(PRE):
            e(self.piece_ins())
            self.note_piece(p)
            if p == 15:
                e(f"s_mov_b32 m0, 1024")
                e(f"s_mov_b32 s{S_PO}, 1024")
            else:
                e(f"s_add_u32 m0, m0, {ROWB}")
                e(f"s_add_u32 s{S_PO}, s{S_PO}, 8192")
        if self.warm:
            self.warmup(True)
        e(f"s_mov_b32 s{S_TMP2}, m0")
        e(f"s_lshl_b32 s{S_TMP}, s2, 11")
        e(f"s_mov_b32 m0, {LDS_Q}")
        self.srd(SRD_Q, S_Q, S_TMP, 0x800)
        e(f"buffer_load_dwordx4 v{self.vK}, s[{SRD_Q}:{SRD_Q+3}], 0 offen lds")
        e(f"buffer_load_dwordx4 v{self.vK}, s[{SRD_Q}:{SRD_Q+3}], 0 offen offset:1024 lds")
        self.nops += 2
        e(f"s_mov_b32 m0, s{S_TMP2}")
        self.srd(SRD_O, S_O, S_TMP, 0x800)
        e(f"v_and_b32 v{t0}, 15, v0")
        e(f"v_lshrrev_b32 v{t1}, 4, v0")
        e(f"v_mul_u32_u24 v{self.vE0}, {ROWB}, v{t0}")
        e(f"v_lshl_add_u32 v{self.vE0}, v{t1}, 4, v{self.vE0}")
        e(f"v_mov_b32 v{self.vE}, v{self.vE0}")
        e(f"v_lshrrev_b32 v{self.vQ}, 2, v{t0}")
        e(f"v_lshlrev_b32 v{self.vQ}, 8, v{self.vQ}")
        e(f"v_lshl_add_u32 v{self.vQ}, v{t1}, 6, v{self.vQ}")
        e(f"v_add_u32 v{self.vQ}, {LDS_Q}, v{self.vQ}")
        e(f"s_mov_b32 s{S_SEL_LO}, 0x05040100")
        e(f"s_mov_b32 s{S_SEL_HI}, 0x07060302")
        e(f"s_mov_b32 s{S_SCALE}, 0x3db504f3")
        e(f"s_mov_b32 s{S_LOG2E}, 0x3fb8aa3b")
        if self.nm > 1:
            self.srd(SRD_H, S_DBG, None, 64)
            e(f"s_getreg_b32 s{S_TMP}, hwreg(HW_REG_HW_ID, 8, 4)")
            e(f"s_getreg_b32 s{S_TMP2}, hwreg(HW_REG_HW_ID, 13, 2)")
            e(f"s_lshl_b32 s{S_TMP2}, s{S_TMP2}, 4")
            e(f"s_or_b32 s{S_TMP}, s{S_TMP}, s{S_TMP2}")
            e(f"v_mov_b32 v{self.vHS}, s{S_TMP}")
            e(f"v_mov_b32 v{self.vH}, 0")
            e(f"s_mov_b32 s{S_MARK}, 1")
            e(f"s_mov_b32 s{S_MODE}, 0")
        if self.diag:
            self.srd(SRD_W, S_WS, None, 0x1000000)
            e(f"s_mov_b32 s{S_NHI}, 0")
        self.emit(self.zero())
        extra = self.nops - NB0
        for L in range(NB0, 24 + self.delta):
            self.wait(NB0 + extra - 1)
            self.kload(L)
        idx = self.blk[0][1]
        self.wait(self.nops - 1 - idx)
        self.check_read(0)
        e(f"ds_read_b128 v[{self.R}:{self.R+3}], v{self.vE}")
        e(f"s_mov_b32 s{S_PH}, 0")
        e(f"s_mov_b32 s{S_END}, {PRE//4}")
        self.label("L_khead")
        e(f"s_mov_b32 s{S_CNT}, 32")
        self.label("L_k")
        e(f"s_cmp_eq_u32 s{S_CNT}, s{S_END}")
        e("s_cbranch_scc0 L_nf")
        e(f"s_mov_b32 s{SRD_P}, s{S_F}")
        e(f"s_mov_b32 s{SRD_P+1}, s{S_F+1}")
        e(f"s_mov_b32 s{S_PO}, 0")
        e(f"s_mov_b32 m0, 8192")
        if self.warm:
            self.warmup(False)
        self.label("L_nf")
        e(f"s_cmp_gt_u32 s{S_CNT}, s{S_END}")
        e("s_cselect_b64 vcc, -1, 0")
        self.control("k")
        self.bodies("K", 0, "k", NK)
        e(f"s_sub_u32 s{S_CNT}, s{S_CNT}, 1")
        e(f"s_cmp_lg_u32 s{S_CNT}, 0")
        e("s_cbranch_scc1 L_k")
        self.flush("K")
        self.emit(self.k_epilogue())
        e(f"s_cmp_eq_u32 s{S_PH}, 0")
        e(f"s_mov_b32 s{S_END}, 0")
        e(f"s_mov_b32 s{S_PH}, 8192")
        e("s_cbranch_scc1 L_khead")
        self.replay("K", 0, 256, max(NK))
        self.label("L_vhead")
        e(f"s_mov_b32 s{S_CNT}, 32")
        self.label("L_v")
        self.control("v")
        self.bodies("V", 256, "v", NV)
        e(f"s_sub_u32 s{S_CNT}, s{S_CNT}, 1")
        e(f"s_cmp_lg_u32 s{S_CNT}, s{S_END}")
        e("s_cbranch_scc1 L_v")
        e(f"s_cmp_eq_u32 s{S_END}, 1")
        e("s_cbranch_scc1 L_tail")
        self.flush("V")
        self.emit(self.v_epilogue(0))
        e(f"s_mov_b32 s{S_END}, 1")
        e("s_branch L_vhead")
        self.label("L_tail")
        self.replay("V", 256, 508, max(NV))
        for c in range(508, 512):
            self.tile(c, "V", max(NV))
        self.flush("V")
        self.emit(self.v_epilogue(1))
        if self.diag:
            e("s_waitcnt vmcnt(0)")
            e(f"s_memrealtime s[{S_T1}:{S_T1+1}]")
            e(f"s_getreg_b32 s{S_TMP2}, hwreg(HW_REG_XCC_ID)")
            e(f"s_and_b32 s{S_TMP2}, s{S_TMP2}, 15")
            e(f"s_lshl_b32 s{S_TMP}, s2, 4")
            e("s_waitcnt lgkmcnt(0)")
            o = self.W
            e(f"v_mov_b32 v{o}, s{S_T0}")
            e(f"v_mov_b32 v{o+1}, s{S_T1}")
            e(f"v_mov_b32 v{o+2}, s{S_TMP2}")
            e(f"s_lshl_b32 s{S_NHI}, s{S_NHI}, 8")
            e(f"v_mov_b32 v{o+3}, s{S_NHI}")
            e(f"v_mov_b32 v{t0}, s{S_TMP}")
            e("s_mov_b64 exec, 1")
            e(f"buffer_store_dwordx4 v[{o}:{o+3}], v{t0}, s[{SRD_W}:{SRD_W+3}], 0 offen")
        if self.dbgt:
            e("s_waitcnt vmcnt(0)")
            e(f"s_memrealtime s[{S_T1}:{S_T1+1}]")
            e("s_waitcnt lgkmcnt(0)")
            e(f"s_sub_u32 s{S_TMP}, s{S_T1}, s{S_T0}")
            e(f"s_not_b32 s{S_T0}, s{S_T0}")
            e(f"s_atomic_umax s{S_T1}, s[{S_DBG}:{S_DBG+1}], 0x0")
            e(f"s_atomic_umax s{S_T0}, s[{S_DBG}:{S_DBG+1}], 0x4")
            e(f"s_atomic_add s{S_TMP}, s[{S_DBG}:{S_DBG+1}], 0x8")
            e("s_waitcnt lgkmcnt(0)")
        self.label("L_end")
        e("s_endpgm")

        out = HEADER
        out += f"; @launch grid=(256,1,1) block=(64,1,1) lds={LDS_BYTES}\n"
        out += '.amdgcn_target "amdgcn-amd-amdhsa--gfx950"\n.text\n'
        out += f".globl {NAME}_kernel\n.p2align 8\n.type {NAME}_kernel,@function\n{NAME}_kernel:\n"
        out += "\n".join(self.lines) + "\n"
        out += '.section .rodata,"a"\n.p2align 6\n'
        out += f".amdhsa_kernel {NAME}_kernel\n"
        out += f"  .amdhsa_next_free_vgpr {self.nv + self.nagpr}\n"
        out += f"  .amdhsa_next_free_sgpr 72\n"
        out += f"  .amdhsa_accum_offset {self.nv}\n"
        out += "  .amdhsa_group_segment_fixed_size 0\n  .amdhsa_kernarg_size 64\n"
        out += "  .amdhsa_user_sgpr_count 2\n  .amdhsa_user_sgpr_kernarg_segment_ptr 1\n"
        out += "  .amdhsa_system_sgpr_workgroup_id_x 1\n"
        out += "  .amdhsa_float_denorm_mode_32 3\n"
        out += ".end_amdhsa_kernel\n"
        return out


if __name__ == "__main__":
    ap = argparse.ArgumentParser()
    tup = lambda s: tuple(int(x) for x in s.split(","))
    ap.add_argument("-o", default=f"cdna_kernels/{NAME}.s")
    ap.add_argument("--NK", type=tup, default=(23, 28))
    ap.add_argument("--NV", type=tup, default=(21, 26))
    ap.add_argument("--delta", type=int, default=6)
    ap.add_argument("--th", type=int, default=24)
    ap.add_argument("--tl", type=int, default=9)
    ap.add_argument("--every", type=int, default=2)
    ap.add_argument("--kpol", default="nt")
    ap.add_argument("--epol", default="")
    ap.add_argument("--outpol", default="")
    ap.add_argument("--sslot", type=int, default=3)
    ap.add_argument("--pslot", type=int, default=2)
    ap.add_argument("--warm", type=int, default=1)
    ap.add_argument("--endhi", type=int, default=0)
    ap.add_argument("--dbgt", action="store_true")
    ap.add_argument("--diag", action="store_true")
    a = ap.parse_args()
    g = Gen12(a.NK, a.NV, a.delta, a.th, a.every, a.kpol, a.epol, a.diag, a.outpol, a.sslot, a.pslot,
              warm=a.warm, tl=a.tl, endhi=a.endhi, dbgt=a.dbgt)
    s = g.build()
    open(a.o, "w").write(s)
    print(f"wrote {a.o}: nv={g.nv} lines={len(g.lines)}")
```

```python
import argparse
from gen import HEADER, NAME

S_Q, S_K, S_V, S_E, S_F, S_O, S_DBG, S_WS = 4, 6, 8, 10, 12, 14, 16, 18
SRD_D, SRD_P, SRD_O, SRD_W, SRD_Q, SRD_H = 20, 24, 28, 32, 56, 60
S_P, S_P2, S_CNT, S_SEL_LO, S_SEL_HI, S_TMP, S_TMP2 = 36, 37, 38, 39, 40, 41, 42
S_SCALE, S_LOG2E, S_END = 43, 44, 45
S_PO, S_PH, S_MARK, S_MODE = 46, 47, 52, 53
S_CMP = 54
S_T0, S_T1 = 48, 50
S_NHI = 68
S_SLOT, S_XCC, S_GM, S_TH = 64, 65, 66, 67
S_MSK, S_CM2, S_XM = 70, 72, 74
ROWB = 9 * 1024 + 16
LDS_Q = 16 * ROWB
LDS_BYTES = LDS_Q + 2048
NB = 4
PRE = 20


class Gen12:
    def __init__(self, NK=(23, 28), NV=(21, 26), delta=6, th=24, every=2, kpol="nt", epol="", diag=False,
                 outpol="", sslot=3, pslot=2, N0=52, warm=1, tl=None, endhi=0, dbgt=False, glob=None, gev=4, par=0):
        self.par = par
        self.gev = gev
        self.glob = glob
        self.dbgt = dbgt
        self.NK, self.NV, self.delta, self.th, self.every = NK, NV, delta, th, every
        self.kpol, self.epol, self.diag, self.outpol = kpol, epol, diag, outpol
        self.sslot, self.pslot, self.N0, self.warm = sslot, pslot, N0, warm
        self.tl, self.endhi = tl, endhi
        self.nm = len(NK)
        self.lines = []
        self.vK, self.vE, self.vQ, self.vE0 = 1, 2, 3, 4
        self.vH, self.vG, self.vM = 5, 10, 11
        self.P = [6, 8]
        self.W, self.R, self.X = 12, 16, 20
        r = 32
        self.T = r; r += 32
        self.acc = r; r += 32
        self.tb = []
        for b in range(NB):
            self.tb.append(r); r += 32
        self.nv = r
        self.nagpr = 16 if warm else 0
        self.nops = 0
        self.done = -1
        self.ldidx = {}
        self.blk = {}
        self.freed = set()

    def e(self, s):
        self.lines.append("    " + s)

    def label(self, s):
        self.lines.append(s + ":")

    def emit(self, ins):
        for s in ins:
            self.lines.append(s if s.endswith(":") else "    " + s)

    def wait(self, n):
        self.e(f"s_waitcnt vmcnt({n})")
        self.done = max(self.done, self.nops - n - 1)

    def kload(self, L):
        tau, k = divmod(L, 8)
        if tau >= NB:
            assert (tau - NB, k >> 1) in self.freed, (tau, k)
        t = self.tb[tau % NB] + 4 * k
        pol = (" " + self.kpol) if self.kpol else ""
        o, so = k * 1024, S_P
        if o >= 4096:
            o -= 4096; so = S_P2
        off = f" offset:{o}" if o else ""
        self.e(f"buffer_load_dwordx4 v[{t}:{t+3}], v{self.vK}, s[{SRD_D}:{SRD_D+3}], s{so} offen{off}{pol}")
        self.ldidx[(tau, k)] = self.nops
        self.nops += 1
        if k == 3:
            self.e(f"s_add_u32 s{S_P}, s{S_P}, 8192")
        if k == 7:
            self.e(f"s_add_u32 s{S_P2}, s{S_P2}, 8192")

    def piece_of(self, c):
        if c < 128 - PRE:
            return PRE + c
        if 128 <= c < 256:
            return c
        return None

    def note_piece(self, p):
        which, b = ("E", p // 16) if p < 128 else ("F", (p - 128) // 16)
        pos = b if which == "E" else (b + 8) % 9
        if p % 16 == 0 and pos in self.blk:
            old = self.blk[pos][0]
            assert old[0] == "E" and self.lastread >= 128 + 16 * old[1] + 15, (p, old, self.lastread)
        self.blk[pos] = ((which, b), self.nops if p % 16 == 15 else 1 << 30)
        self.nops += 1

    def piece_ins(self):
        pol = (" " + self.epol) if self.epol else ""
        return f"buffer_load_dwordx4 v{self.vK}, s[{SRD_P}:{SRD_P+3}], s{S_PO} offen{pol} lds"

    def piece_next(self, j, tag):
        out = [f"s_add_u32 s{S_PO}, s{S_PO}, 8192", f"s_add_u32 m0, m0, {ROWB}"]
        if j == 3:
            out += [f"s_cmp_ge_u32 s{S_PO}, 0x20000", f"s_cbranch_scc0 L_{tag}_np",
                    f"s_sub_u32 s{S_PO}, s{S_PO}, {0x20000-1024}", f"s_sub_u32 m0, m0, {16*ROWB-1024}",
                    f"s_cmp_eq_u32 m0, {9*1024}", f"s_cselect_b32 m0, 0, m0"]
        return out

    def check_read(self, n):
        which, b = ("E" if n < 256 else "F"), (n % 128) // 16
        pos = b if which == "E" else (b + 8) % 9
        content, idx = self.blk[pos]
        assert content == (which, b) and idx <= self.done, (n, content, idx, self.done)

    def perms(self, c, m, half):
        t = self.tb[c % NB]
        out = []
        for ec in range(4 * half, 4 * half + 4):
            sel = S_SEL_HI if ec & 1 else S_SEL_LO
            cc = ec >> 1
            out.append(f"v_perm_b32 v{self.T+4*ec+m}, v{t+4*(2*m+1)+cc}, v{t+4*(2*m)+cc}, s{sel}")
        return out

    def mfmas(self, kind, es):
        W = self.W
        out = []
        for ec in es:
            a, tm = self.acc + 4 * ec, self.T + 4 * ec
            x, y = f"v[{tm}:{tm+3}]", f"v[{W}:{W+3}]"
            if kind == "V":
                x, y = y, x
            out.append(f"v_mfma_f32_16x16x32_bf16 v[{a}:{a+3}], {x}, {y}, v[{a}:{a+3}]")
        return out

    def shuffle(self, fix, nxt=True):
        W, R = self.W, self.R
        g = ["s_waitcnt lgkmcnt(0)",
             f"v_perm_b32 v{W}, v{R+2}, v{R}, s{S_SEL_LO}",
             f"v_perm_b32 v{W+2}, v{R+3}, v{R+1}, s{S_SEL_LO}",
             f"v_perm_b32 v{W+1}, v{R+2}, v{R}, s{S_SEL_HI}",
             f"v_perm_b32 v{W+3}, v{R+3}, v{R+1}, s{S_SEL_HI}",
             f"v_permlane32_swap_b32 v{W}, v{W+2}"]
        g += [f"v_add_u32 v{self.vE}, 64, v{self.vE}" if nxt else "s_nop 0"]
        g += [f"v_permlane32_swap_b32 v{W+1}, v{W+3}"]
        if fix:
            g += fix
        g += [f"ds_read_b128 v[{R}:{R+3}], v{self.vE}" if nxt else "s_nop 0"]
        g2 = [f"v_permlane16_swap_b32 v{W}, v{W+1}", f"v_permlane16_swap_b32 v{W+2}, v{W+3}"]
        return g, g2

    def tile(self, c, kind, N, j=0, fix=None, post=None, skip=None, tag="x", carry=True):
        nxt = c + 1 < 512
        late = []
        for i in range(8):
            m, half = i >> 1, i & 1
            if kind == "K" and i == self.pslot:
                p = self.piece_of(c)
                self.e(f"s_cbranch_vccz L_{tag}_np")
                if p is not None:
                    self.wait(N - 1)
                    self.note_piece(p)
                else:
                    self.e(f"s_waitcnt vmcnt({N-1})")
                self.e(self.piece_ins())
                self.emit(self.piece_next(j, tag))
                self.label(f"L_{tag}_np")
            L = 8 * (c + 3) + i + self.delta
            if L < 4096:
                self.wait(N - 1)
                self.kload(L)
                if L % 8 == 7 and post:
                    self.emit(post)
            idx = self.ldidx[(c, 2 * m + 1)]
            if L >= 4096 and idx > self.done:
                self.wait(self.nops - 1 - idx)
            assert idx <= self.done, (c, i)
            pm = self.perms(c, m, half)
            if i == 0 and carry:
                mf = self.mfmas(kind, range(4, 8))
                if skip:
                    self.emit(skip[0] + mf + skip[1] + pm)
                else:
                    for a, b in zip(mf, pm):
                        self.emit([a, b])
            elif i == 7:
                for a, b in zip(self.mfmas(kind, range(4)), pm):
                    self.emit([a, b])
            else:
                self.emit(pm)
            if half:
                self.freed.add((c, m))
            if late:
                self.emit(late)
                late = []
            if i == self.sslot:
                self.lastread = c
                if nxt:
                    self.check_read(c + 1)
                g, late = self.shuffle(fix, nxt)
                self.emit(g)

    def xlane(self, op, a, b):
        return [f"v_mov_b32 v{b}, v{a}", "s_nop 1", f"v_permlane16_swap_b32 v{a}, v{b}", "s_nop 1",
                f"{op} v{a}, v{a}, v{b}",
                f"v_mov_b32 v{b}, v{a}", "s_nop 1", f"v_permlane32_swap_b32 v{a}, v{b}", "s_nop 1",
                f"{op} v{a}, v{a}, v{b}"]

    def zero(self):
        return [f"v_mov_b32 v{self.acc+i}, 0" for i in range(32)]

    def k_epilogue(self):
        acc, X, T = self.acc, self.X, self.T
        S = X
        A = [X + 4, X + 8]
        p = ["s_nop 3"]
        p += [f"ds_read_b128 v[{T+4*g}:{T+4*g+3}], v{self.vQ} offset:{g*16}" for g in range(4)]
        for g in range(4):
            a = A[g & 1]
            for m in range(4):
                p.append(f"v_cvt_pk_bf16_f32 v{a+m}, v{acc+4*(2*m)+g}, v{acc+4*(2*m+1)+g}")
            p += ["s_waitcnt lgkmcnt(0)", "s_nop 0"] if g == 0 else ["s_nop 1"]
            c = "0" if g == 0 else f"v[{S}:{S+3}]"
            p.append(f"v_mfma_f32_16x16x32_bf16 v[{S}:{S+3}], v[{a}:{a+3}], v[{T+4*g}:{T+4*g+3}], {c}")
        p += self.zero()
        p += [f"v_add_u32 v{self.vQ}, 1024, v{self.vQ}"]
        x = X + 4
        p += [f"v_cvt_pk_bf16_f32 v{x+4}, v{S}, v{S+1}", f"v_cvt_pk_bf16_f32 v{x+5}, v{S+2}, v{S+3}"]
        unpack = [f"v_lshlrev_b32 v{x+0}, 16, v{x+4}", f"v_and_b32 v{x+1}, 0xffff0000, v{x+4}",
                  f"v_lshlrev_b32 v{x+2}, 16, v{x+5}", f"v_and_b32 v{x+3}, 0xffff0000, v{x+5}"]
        p += unpack
        p += [f"v_mul_f32 v{x+i}, s{S_SCALE}, v{x+i}" for i in range(4)]
        p += [f"v_cvt_pk_bf16_f32 v{x+4}, v{x}, v{x+1}", f"v_cvt_pk_bf16_f32 v{x+5}, v{x+2}, v{x+3}"]
        p += unpack
        p += [f"v_max3_f32 v{x+6}, v{x}, v{x+1}, v{x+2}", f"v_max_f32 v{x+6}, v{x+6}, v{x+3}"]
        p += self.xlane("v_max_f32", x + 6, x + 7)
        p += [f"v_sub_f32 v{x+i}, v{x+i}, v{x+6}" for i in range(4)]
        p += [f"v_mul_f32 v{x+i}, s{S_LOG2E}, v{x+i}" for i in range(4)]
        p += [f"v_exp_f32 v{x+i}, v{x+i}" for i in range(4)]
        p += ["s_nop 0", f"v_add_f32 v{x+6}, v{x}, v{x+1}", f"v_add_f32 v{x+7}, v{x+2}, v{x+3}",
              f"v_add_f32 v{x+6}, v{x+6}, v{x+7}"]
        p += self.xlane("v_add_f32", x + 6, x + 7)
        p += [f"v_rcp_f32 v{x+6}, v{x+6}", "s_nop 0"]
        p += [f"v_mul_f32 v{x+i}, v{x+i}, v{x+6}" for i in range(4)]
        P0, P1 = self.P
        p += [f"v_mov_b32 v{P0}, v{P1}", f"v_mov_b32 v{P0+1}, v{P1+1}",
              f"v_cvt_pk_bf16_f32 v{P1}, v{x}, v{x+1}", f"v_cvt_pk_bf16_f32 v{P1+1}, v{x+2}, v{x+3}"]
        return p

    def v_epilogue(self, head):
        acc, X, P, T = self.acc, self.X, self.P[head], self.T
        p = ["s_nop 3"]
        for ec in range(8):
            a = acc + 4 * ec
            p.append(f"v_cvt_pk_bf16_f32 v{a}, v{a}, v{a+1}")
            p.append(f"v_cvt_pk_bf16_f32 v{a+1}, v{a+2}, v{a+3}")
            if ec:
                a = acc + 4 * (ec - 1)
                p.append(f"v_mfma_f32_16x16x16_bf16 v[{T+4*(ec-1)}:{T+4*(ec-1)+3}], v[{P}:{P+1}], v[{a}:{a+1}], 0")
        a = acc + 28
        p.append("s_nop 0")
        p.append(f"v_mfma_f32_16x16x16_bf16 v[{T+28}:{T+31}], v[{P}:{P+1}], v[{a}:{a+1}], 0")
        p += self.zero() if head == 0 else ["s_nop 4"]
        o = X + 4
        for m in range(4):
            p.append(f"v_cvt_pk_bf16_f32 v{o+m}, v{T+4*(2*m)}, v{T+4*(2*m+1)}")
        off = " offset:1024" if head else ""
        pol = (" " + self.outpol) if self.outpol else ""
        p.append(f"buffer_store_dwordx4 v[{o}:{o+3}], v{self.vK}, s[{SRD_O}:{SRD_O+3}], 0 offen{off}{pol}")
        return p

    def flush(self, kind):
        self.emit(["s_nop 1"] + self.mfmas(kind, range(4, 8)))

    def srd(self, d, ptr, offreg, nrec):
        if offreg is None:
            self.e(f"s_mov_b32 s{d}, s{ptr}")
            self.e(f"s_mov_b32 s{d+1}, s{ptr+1}")
        else:
            self.e(f"s_add_u32 s{d}, s{ptr}, s{offreg}")
            self.e(f"s_addc_u32 s{d+1}, s{ptr+1}, 0")
        self.e(f"s_mov_b32 s{d+2}, {nrec:#x}")
        self.e(f"s_mov_b32 s{d+3}, 0x20000")

    def hooks(self, kind, j, tag):
        fix = post = skip = None
        if j == 0:
            skip = ([f"s_cmp_eq_u32 s{S_CNT}, 32", f"s_cbranch_scc1 L_{tag}_nc"], [f"L_{tag}_nc:"])
        if j == 3 and kind == "K":
            fix = [f"s_cmp_eq_u32 s{S_CNT}, 1", f"s_cbranch_scc0 L_{tag}_nw",
                   f"v_add_u32 v{self.vE}, s{S_PH}, v{self.vE0}", f"L_{tag}_nw:"]
        if j == 3 and kind == "V":
            fix = [f"s_cmp_eq_u32 s{S_CNT}, 29", f"s_cbranch_scc0 L_{tag}_nw",
                   f"v_mov_b32 v{self.vE}, v{self.vE0}", f"L_{tag}_nw:",
                   f"s_cmp_eq_u32 s{S_CNT}, 1", f"s_cbranch_scc0 L_{tag}_nx",
                   f"v_add_u32 v{self.vE}, 8192, v{self.vE0}", f"L_{tag}_nx:"]
        if j == 0 and kind == "K":
            post = [f"s_add_u32 s{S_TMP}, s{S_CNT}, s{S_PH}",
                    f"s_cmp_eq_u32 s{S_TMP}, 8193",
                    f"s_cbranch_scc0 L_{tag}_ns",
                    f"s_mov_b32 s{SRD_D}, s{S_V}",
                    f"s_mov_b32 s{SRD_D+1}, s{S_V+1}",
                    f"s_lshl_b32 s{S_P}, s2, 21",
                    f"s_add_u32 s{S_P2}, s{S_P}, 4096",
                    f"L_{tag}_ns:"]
        return dict(fix=fix, post=post, skip=skip)

    def control(self, tag):
        e = self.e
        if self.nm == 1:
            return
        e(f"s_and_b32 s{S_TMP}, s{S_CNT}, {self.every-1}")
        e(f"s_cbranch_scc1 L_{tag}_sel")
        H = f"s[{SRD_H}:{SRD_H+3}]"
        e(f"v_cmp_le_u32 s[{S_CMP}:{S_CMP+1}], s{S_MARK}, v{self.vH}")
        if self.glob:
            e(f"v_cmp_ne_u32 s[{S_CM2}:{S_CM2+1}], 0, v{self.vH}")
            e(f"v_readlane_b32 s{S_TH}, v{self.vH}, 15")
        e(f"s_add_u32 s{S_MARK}, s{S_MARK}, 1")
        e(f"v_mov_b32 v{self.vM}, s{S_MARK}")
        if self.glob:
            e(f"s_and_b64 s[{S_CMP}:{S_CMP+1}], s[{S_CMP}:{S_CMP+1}], s[{S_MSK}:{S_MSK+1}]")
        e(f"s_bcnt1_i32_b64 s{S_TMP}, s[{S_CMP}:{S_CMP+1}]")
        e(f"buffer_store_byte v{self.vM}, off, {H}, s{S_SLOT}")
        e(f"buffer_load_ubyte v{self.vH}, v0, {H}, 0 offen sc1")
        if self.glob:
            A, B = self.glob
            e(f"s_cmp_eq_u32 s{S_TH}, 0")
            e(f"s_cselect_b32 s{S_TH}, {self.th}, s{S_TH}")
            e(f"s_cmp_ge_u32 s{S_TMP}, s{S_TH}")
            e(f"s_cselect_b32 s{S_MODE}, 1, 0")
            e(f"s_and_b64 s[{S_CM2}:{S_CM2+1}], s[{S_CM2}:{S_CM2+1}], s[{S_MSK}:{S_MSK+1}]")
            e(f"s_ff1_i32_b64 s{S_TMP2}, s[{S_CM2}:{S_CM2+1}]")
            e(f"s_cmp_eq_u32 s{S_TMP2}, s{S_SLOT}")
            e(f"s_cbranch_scc0 L_{tag}_sel")
            if self.gev > 1:
                e(f"s_and_b32 s{S_TMP2}, s{S_MARK}, {self.gev-1}")
                e(f"s_cbranch_scc1 L_{tag}_sel")
            e(f"v_cmp_le_u32 s[{S_CM2}:{S_CM2+1}], s{S_GM}, v{self.vG}")
            e(f"v_cndmask_b32 v{self.vG}, 0, v{self.vM}, s[{S_XM}:{S_XM+1}]")
            e(f"s_bcnt1_i32_b64 s{S_TMP2}, s[{S_CM2}:{S_CM2+1}]")
            e(f"s_cmp_eq_u32 s{S_GM}, 255")
            e(f"buffer_atomic_umax v{self.vG}, v{self.vK}, {H}, 0 offen offset:128 sc0")
            e(f"s_mov_b32 s{S_GM}, s{S_MARK}")
            e(f"s_cbranch_scc1 L_{tag}_sel")
            e(f"s_mul_i32 s{S_TMP2}, s{S_TMP2}, {B}")
            e(f"s_sub_u32 s{S_TMP2}, {A}, s{S_TMP2}")
            e(f"v_mov_b32 v{self.X+11}, s{S_TMP2}")
            e(f"buffer_store_byte v{self.X+11}, off, {H}, 0 offset:15")
        else:
            e(f"s_cmp_ge_u32 s{S_TMP}, s{S_TH}")
            e(f"s_cselect_b32 s{S_MODE}, 1, 0")
        if self.nm == 3:
            e(f"s_cmp_lt_u32 s{S_TMP}, {self.tl}")
            e(f"s_cselect_b32 s{S_MODE}, 2, s{S_MODE}")
        self.label(f"L_{tag}_sel")
        if tag == "v" and self.endhi:
            e(f"s_sub_u32 s{S_TMP}, s{S_CNT}, s{S_END}")
            e(f"s_mul_i32 s{S_TMP2}, s{S_END}, {self.endhi}")
            e(f"s_cmp_le_u32 s{S_TMP}, s{S_TMP2}")
            e(f"s_cselect_b32 s{S_MODE}, 1, s{S_MODE}")
        if self.diag:
            e(f"s_add_u32 s{S_NHI}, s{S_NHI}, s{S_MODE}")
        for md in range(1, self.nm):
            e(f"s_cmp_eq_u32 s{S_MODE}, {md}")
            e(f"s_cbranch_scc1 L_{tag}m{md}")

    def bodies(self, kind, c0, tag, Ns):
        state = (self.nops, self.done, dict(self.ldidx), dict(self.blk), set(self.freed), self.lastread)
        nmax = max(Ns)
        for md, N in enumerate(Ns):
            self.nops, self.done, self.ldidx, self.blk, self.freed, self.lastread = \
                state[0], state[1], dict(state[2]), dict(state[3]), set(state[4]), state[5]
            self.label(f"L_{tag}m{md}")
            for j in range(4):
                t = f"{tag}{md}_{j}"
                self.tile(c0 + j, kind, N, j=j, tag=t, **self.hooks(kind, j, t))
            if md < len(Ns) - 1:
                self.e(f"s_branch L_{tag}_next")
        self.label(f"L_{tag}_next")
        self.nops, self.done, self.ldidx, self.blk, self.freed, self.lastread = \
            state[0], state[1], dict(state[2]), dict(state[3]), set(state[4]), state[5]

    def replay(self, kind, c_from, c_to, N):
        keep = self.lines
        self.lines = []
        for c in range(c_from, c_to):
            self.tile(c, kind, N, j=c % 4)
        self.lines = keep

    def warmup(self, waits):
        e = self.e
        e(f"s_lshr_b32 s{S_TMP}, s2, 3")
        e(f"s_lshl_b32 s{S_TMP}, s{S_TMP}, 12")
        for i in range(4):
            off = f" offset:{i*1024}" if i else ""
            e(f"buffer_load_dwordx4 a[{4*i}:{3+4*i}], v{self.vK}, s[{SRD_P}:{SRD_P+3}], s{S_TMP} offen{off}")
            if waits:
                self.nops += 1

    def build(self):
        e = self.e
        NK, NV = self.NK, self.NV
        t0, t1 = self.X, self.X + 1
        self.lastread = -1
        e("s_cmp_ge_u32 s2, 256")
        e("s_cbranch_scc1 L_end")
        e("s_load_dwordx16 s[4:19], s[0:1], 0")
        if self.diag:
            e(f"s_memrealtime s[{S_T0}:{S_T0+1}]")
        if self.dbgt:
            e(f"s_memrealtime s[{S_T0}:{S_T0+1}]")
        e(f"v_lshlrev_b32 v{self.vK}, 4, v0")
        e(f"s_lshl_b32 s{S_P}, s2, 21")
        e(f"s_add_u32 s{S_P2}, s{S_P}, 4096")
        e(f"s_mov_b32 s{SRD_D+2}, 0x20000000")
        e(f"s_mov_b32 s{SRD_D+3}, 0x20000")
        e(f"s_mov_b32 s{SRD_P+2}, 0x20000")
        e(f"s_mov_b32 s{SRD_P+3}, 0x20000")
        e(f"s_mov_b32 s{S_PO}, 0")
        e("s_mov_b32 m0, 0")
        e("s_waitcnt lgkmcnt(0)")
        e(f"s_mov_b32 s{SRD_D}, s{S_K}")
        e(f"s_mov_b32 s{SRD_D+1}, s{S_K+1}")
        e(f"s_mov_b32 s{SRD_P}, s{S_E}")
        e(f"s_mov_b32 s{SRD_P+1}, s{S_E+1}")
        NB0 = 20
        for L in range(NB0):
            self.kload(L)
        for p in range(PRE):
            e(self.piece_ins())
            self.note_piece(p)
            if p == 15:
                e(f"s_mov_b32 m0, 1024")
                e(f"s_mov_b32 s{S_PO}, 1024")
            else:
                e(f"s_add_u32 m0, m0, {ROWB}")
                e(f"s_add_u32 s{S_PO}, s{S_PO}, 8192")
        if self.warm:
            self.warmup(True)
        e(f"s_mov_b32 s{S_TMP2}, m0")
        e(f"s_lshl_b32 s{S_TMP}, s2, 11")
        e(f"s_mov_b32 m0, {LDS_Q}")
        self.srd(SRD_Q, S_Q, S_TMP, 0x800)
        e(f"buffer_load_dwordx4 v{self.vK}, s[{SRD_Q}:{SRD_Q+3}], 0 offen lds")
        e(f"buffer_load_dwordx4 v{self.vK}, s[{SRD_Q}:{SRD_Q+3}], 0 offen offset:1024 lds")
        self.nops += 2
        e(f"s_mov_b32 m0, s{S_TMP2}")
        self.srd(SRD_O, S_O, S_TMP, 0x800)
        e(f"v_and_b32 v{t0}, 15, v0")
        e(f"v_lshrrev_b32 v{t1}, 4, v0")
        e(f"v_mul_u32_u24 v{self.vE0}, {ROWB}, v{t0}")
        e(f"v_lshl_add_u32 v{self.vE0}, v{t1}, 4, v{self.vE0}")
        e(f"v_mov_b32 v{self.vE}, v{self.vE0}")
        e(f"v_lshrrev_b32 v{self.vQ}, 2, v{t0}")
        e(f"v_lshlrev_b32 v{self.vQ}, 8, v{self.vQ}")
        e(f"v_lshl_add_u32 v{self.vQ}, v{t1}, 6, v{self.vQ}")
        e(f"v_add_u32 v{self.vQ}, {LDS_Q}, v{self.vQ}")
        e(f"s_mov_b32 s{S_SEL_LO}, 0x05040100")
        e(f"s_mov_b32 s{S_SEL_HI}, 0x07060302")
        e(f"s_mov_b32 s{S_SCALE}, 0x3db504f3")
        e(f"s_mov_b32 s{S_LOG2E}, 0x3fb8aa3b")
        if self.nm > 1:
            self.srd(SRD_H, S_DBG, None, 256)
            e(f"s_getreg_b32 s{S_TMP}, hwreg(HW_REG_HW_ID, 8, 4)")
            e(f"s_getreg_b32 s{S_TMP2}, hwreg(HW_REG_HW_ID, 13, 2)")
            e(f"s_getreg_b32 s{S_XCC}, hwreg(HW_REG_XCC_ID, 0, 3)")
            e(f"s_lshl_b32 s{S_TMP2}, s{S_TMP2}, 4")
            e(f"s_or_b32 s{S_SLOT}, s{S_TMP}, s{S_TMP2}")
            e(f"s_mov_b32 s{S_MSK}, 0x7fff7fff")
            e(f"s_mov_b32 s{S_MSK+1}, 0x7fff7fff")
            e(f"s_bitcmp1_b32 s{S_XCC}, 0")
            e(f"s_cselect_b32 s{S_TH}, {self.th + self.par}, {self.th - self.par}")
            e(f"s_mov_b32 s{S_GM}, 255")
            e(f"s_lshl_b64 s[{S_XM}:{S_XM+1}], 1, s{S_XCC}")
            e(f"v_mov_b32 v{self.vG}, 0")
            e(f"v_mov_b32 v{self.vH}, 0")
            e(f"s_mov_b32 s{S_MARK}, 1")
            e(f"s_mov_b32 s{S_MODE}, 0")
        if self.diag:
            self.srd(SRD_W, S_WS, None, 0x1000000)
            e(f"s_mov_b32 s{S_NHI}, 0")
        self.emit(self.zero())
        extra = self.nops - NB0
        for L in range(NB0, 24 + self.delta):
            self.wait(NB0 + extra - 1)
            self.kload(L)
        idx = self.blk[0][1]
        self.wait(self.nops - 1 - idx)
        self.check_read(0)
        e(f"ds_read_b128 v[{self.R}:{self.R+3}], v{self.vE}")
        e(f"s_mov_b32 s{S_PH}, 0")
        e(f"s_mov_b32 s{S_END}, {PRE//4}")
        self.label("L_khead")
        e(f"s_mov_b32 s{S_CNT}, 32")
        self.label("L_k")
        e(f"s_cmp_eq_u32 s{S_CNT}, s{S_END}")
        e("s_cbranch_scc0 L_nf")
        e(f"s_mov_b32 s{SRD_P}, s{S_F}")
        e(f"s_mov_b32 s{SRD_P+1}, s{S_F+1}")
        e(f"s_mov_b32 s{S_PO}, 0")
        e(f"s_mov_b32 m0, 8192")
        if self.warm:
            self.warmup(False)
        self.label("L_nf")
        e(f"s_cmp_gt_u32 s{S_CNT}, s{S_END}")
        e("s_cselect_b64 vcc, -1, 0")
        self.control("k")
        self.bodies("K", 0, "k", NK)
        e(f"s_sub_u32 s{S_CNT}, s{S_CNT}, 1")
        e(f"s_cmp_lg_u32 s{S_CNT}, 0")
        e("s_cbranch_scc1 L_k")
        self.flush("K")
        self.emit(self.k_epilogue())
        e(f"s_cmp_eq_u32 s{S_PH}, 0")
        e(f"s_mov_b32 s{S_END}, 0")
        e(f"s_mov_b32 s{S_PH}, 8192")
        e("s_cbranch_scc1 L_khead")
        self.replay("K", 0, 256, max(NK))
        self.label("L_vhead")
        e(f"s_mov_b32 s{S_CNT}, 32")
        self.label("L_v")
        self.control("v")
        self.bodies("V", 256, "v", NV)
        e(f"s_sub_u32 s{S_CNT}, s{S_CNT}, 1")
        e(f"s_cmp_lg_u32 s{S_CNT}, s{S_END}")
        e("s_cbranch_scc1 L_v")
        e(f"s_cmp_eq_u32 s{S_END}, 1")
        e("s_cbranch_scc1 L_tail")
        self.flush("V")
        self.emit(self.v_epilogue(0))
        e(f"s_mov_b32 s{S_END}, 1")
        e("s_branch L_vhead")
        self.label("L_tail")
        self.replay("V", 256, 508, max(NV))
        for c in range(508, 512):
            self.tile(c, "V", max(NV))
        self.flush("V")
        self.emit(self.v_epilogue(1))
        if self.diag:
            e("s_waitcnt vmcnt(0)")
            e(f"s_memrealtime s[{S_T1}:{S_T1+1}]")
            e(f"s_getreg_b32 s{S_TMP2}, hwreg(HW_REG_XCC_ID)")
            e(f"s_and_b32 s{S_TMP2}, s{S_TMP2}, 15")
            e(f"s_lshl_b32 s{S_TMP}, s2, 4")
            e("s_waitcnt lgkmcnt(0)")
            o = self.W
            e(f"v_mov_b32 v{o}, s{S_T0}")
            e(f"v_mov_b32 v{o+1}, s{S_T1}")
            e(f"v_mov_b32 v{o+2}, s{S_TMP2}")
            e(f"s_lshl_b32 s{S_NHI}, s{S_NHI}, 8")
            e(f"v_mov_b32 v{o+3}, s{S_NHI}")
            e(f"v_mov_b32 v{t0}, s{S_TMP}")
            e("s_mov_b64 exec, 1")
            e(f"buffer_store_dwordx4 v[{o}:{o+3}], v{t0}, s[{SRD_W}:{SRD_W+3}], 0 offen")
        if self.dbgt:
            e("s_waitcnt vmcnt(0)")
            e(f"s_memrealtime s[{S_T1}:{S_T1+1}]")
            e("s_waitcnt lgkmcnt(0)")
            e(f"s_sub_u32 s{S_TMP}, s{S_T1}, s{S_T0}")
            e(f"s_not_b32 s{S_T0}, s{S_T0}")
            e(f"s_atomic_umax s{S_T1}, s[{S_DBG}:{S_DBG+1}], 0x0")
            e(f"s_atomic_umax s{S_T0}, s[{S_DBG}:{S_DBG+1}], 0x4")
            e(f"s_atomic_add s{S_TMP}, s[{S_DBG}:{S_DBG+1}], 0x8")
            e("s_waitcnt lgkmcnt(0)")
        self.label("L_end")
        e("s_endpgm")

        out = HEADER
        out += f"; @launch grid=(256,1,1) block=(64,1,1) lds={LDS_BYTES}\n"
        out += '.amdgcn_target "amdgcn-amd-amdhsa--gfx950"\n.text\n'
        out += f".globl {NAME}_kernel\n.p2align 8\n.type {NAME}_kernel,@function\n{NAME}_kernel:\n"
        out += "\n".join(self.lines) + "\n"
        out += '.section .rodata,"a"\n.p2align 6\n'
        out += f".amdhsa_kernel {NAME}_kernel\n"
        out += f"  .amdhsa_next_free_vgpr {self.nv + self.nagpr}\n"
        out += f"  .amdhsa_next_free_sgpr 80\n"
        out += f"  .amdhsa_accum_offset {self.nv}\n"
        out += "  .amdhsa_group_segment_fixed_size 0\n  .amdhsa_kernarg_size 64\n"
        out += "  .amdhsa_user_sgpr_count 2\n  .amdhsa_user_sgpr_kernarg_segment_ptr 1\n"
        out += "  .amdhsa_system_sgpr_workgroup_id_x 1\n"
        out += "  .amdhsa_float_denorm_mode_32 3\n"
        out += ".end_amdhsa_kernel\n"
        return out


if __name__ == "__main__":
    ap = argparse.ArgumentParser()
    tup = lambda s: tuple(int(x) for x in s.split(","))
    ap.add_argument("-o", default=f"cdna_kernels/{NAME}.s")
    ap.add_argument("--NK", type=tup, default=(23, 28))
    ap.add_argument("--NV", type=tup, default=(21, 26))
    ap.add_argument("--delta", type=int, default=6)
    ap.add_argument("--th", type=int, default=24)
    ap.add_argument("--tl", type=int, default=9)
    ap.add_argument("--every", type=int, default=2)
    ap.add_argument("--kpol", default="nt")
    ap.add_argument("--epol", default="")
    ap.add_argument("--outpol", default="")
    ap.add_argument("--sslot", type=int, default=3)
    ap.add_argument("--pslot", type=int, default=2)
    ap.add_argument("--warm", type=int, default=1)
    ap.add_argument("--endhi", type=int, default=0)
    ap.add_argument("--dbgt", action="store_true")
    ap.add_argument("--par", type=int, default=0)
    ap.add_argument("--gev", type=int, default=4)
    ap.add_argument("--glob", type=tup, default=None)
    ap.add_argument("--diag", action="store_true")
    a = ap.parse_args()
    g = Gen12(a.NK, a.NV, a.delta, a.th, a.every, a.kpol, a.epol, a.diag, a.outpol, a.sslot, a.pslot,
              warm=a.warm, tl=a.tl, endhi=a.endhi, dbgt=a.dbgt, glob=a.glob, gev=a.gev, par=a.par)
    s = g.build()
    open(a.o, "w").write(s)
    print(f"wrote {a.o}: nv={g.nv} lines={len(g.lines)}")
```

```python
import argparse
from gen import HEADER, NAME

S_Q, S_K, S_V, S_E, S_F, S_O, S_DBG, S_WS = 4, 6, 8, 10, 12, 14, 16, 18
SRD_D, SRD_P, SRD_O, SRD_W, SRD_Q, SRD_H = 20, 24, 28, 32, 56, 60
S_P, S_P2, S_CNT, S_SEL_LO, S_SEL_HI, S_TMP, S_TMP2 = 36, 37, 38, 39, 40, 41, 42
S_SCALE, S_LOG2E, S_END = 43, 44, 45
S_PO, S_PH, S_MARK, S_MODE = 46, 47, 52, 53
S_CMP = 54
S_T0, S_T1 = 48, 50
S_NHI = 68
S_SLOT, S_XCC, S_GM, S_TH = 64, 65, 66, 67
S_MSK, S_CM2, S_XM = 70, 72, 74
ROWB = 9 * 1024 + 16
LDS_Q = 16 * ROWB
LDS_BYTES = LDS_Q + 2048
NB = 4
PRE = 20


class Gen13:
    def __init__(self, NK=(23, 28), NV=(21, 26), delta=6, th=24, every=2, kpol="nt", epol="", diag=False,
                 outpol="", sslot=3, pslot=2, N0=52, warm=1, tl=None, endhi=0, dbgt=False, glob=None, gev=4, par=0, codewarm=False, pat='lin', D=32768, ts=False, nopiece=False, nocomp=False, efirst=0, e0pol='', NB0=20, vtlb=True, NP=2):
        self.vtlb, self.NP = vtlb, NP
        self.efirst, self.e0pol, self.NB0 = efirst, e0pol, NB0
        self.ts, self.nopiece, self.nocomp = ts, nopiece, nocomp
        self.pat, self.D = pat, D
        self.codewarm = codewarm
        self.par = par
        self.gev = gev
        self.glob = glob
        self.dbgt = dbgt
        self.NK, self.NV, self.delta, self.th, self.every = NK, NV, delta, th, every
        self.kpol, self.epol, self.diag, self.outpol = kpol, epol, diag, outpol
        self.sslot, self.pslot, self.N0, self.warm = sslot, pslot, N0, warm
        self.tl, self.endhi = tl, endhi
        self.nm = len(NK)
        self.lines = []
        self.vK, self.vE, self.vQ, self.vE0 = 1, 2, 3, 4
        self.vH, self.vG, self.vM = 5, 10, 11
        self.P = [6, 8]
        self.W, self.R, self.X = 12, 16, 20
        r = 32
        self.T = r; r += 32
        self.acc = r; r += 32
        self.tb = []
        for b in range(NB):
            self.tb.append(r); r += 32
        self.QR, self.A = r, r + 16
        r += 32
        self.nv = r
        self.nagpr = 16 if warm else 0
        self.nops = 0
        self.done = -1
        self.ldidx = {}
        self.blk = {}
        self.freed = set()

    def e(self, s):
        self.lines.append("    " + s)

    def label(self, s):
        self.lines.append(s + ":")

    def emit(self, ins):
        for s in ins:
            if self.nocomp and s.startswith(("v_perm", "v_mfma")):
                continue
            self.lines.append(s if s.endswith(":") else "    " + s)

    def wait(self, n):
        self.e(f"s_waitcnt vmcnt({n})")
        self.done = max(self.done, self.nops - n - 1)

    def aoff(self, t):
        D = self.D
        if self.pat == "lin":
            return t * 8192
        if self.pat == "h":
            nb = D // 4096
            return (t // nb) * 2 * D + (t % nb) * 4096
        nb = 2 * D // 8192
        return (t // nb) * 2 * D + (t & 1) * D + ((t % nb) >> 1) * 8192

    def boff(self):
        return self.D if self.pat == "h" else 4096

    def nblk(self):
        return {"lin": 4, "h": self.D // 4096, "big": 2 * self.D // 8192}[self.pat]

    def step(self, reg, tau, second):
        inc = self.aoff(tau % 4 + 1) - self.aoff(tau % 4) if (tau % 4 != 3 or self.nblk() > 4) else \
            self.aoff(4) - self.aoff(3)
        if inc >= 0:
            self.e(f"s_add_u32 s{reg}, s{reg}, {inc}")
        else:
            self.e(f"s_sub_u32 s{reg}, s{reg}, {-inc}")
        if tau % 4 == 3 and self.nblk() > 4:
            low = (self.boff() if second else 0) & (self.D - 1)
            self.e(f"s_and_b32 s{S_TMP}, s{reg}, {self.D-1}")
            self.e(f"s_cmp_eq_u32 s{S_TMP}, {low}")
            self.e(f"s_cselect_b32 s{S_TMP}, {self.D}, 0")
            self.e(f"s_add_u32 s{reg}, s{reg}, s{S_TMP}")

    def estep(self, c):
        vE = self.vE
        j = c % 4
        nb = self.nblk()
        inc = (self.aoff(j + 1) - self.aoff(j)) // 128
        if j == 3 and nb > 4:
            q = nb // 4
            return [f"s_and_b32 s{S_TMP}, s{S_CNT}, {q-1}", f"s_cmp_eq_u32 s{S_TMP}, 1",
                    f"s_cselect_b32 s{S_TMP}, {inc + self.D//128}, {inc}",
                    f"v_add_u32 v{vE}, s{S_TMP}, v{vE}"]
        if inc >= 0:
            return [f"v_add_u32 v{vE}, {inc}, v{vE}"]
        return [f"v_subrev_u32 v{vE}, {-inc}, v{vE}"]

    def kload(self, L):
        tau, k = divmod(L, 8)
        if tau >= NB:
            assert (tau - NB, k >> 1) in self.freed, (tau, k)
        t = self.tb[tau % NB] + 4 * k
        pol = (" " + self.kpol) if self.kpol else ""
        o, so = k * 1024, S_P
        if o >= 4096:
            o -= 4096; so = S_P2
        off = f" offset:{o}" if o else ""
        self.e(f"buffer_load_dwordx4 v[{t}:{t+3}], v{self.vK}, s[{SRD_D}:{SRD_D+3}], s{so} offen{off}{pol}")
        self.ldidx[(tau, k)] = self.nops
        self.nops += 1
        if k == 3:
            self.step(S_P, tau, False)
        if k == 7:
            self.step(S_P2, tau, True)

    def piece_of(self, c):
        if c < 128 - PRE:
            return PRE + c
        if 128 <= c < 256:
            return c
        return None

    def note_piece(self, p):
        which, b = ("E", p // 16) if p < 128 else ("F", (p - 128) // 16)
        pos = b if which == "E" else (b + 8) % 9
        if p % 16 == 0 and pos in self.blk:
            old = self.blk[pos][0]
            assert old[0] == "E" and self.lastread >= 128 + 16 * old[1] + 15, (p, old, self.lastread)
        self.blk[pos] = ((which, b), self.nops if p % 16 == 15 else 1 << 30)
        self.nops += 1

    def piece_ins(self):
        pol = (" " + self.epol) if self.epol else ""
        return f"buffer_load_dwordx4 v{self.vK}, s[{SRD_P}:{SRD_P+3}], s{S_PO} offen{pol} lds"

    def piece_next(self, j, tag):
        out = [f"s_add_u32 s{S_PO}, s{S_PO}, 8192", f"s_add_u32 m0, m0, {ROWB}"]
        if j == 3:
            out += [f"s_cmp_ge_u32 s{S_PO}, 0x20000", f"s_cbranch_scc0 L_{tag}_np",
                    f"s_sub_u32 s{S_PO}, s{S_PO}, {0x20000-1024}", f"s_sub_u32 m0, m0, {16*ROWB-1024}",
                    f"s_cmp_eq_u32 m0, {9*1024}", f"s_cselect_b32 m0, 0, m0"]
        return out

    def check_read(self, n):
        which, b = ("E" if n < 256 else "F"), (n % 128) // 16
        pos = b if which == "E" else (b + 8) % 9
        content, idx = self.blk[pos]
        assert content == (which, b) and idx <= self.done, (n, content, idx, self.done)

    def perms(self, c, m, half):
        t = self.tb[c % NB]
        out = []
        for ec in range(4 * half, 4 * half + 4):
            sel = S_SEL_HI if ec & 1 else S_SEL_LO
            cc = ec >> 1
            out.append(f"v_perm_b32 v{self.T+4*ec+m}, v{t+4*(2*m+1)+cc}, v{t+4*(2*m)+cc}, s{sel}")
        return out

    def mfmas(self, kind, es, czero=False):
        W = self.W
        out = []
        for ec in es:
            a, tm = self.acc + 4 * ec, self.T + 4 * ec
            x, y = f"v[{tm}:{tm+3}]", f"v[{W}:{W+3}]"
            if kind == "V":
                x, y = y, x
            cin = "0" if czero else f"v[{a}:{a+3}]"
            out.append(f"v_mfma_f32_16x16x32_bf16 v[{a}:{a+3}], {x}, {y}, {cin}")
        return out

    def shuffle(self, c, fix, nxt=True):
        W, R = self.W, self.R
        g = ["s_waitcnt lgkmcnt(0)",
             f"v_perm_b32 v{W}, v{R+2}, v{R}, s{S_SEL_LO}",
             f"v_perm_b32 v{W+2}, v{R+3}, v{R+1}, s{S_SEL_LO}",
             f"v_perm_b32 v{W+1}, v{R+2}, v{R}, s{S_SEL_HI}",
             f"v_perm_b32 v{W+3}, v{R+3}, v{R+1}, s{S_SEL_HI}",
             f"v_permlane32_swap_b32 v{W}, v{W+2}"]
        g += self.estep(c) if nxt else ["s_nop 0"]
        g += [f"v_permlane32_swap_b32 v{W+1}, v{W+3}"]
        if fix:
            g += fix
        g += [f"ds_read_b128 v[{R}:{R+3}], v{self.vE}" if nxt else "s_nop 0"]
        g2 = [f"v_permlane16_swap_b32 v{W}, v{W+1}", f"v_permlane16_swap_b32 v{W+2}, v{W+3}"]
        return g, g2

    def tile(self, c, kind, N, j=0, fix=None, post=None, tag="x", ckind=None, czero=False, cczero=False,
             weave=None):
        nxt = c + 1 < 512
        late = []
        for i in range(8):
            m, half = i >> 1, i & 1
            if kind == "K" and i == self.pslot:
                p = self.piece_of(c)
                self.e(f"s_cbranch_vccz L_{tag}_np")
                if p is not None:
                    self.wait(N - 1)
                    self.note_piece(p)
                else:
                    self.e(f"s_waitcnt vmcnt({N-1})")
                self.e(self.piece_ins())
                self.emit(self.piece_next(j, tag))
                self.label(f"L_{tag}_np")
            L = 8 * (c + 3) + i + self.delta
            if L < 4096:
                self.wait(N - 1)
                self.kload(L)
                if L % 8 == 7 and post:
                    self.emit(post)
            idx = self.ldidx[(c, 2 * m + 1)]
            if L >= 4096 and idx > self.done:
                self.wait(self.nops - 1 - idx)
            assert idx <= self.done, (c, i)
            pm = self.perms(c, m, half)
            if i == 0:
                for a, b in zip(self.mfmas(ckind or kind, range(4, 8), cczero), pm):
                    self.emit([a, b])
            elif i == 7:
                for a, b in zip(self.mfmas(kind, range(4), czero), pm):
                    self.emit([a, b])
            else:
                self.emit(pm)
            if half:
                self.freed.add((c, m))
            if late:
                self.emit(late)
                late = []
            if i == self.sslot:
                self.lastread = c
                if nxt:
                    self.check_read(c + 1)
                g, late = self.shuffle(c, fix, nxt)
                self.emit(g)
            if weave and (j, i) in weave:
                self.emit(weave[(j, i)])

    def xlane(self, op, a, b):
        return [f"v_mov_b32 v{b}, v{a}", "s_nop 1", f"v_permlane16_swap_b32 v{a}, v{b}", "s_nop 1",
                f"{op} v{a}, v{a}, v{b}",
                f"v_mov_b32 v{b}, v{a}", "s_nop 1", f"v_permlane32_swap_b32 v{a}, v{b}", "s_nop 1",
                f"{op} v{a}, v{a}, v{b}"]

    def zero(self):
        return [f"v_mov_b32 v{self.acc+i}, 0" for i in range(32)]

    def spread(self, w, ins, start, per):
        k = start
        while ins:
            w.setdefault(divmod(k, 8), []).extend(ins[:per])
            ins = ins[per:]
            k += 1
        assert k <= 32

    def k_weave(self):
        acc, X, QR, A = self.acc, self.X, self.QR, self.A
        assert self.sslot == 3
        S = X
        w = {}
        cv = [f"v_cvt_pk_bf16_f32 v{A+4*g+m}, v{acc+4*(2*m)+g}, v{acc+4*(2*m+1)+g}" for g in range(4) for m in range(4)]
        w[(0, 1)] = [f"ds_read_b128 v[{QR+4*g}:{QR+4*g+3}], v{self.vQ} offset:{g*16}" for g in range(4)] + cv[:4]
        w[(0, 2)] = cv[4:12] + [f"v_add_u32 v{self.vQ}, 1024, v{self.vQ}"]
        w[(0, 3)] = cv[12:]
        mf = [f"v_mfma_f32_16x16x32_bf16 v[{S}:{S+3}], v[{A+4*g}:{A+4*g+3}], v[{QR+4*g}:{QR+4*g+3}], "
              + ("0" if g == 0 else f"v[{S}:{S+3}]") for g in range(4)]
        w[(0, 4)] = mf[:2]
        w[(0, 5)] = mf[2:]
        x = X + 4
        p = [f"v_cvt_pk_bf16_f32 v{x+4}, v{S}, v{S+1}", f"v_cvt_pk_bf16_f32 v{x+5}, v{S+2}, v{S+3}"]
        unpack = [f"v_lshlrev_b32 v{x+0}, 16, v{x+4}", f"v_and_b32 v{x+1}, 0xffff0000, v{x+4}",
                  f"v_lshlrev_b32 v{x+2}, 16, v{x+5}", f"v_and_b32 v{x+3}, 0xffff0000, v{x+5}"]
        p += unpack
        p += [f"v_mul_f32 v{x+i}, s{S_SCALE}, v{x+i}" for i in range(4)]
        p += [f"v_cvt_pk_bf16_f32 v{x+4}, v{x}, v{x+1}", f"v_cvt_pk_bf16_f32 v{x+5}, v{x+2}, v{x+3}"]
        p += unpack
        p += [f"v_max3_f32 v{x+6}, v{x}, v{x+1}, v{x+2}", f"v_max_f32 v{x+6}, v{x+6}, v{x+3}"]
        p += self.xlane("v_max_f32", x + 6, x + 7)
        p += [f"v_sub_f32 v{x+i}, v{x+i}, v{x+6}" for i in range(4)]
        p += [f"v_mul_f32 v{x+i}, s{S_LOG2E}, v{x+i}" for i in range(4)]
        p += [f"v_exp_f32 v{x+i}, v{x+i}" for i in range(4)]
        p += ["s_nop 0", f"v_add_f32 v{x+6}, v{x}, v{x+1}", f"v_add_f32 v{x+7}, v{x+2}, v{x+3}",
              f"v_add_f32 v{x+6}, v{x+6}, v{x+7}"]
        p += self.xlane("v_add_f32", x + 6, x + 7)
        p += [f"v_rcp_f32 v{x+6}, v{x+6}", "s_nop 0"]
        p += [f"v_mul_f32 v{x+i}, v{x+i}, v{x+6}" for i in range(4)]
        P0, P1 = self.P
        p += [f"v_mov_b32 v{P0}, v{P1}", f"v_mov_b32 v{P0+1}, v{P1+1}",
              f"v_cvt_pk_bf16_f32 v{P1}, v{x}, v{x+1}", f"v_cvt_pk_bf16_f32 v{P1+1}, v{x+2}, v{x+3}"]
        self.spread(w, p, 8, 4)
        return w

    def v_weave(self):
        acc, X, QR, A, P = self.acc, self.X, self.QR, self.A, self.P[0]
        w = {}
        cv = []
        for ec in range(8):
            a = acc + 4 * ec
            cv += [f"v_cvt_pk_bf16_f32 v{A+2*ec}, v{a}, v{a+1}", f"v_cvt_pk_bf16_f32 v{A+2*ec+1}, v{a+2}, v{a+3}"]
        w[(0, 1)], w[(0, 2)], w[(0, 3)] = cv[:6], cv[6:12], cv[12:]
        mf = [f"v_mfma_f32_16x16x16_bf16 v[{QR+4*(ec&3)}:{QR+4*(ec&3)+3}], v[{P}:{P+1}], v[{A+2*ec}:{A+2*ec+1}], 0"
              for ec in range(8)]
        o = X + 4
        oc = [f"v_cvt_pk_bf16_f32 v{o+m}, v{QR+8*(m&1)}, v{QR+8*(m&1)+4}" for m in range(4)]
        w[(0, 4)], w[(0, 5)] = mf[:2], mf[2:4]
        w[(1, 1)] = oc[:2]
        w[(1, 2)], w[(1, 3)] = mf[4:6], mf[6:]
        pol = (" " + self.outpol) if self.outpol else ""
        w[(1, 6)] = oc[2:] + [f"buffer_store_dwordx4 v[{o}:{o+3}], v{self.vK}, s[{SRD_O}:{SRD_O+3}], 0 offen{pol}"]
        return w

    def v_epilogue(self, head):
        acc, X, P, T = self.acc, self.X, self.P[head], self.T
        p = ["s_nop 3"]
        for ec in range(8):
            a = acc + 4 * ec
            p.append(f"v_cvt_pk_bf16_f32 v{a}, v{a}, v{a+1}")
            p.append(f"v_cvt_pk_bf16_f32 v{a+1}, v{a+2}, v{a+3}")
            if ec:
                a = acc + 4 * (ec - 1)
                p.append(f"v_mfma_f32_16x16x16_bf16 v[{T+4*(ec-1)}:{T+4*(ec-1)+3}], v[{P}:{P+1}], v[{a}:{a+1}], 0")
        a = acc + 28
        p.append("s_nop 0")
        p.append(f"v_mfma_f32_16x16x16_bf16 v[{T+28}:{T+31}], v[{P}:{P+1}], v[{a}:{a+1}], 0")
        p += ["s_nop 4"]
        o = X + 4
        for m in range(4):
            p.append(f"v_cvt_pk_bf16_f32 v{o+m}, v{T+4*(2*m)}, v{T+4*(2*m+1)}")
        off = " offset:1024" if head else ""
        pol = (" " + self.outpol) if self.outpol else ""
        p.append(f"buffer_store_dwordx4 v[{o}:{o+3}], v{self.vK}, s[{SRD_O}:{SRD_O+3}], 0 offen{off}{pol}")
        return p

    def stamp(self):
        if not self.ts:
            return
        g = self.vG
        self.emit([f"s_memrealtime s[{S_T1}:{S_T1+1}]", "s_waitcnt lgkmcnt(0)",
                   f"v_mov_b32_dpp v{g}, v{g} row_shr:1 row_mask:0xf bank_mask:0xf",
                   "s_nop 1", f"v_writelane_b32 v{g}, s{S_T1}, 0"])

    def flush(self, kind):
        self.emit(["s_nop 1"] + self.mfmas(kind, range(4, 8)))

    def srd(self, d, ptr, offreg, nrec):
        if offreg is None:
            self.e(f"s_mov_b32 s{d}, s{ptr}")
            self.e(f"s_mov_b32 s{d+1}, s{ptr+1}")
        else:
            self.e(f"s_add_u32 s{d}, s{ptr}, s{offreg}")
            self.e(f"s_addc_u32 s{d+1}, s{ptr+1}, 0")
        self.e(f"s_mov_b32 s{d+2}, {nrec:#x}")
        self.e(f"s_mov_b32 s{d+3}, 0x20000")

    def hooks(self, kind, j, tag):
        fix = post = None
        if j == 3 and kind == "K":
            fix = [f"s_cmp_eq_u32 s{S_CNT}, 1", f"s_cbranch_scc0 L_{tag}_nw",
                   f"v_add_u32 v{self.vE}, s{S_PH}, v{self.vE0}", f"L_{tag}_nw:"]
        if j == 3 and kind == "V":
            fix = [f"s_cmp_eq_u32 s{S_CNT}, 29", f"s_cbranch_scc0 L_{tag}_nw",
                   f"v_mov_b32 v{self.vE}, v{self.vE0}", f"L_{tag}_nw:",
                   f"s_cmp_eq_u32 s{S_CNT}, 1", f"s_cbranch_scc0 L_{tag}_nx",
                   f"v_add_u32 v{self.vE}, 8192, v{self.vE0}", f"L_{tag}_nx:"]
        if j == 0 and kind == "K":
            post = [f"s_add_u32 s{S_TMP}, s{S_CNT}, s{S_PH}",
                    f"s_cmp_eq_u32 s{S_TMP}, 8193",
                    f"s_cbranch_scc0 L_{tag}_ns",
                    f"s_mov_b32 s{SRD_D}, s{S_V}",
                    f"s_mov_b32 s{SRD_D+1}, s{S_V+1}",
                    f"s_lshl_b32 s{S_P}, s2, 21",
                    f"s_add_u32 s{S_P2}, s{S_P}, {self.boff()}",
                    f"L_{tag}_ns:"]
        return dict(fix=fix, post=post)

    def control(self, tag, branch=True):
        e = self.e
        if self.nm == 1:
            return
        e(f"s_and_b32 s{S_TMP}, s{S_CNT}, {self.every-1}")
        e(f"s_cbranch_scc1 L_{tag}_sel")
        H = f"s[{SRD_H}:{SRD_H+3}]"
        e(f"v_cmp_le_u32 s[{S_CMP}:{S_CMP+1}], s{S_MARK}, v{self.vH}")
        if self.glob:
            e(f"v_cmp_ne_u32 s[{S_CM2}:{S_CM2+1}], 0, v{self.vH}")
            e(f"v_readlane_b32 s{S_TH}, v{self.vH}, 15")
        e(f"s_add_u32 s{S_MARK}, s{S_MARK}, 1")
        e(f"v_mov_b32 v{self.vM}, s{S_MARK}")
        if self.glob:
            e(f"s_and_b64 s[{S_CMP}:{S_CMP+1}], s[{S_CMP}:{S_CMP+1}], s[{S_MSK}:{S_MSK+1}]")
        e(f"s_bcnt1_i32_b64 s{S_TMP}, s[{S_CMP}:{S_CMP+1}]")
        e(f"buffer_store_byte v{self.vM}, off, {H}, s{S_SLOT}")
        e(f"buffer_load_ubyte v{self.vH}, v0, {H}, 0 offen sc1")
        if self.glob:
            A, B = self.glob
            e(f"s_cmp_eq_u32 s{S_TH}, 0")
            e(f"s_cselect_b32 s{S_TH}, {self.th}, s{S_TH}")
            e(f"s_cmp_ge_u32 s{S_TMP}, s{S_TH}")
            e(f"s_cselect_b32 s{S_MODE}, 1, 0")
            e(f"s_and_b64 s[{S_CM2}:{S_CM2+1}], s[{S_CM2}:{S_CM2+1}], s[{S_MSK}:{S_MSK+1}]")
            e(f"s_ff1_i32_b64 s{S_TMP2}, s[{S_CM2}:{S_CM2+1}]")
            e(f"s_cmp_eq_u32 s{S_TMP2}, s{S_SLOT}")
            e(f"s_cbranch_scc0 L_{tag}_sel")
            if self.gev > 1:
                e(f"s_and_b32 s{S_TMP2}, s{S_MARK}, {self.gev-1}")
                e(f"s_cbranch_scc1 L_{tag}_sel")
            e(f"v_cmp_le_u32 s[{S_CM2}:{S_CM2+1}], s{S_GM}, v{self.vG}")
            e(f"v_cndmask_b32 v{self.vG}, 0, v{self.vM}, s[{S_XM}:{S_XM+1}]")
            e(f"s_bcnt1_i32_b64 s{S_TMP2}, s[{S_CM2}:{S_CM2+1}]")
            e(f"s_cmp_eq_u32 s{S_GM}, 255")
            e(f"buffer_atomic_umax v{self.vG}, v{self.vK}, {H}, 0 offen offset:128 sc0")
            e(f"s_mov_b32 s{S_GM}, s{S_MARK}")
            e(f"s_cbranch_scc1 L_{tag}_sel")
            e(f"s_mul_i32 s{S_TMP2}, s{S_TMP2}, {B}")
            e(f"s_sub_u32 s{S_TMP2}, {A}, s{S_TMP2}")
            e(f"v_mov_b32 v{self.X+11}, s{S_TMP2}")
            e(f"buffer_store_byte v{self.X+11}, off, {H}, 0 offset:15")
        else:
            e(f"s_cmp_ge_u32 s{S_TMP}, s{S_TH}")
            e(f"s_cselect_b32 s{S_MODE}, 1, 0")
        if self.nm == 3:
            e(f"s_cmp_lt_u32 s{S_TMP}, {self.tl}")
            e(f"s_cselect_b32 s{S_MODE}, 2, s{S_MODE}")
        self.label(f"L_{tag}_sel")
        if tag == "v" and self.endhi:
            e(f"s_sub_u32 s{S_TMP}, s{S_CNT}, s{S_END}")
            e(f"s_mul_i32 s{S_TMP2}, s{S_END}, {self.endhi}")
            e(f"s_cmp_le_u32 s{S_TMP}, s{S_TMP2}")
            e(f"s_cselect_b32 s{S_MODE}, 1, s{S_MODE}")
        if self.diag:
            e(f"s_add_u32 s{S_NHI}, s{S_NHI}, s{S_MODE}")
        for md in range(1, self.nm if branch else 0):
            e(f"s_cmp_eq_u32 s{S_MODE}, {md}")
            e(f"s_cbranch_scc1 L_{tag}m{md}")

    def bodies(self, kind, c0, tag, Ns):
        state = (self.nops, self.done, dict(self.ldidx), dict(self.blk), set(self.freed), self.lastread)
        nmax = max(Ns)
        for md, N in enumerate(Ns):
            self.nops, self.done, self.ldidx, self.blk, self.freed, self.lastread = \
                state[0], state[1], dict(state[2]), dict(state[3]), set(state[4]), state[5]
            self.label(f"L_{tag}m{md}")
            for j in range(4):
                t = f"{tag}{md}_{j}"
                self.tile(c0 + j, kind, N, j=j, tag=t, **self.hooks(kind, j, t))
            if md < len(Ns) - 1:
                self.e(f"s_branch L_{tag}_next")
        self.label(f"L_{tag}_next")
        self.nops, self.done, self.ldidx, self.blk, self.freed, self.lastread = \
            state[0], state[1], dict(state[2]), dict(state[3]), set(state[4]), state[5]

    def peeled(self, kind, c0, tag, N, ckind, weave):
        state = (self.nops, self.done, dict(self.ldidx), dict(self.blk), set(self.freed), self.lastread)
        self.e(f"s_mov_b32 s{S_CNT}, 32")
        if kind == "K":
            self.e("s_mov_b64 vcc, 0" if self.nopiece else "s_mov_b64 vcc, -1")
        self.control(tag, branch=False)
        for j in range(4):
            t = f"{tag}_{j}"
            self.tile(c0 + j, kind, N, j=j, tag=t, ckind=ckind if j == 0 else None, czero=j == 0, cczero=j == 1,
                      weave=weave)
        self.nops, self.done, self.ldidx, self.blk, self.freed, self.lastread = state

    def replay(self, kind, c_from, c_to, N):
        keep = self.lines
        self.lines = []
        for c in range(c_from, c_to):
            self.tile(c, kind, N, j=c % 4)
        self.lines = keep

    def warmup(self, waits):
        e = self.e
        e(f"s_lshr_b32 s{S_TMP}, s2, 3")
        e(f"s_lshl_b32 s{S_TMP}, s{S_TMP}, 12")
        for i in range(4):
            off = f" offset:{i*1024}" if i else ""
            e(f"buffer_load_dwordx4 a[{4*i}:{3+4*i}], v{self.vK}, s[{SRD_P}:{SRD_P+3}], s{S_TMP} offen{off}")
            if waits:
                self.nops += 1

    def build(self):
        e = self.e
        NK, NV = self.NK, self.NV
        t0, t1 = self.X, self.X + 1
        self.lastread = -1
        e("s_cmp_ge_u32 s2, 256")
        e("s_cbranch_scc1 L_end")
        e("s_load_dwordx16 s[4:19], s[0:1], 0")
        if self.diag:
            e(f"s_memrealtime s[{S_T0}:{S_T0+1}]")
        if self.dbgt:
            e(f"s_memrealtime s[{S_T0}:{S_T0+1}]")
        e(f"v_lshlrev_b32 v{self.vK}, 4, v0")
        e(f"s_lshl_b32 s{S_P}, s2, 21")
        e(f"s_add_u32 s{S_P2}, s{S_P}, {self.boff()}")
        e(f"s_mov_b32 s{SRD_D+2}, 0x20000000")
        e(f"s_mov_b32 s{SRD_D+3}, 0x20000")
        e(f"s_mov_b32 s{SRD_P+2}, 0x20000")
        e(f"s_mov_b32 s{SRD_P+3}, 0x20000")
        e(f"s_mov_b32 s{S_PO}, 0")
        e("s_mov_b32 m0, 0")
        e("s_waitcnt lgkmcnt(0)")
        e(f"s_mov_b32 s{SRD_D}, s{S_K}")
        e(f"s_mov_b32 s{SRD_D+1}, s{S_K+1}")
        e(f"s_mov_b32 s{SRD_P}, s{S_E}")
        e(f"s_mov_b32 s{SRD_P+1}, s{S_E+1}")
        NB0 = self.NB0

        def pieces(a, b):
            keep = self.epol
            self.epol = self.e0pol
            for p in range(a, b):
                e(self.piece_ins())
                self.note_piece(p)
                if p == 15:
                    e(f"s_mov_b32 m0, 1024")
                    e(f"s_mov_b32 s{S_PO}, 1024")
                else:
                    e(f"s_add_u32 m0, m0, {ROWB}")
                    e(f"s_add_u32 s{S_PO}, s{S_PO}, 8192")
            self.epol = keep
        nfirst = self.efirst
        for L in range(nfirst):
            self.kload(L)
        pieces(0, 16)
        for L in range(nfirst, NB0):
            self.kload(L)
        pieces(16, PRE)
        if self.warm:
            self.warmup(True)
        e(f"s_mov_b32 s{S_TMP2}, m0")
        e(f"s_lshl_b32 s{S_TMP}, s2, 11")
        e(f"s_mov_b32 m0, {LDS_Q}")
        self.srd(SRD_Q, S_Q, S_TMP, 0x800)
        e(f"buffer_load_dwordx4 v{self.vK}, s[{SRD_Q}:{SRD_Q+3}], 0 offen lds")
        e(f"buffer_load_dwordx4 v{self.vK}, s[{SRD_Q}:{SRD_Q+3}], 0 offen offset:1024 lds")
        self.nops += 2
        e(f"s_mov_b32 m0, s{S_TMP2}")
        self.srd(SRD_O, S_O, S_TMP, 0x800)
        if self.vtlb:
            e(f"s_lshl_b32 s{S_TMP}, s2, 21")
            e(f"s_add_u32 s{S_CM2}, s{S_V}, s{S_TMP}")
            e(f"s_addc_u32 s{S_CM2+1}, s{S_V+1}, 0")
            e(f"s_load_dword s{S_GM}, s[{S_CM2}:{S_CM2+1}], 0")
        e(f"v_and_b32 v{t0}, 15, v0")
        e(f"v_lshrrev_b32 v{t1}, 4, v0")
        e(f"v_mul_u32_u24 v{self.vE0}, {ROWB}, v{t0}")
        if self.pat == "h":
            e(f"v_bfe_u32 v{self.vE}, v0, 4, 1")
            e(f"v_lshl_add_u32 v{self.vE0}, v{self.vE}, 4, v{self.vE0}")
            e(f"v_lshrrev_b32 v{self.vE}, 5, v0")
            e(f"v_lshl_add_u32 v{self.vE0}, v{self.vE}, {(self.D//128).bit_length()-1}, v{self.vE0}")
        else:
            e(f"v_lshl_add_u32 v{self.vE0}, v{t1}, 4, v{self.vE0}")
        e(f"v_mov_b32 v{self.vE}, v{self.vE0}")
        e(f"v_lshrrev_b32 v{self.vQ}, 2, v{t0}")
        e(f"v_lshlrev_b32 v{self.vQ}, 8, v{self.vQ}")
        e(f"v_lshl_add_u32 v{self.vQ}, v{t1}, 6, v{self.vQ}")
        e(f"v_add_u32 v{self.vQ}, {LDS_Q-1024}, v{self.vQ}")
        e(f"s_mov_b32 s{S_SEL_LO}, 0x05040100")
        e(f"s_mov_b32 s{S_SEL_HI}, 0x07060302")
        e(f"s_mov_b32 s{S_SCALE}, 0x3db504f3")
        e(f"s_mov_b32 s{S_LOG2E}, 0x3fb8aa3b")
        if self.nm > 1:
            self.srd(SRD_H, S_DBG, None, 256)
            e(f"s_getreg_b32 s{S_TMP}, hwreg(HW_REG_HW_ID, 8, 4)")
            e(f"s_getreg_b32 s{S_TMP2}, hwreg(HW_REG_HW_ID, 13, 2)")
            e(f"s_getreg_b32 s{S_XCC}, hwreg(HW_REG_XCC_ID, 0, 3)")
            e(f"s_lshl_b32 s{S_TMP2}, s{S_TMP2}, 4")
            e(f"s_or_b32 s{S_SLOT}, s{S_TMP}, s{S_TMP2}")
            e(f"s_mov_b32 s{S_MSK}, 0x7fff7fff")
            e(f"s_mov_b32 s{S_MSK+1}, 0x7fff7fff")
            e(f"s_bitcmp1_b32 s{S_XCC}, 0")
            e(f"s_cselect_b32 s{S_TH}, {self.th + self.par}, {self.th - self.par}")
            if self.glob:
                e(f"s_mov_b32 s{S_GM}, 255")
                e(f"s_lshl_b64 s[{S_XM}:{S_XM+1}], 1, s{S_XCC}")
            e(f"v_mov_b32 v{self.vG}, 0")
            e(f"v_mov_b32 v{self.vH}, 0")
            e(f"s_mov_b32 s{S_MARK}, 1")
            e(f"s_mov_b32 s{S_MODE}, 0")
        if self.codewarm:
            e(f"s_getpc_b64 s[{S_T1}:{S_T1+1}]")
            e(f"s_lshr_b32 s{S_TMP}, s2, 3")
            e(f"s_and_b32 s{S_TMP}, s{S_TMP}, 15")
            e(f"s_lshl_b32 s{S_TMP}, s{S_TMP}, 10")
            e(f"s_add_u32 s{S_T1}, s{S_T1}, s{S_TMP}")
            e(f"s_addc_u32 s{S_T1+1}, s{S_T1+1}, 0")
            e(f"global_load_dwordx4 a[12:15], v{self.vK}, s[{S_T1}:{S_T1+1}]")
            self.nops += 1
        if self.diag:
            self.srd(SRD_W, S_WS, None, 0x1000000)
            e(f"s_mov_b32 s{S_NHI}, 0")
        for L in range(NB0, 24 + self.delta):
            self.wait(self.nops - 1 - self.ldidx[divmod(L - NB0, 8)])
            self.kload(L)
        idx = self.blk[0][1]
        if idx > self.done:
            self.wait(self.nops - 1 - idx)
        self.check_read(0)
        e(f"ds_read_b128 v[{self.R}:{self.R+3}], v{self.vE}")
        self.stamp()
        e(f"s_mov_b32 s{S_PH}, 0")
        e(f"s_mov_b32 s{S_END}, {PRE//4}")
        self.label("L_khead")
        self.peeled("K", 0, "kp", NK[0] + self.NP, "K", self.k_weave())
        e("s_branch L_k_next")
        self.label("L_k")
        e(f"s_cmp_eq_u32 s{S_CNT}, s{S_END}")
        e("s_cbranch_scc0 L_nf")
        e(f"s_mov_b32 s{SRD_P}, s{S_F}")
        e(f"s_mov_b32 s{SRD_P+1}, s{S_F+1}")
        e(f"s_mov_b32 s{S_PO}, 0")
        e(f"s_mov_b32 m0, 8192")
        if self.warm:
            self.warmup(False)
        self.label("L_nf")
        e(f"s_cmp_gt_u32 s{S_CNT}, s{S_END}")
        e("s_cselect_b64 vcc, 0, 0" if self.nopiece else "s_cselect_b64 vcc, -1, 0")
        self.control("k")
        self.bodies("K", 0, "k", NK)
        e(f"s_sub_u32 s{S_CNT}, s{S_CNT}, 1")
        e(f"s_cmp_lg_u32 s{S_CNT}, 0")
        e("s_cbranch_scc1 L_k")
        self.stamp()
        e(f"s_cmp_eq_u32 s{S_PH}, 0")
        e(f"s_mov_b32 s{S_END}, 0")
        e(f"s_mov_b32 s{S_PH}, 8192")
        e("s_cbranch_scc1 L_khead")
        self.replay("K", 0, 256, max(NK))
        self.peeled("V", 256, "vp", NV[0] + self.NP, "K", self.k_weave())
        e("s_branch L_v_next")
        self.label("L_v")
        self.control("v")
        self.bodies("V", 256, "v", NV)
        e(f"s_sub_u32 s{S_CNT}, s{S_CNT}, 1")
        e(f"s_cmp_lg_u32 s{S_CNT}, s{S_END}")
        e("s_cbranch_scc1 L_v")
        e(f"s_cmp_eq_u32 s{S_END}, 1")
        e("s_cbranch_scc1 L_tail")
        self.stamp()
        e(f"s_mov_b32 s{S_END}, 1")
        self.peeled("V", 256, "vq", NV[0] + self.NP, "V", self.v_weave())
        e("s_branch L_v_next")
        self.label("L_tail")
        self.replay("V", 256, 508, max(NV))
        self.stamp()
        for c in range(508, 512):
            self.tile(c, "V", max(NV))
        self.stamp()
        self.flush("V")
        self.emit(self.v_epilogue(1))
        if self.diag:
            e("s_waitcnt vmcnt(0)")
            e(f"s_memrealtime s[{S_T1}:{S_T1+1}]")
            e(f"s_getreg_b32 s{S_TMP2}, hwreg(HW_REG_XCC_ID)")
            e(f"s_and_b32 s{S_TMP2}, s{S_TMP2}, 15")
            e(f"s_lshl_b32 s{S_TMP}, s2, 4")
            e("s_waitcnt lgkmcnt(0)")
            o = self.W
            e(f"v_mov_b32 v{o}, s{S_T0}")
            e(f"v_mov_b32 v{o+1}, s{S_T1}")
            e(f"v_mov_b32 v{o+2}, s{S_TMP2}")
            e(f"s_lshl_b32 s{S_NHI}, s{S_NHI}, 8")
            e(f"v_mov_b32 v{o+3}, s{S_NHI}")
            e(f"v_mov_b32 v{t0}, s{S_TMP}")
            if self.ts:
                e(f"v_lshlrev_b32 v{t1}, 2, v0")
                e(f"s_lshl_b32 s{S_TMP}, s2, 8")
                e(f"s_add_u32 s{S_TMP}, s{S_TMP}, 0x200000")
                e(f"buffer_store_dword v{self.vG}, v{t1}, s[{SRD_W}:{SRD_W+3}], s{S_TMP} offen")
            e("s_mov_b64 exec, 1")
            e(f"buffer_store_dwordx4 v[{o}:{o+3}], v{t0}, s[{SRD_W}:{SRD_W+3}], 0 offen")
        if self.dbgt:
            e("s_waitcnt vmcnt(0)")
            e(f"s_memrealtime s[{S_T1}:{S_T1+1}]")
            e("s_waitcnt lgkmcnt(0)")
            e(f"s_sub_u32 s{S_TMP}, s{S_T1}, s{S_T0}")
            e(f"s_not_b32 s{S_T0}, s{S_T0}")
            e(f"s_atomic_umax s{S_T1}, s[{S_DBG}:{S_DBG+1}], 0x0")
            e(f"s_atomic_umax s{S_T0}, s[{S_DBG}:{S_DBG+1}], 0x4")
            e(f"s_atomic_add s{S_TMP}, s[{S_DBG}:{S_DBG+1}], 0x8")
            e("s_waitcnt lgkmcnt(0)")
        self.label("L_end")
        e("s_endpgm")

        out = HEADER
        out += f"; @launch grid=(256,1,1) block=(64,1,1) lds={LDS_BYTES}\n"
        out += '.amdgcn_target "amdgcn-amd-amdhsa--gfx950"\n.text\n'
        out += f".globl {NAME}_kernel\n.p2align 8\n.type {NAME}_kernel,@function\n{NAME}_kernel:\n"
        out += "\n".join(self.lines) + "\n"
        if self.codewarm:
            out += ".fill 1280, 4, 0xbf800000\n    s_endpgm\n"
        out += '.section .rodata,"a"\n.p2align 6\n'
        out += f".amdhsa_kernel {NAME}_kernel\n"
        out += f"  .amdhsa_next_free_vgpr {self.nv + self.nagpr}\n"
        out += f"  .amdhsa_next_free_sgpr 80\n"
        out += f"  .amdhsa_accum_offset {self.nv}\n"
        out += "  .amdhsa_group_segment_fixed_size 0\n  .amdhsa_kernarg_size 64\n"
        out += "  .amdhsa_user_sgpr_count 2\n  .amdhsa_user_sgpr_kernarg_segment_ptr 1\n"
        out += "  .amdhsa_system_sgpr_workgroup_id_x 1\n"
        out += "  .amdhsa_float_denorm_mode_32 3\n"
        out += ".end_amdhsa_kernel\n"
        return out


if __name__ == "__main__":
    ap = argparse.ArgumentParser()
    tup = lambda s: tuple(int(x) for x in s.split(","))
    ap.add_argument("-o", default=f"cdna_kernels/{NAME}.s")
    ap.add_argument("--NK", type=tup, default=(23, 28))
    ap.add_argument("--NV", type=tup, default=(21, 26))
    ap.add_argument("--delta", type=int, default=6)
    ap.add_argument("--th", type=int, default=24)
    ap.add_argument("--tl", type=int, default=9)
    ap.add_argument("--every", type=int, default=2)
    ap.add_argument("--kpol", default="nt")
    ap.add_argument("--epol", default="")
    ap.add_argument("--outpol", default="")
    ap.add_argument("--sslot", type=int, default=3)
    ap.add_argument("--pslot", type=int, default=2)
    ap.add_argument("--warm", type=int, default=1)
    ap.add_argument("--endhi", type=int, default=0)
    ap.add_argument("--dbgt", action="store_true")
    ap.add_argument("--novtlb", action="store_true")
    ap.add_argument("--NP", type=int, default=2)
    ap.add_argument("--efirst", type=int, default=20)
    ap.add_argument("--NB0", type=int, default=20)
    ap.add_argument("--e0pol", default="")
    ap.add_argument("--ts", action="store_true")
    ap.add_argument("--nopiece", action="store_true")
    ap.add_argument("--nocomp", action="store_true")
    ap.add_argument("--pat", default="lin")
    ap.add_argument("--D", type=int, default=32)
    ap.add_argument("--codewarm", action="store_true")
    ap.add_argument("--par", type=int, default=0)
    ap.add_argument("--gev", type=int, default=4)
    ap.add_argument("--glob", type=tup, default=None)
    ap.add_argument("--diag", action="store_true")
    a = ap.parse_args()
    g = Gen13(a.NK, a.NV, a.delta, a.th, a.every, a.kpol, a.epol, a.diag, a.outpol, a.sslot, a.pslot,
              warm=a.warm, tl=a.tl, endhi=a.endhi, dbgt=a.dbgt, glob=a.glob, gev=a.gev, par=a.par, codewarm=a.codewarm, pat=a.pat, D=a.D*1024, ts=a.ts, nopiece=a.nopiece, nocomp=a.nocomp, efirst=a.efirst, e0pol=a.e0pol, NB0=a.NB0, vtlb=not a.novtlb, NP=a.NP)
    s = g.build()
    open(a.o, "w").write(s)
    print(f"wrote {a.o}: nv={g.nv} lines={len(g.lines)}")
```

```python
import argparse
from gen import HEADER, NAME

S_Q, S_K, S_V, S_E, S_F, S_O, S_DBG, S_WS = 4, 6, 8, 10, 12, 14, 16, 18
SRD_D, SRD_P, SRD_O, SRD_W, SRD_Q, SRD_H = 20, 24, 28, 32, 56, 60
S_P, S_P2, S_CNT, S_SEL_LO, S_SEL_HI, S_TMP, S_TMP2 = 36, 37, 38, 39, 40, 41, 42
S_SCALE, S_LOG2E, S_END = 43, 44, 45
S_PO, S_PH, S_MARK, S_MODE = 46, 47, 52, 53
S_CMP = 54
S_T0, S_T1 = 48, 50
S_NHI = 68
S_SLOT, S_XCC, S_GM, S_TH = 64, 65, 66, 67
S_MSK, S_CM2, S_XM = 70, 72, 74
SRD_G, S_XO = 76, 69
ROWB = 9 * 1024 + 16
LDS_Q = 16 * ROWB
LDS_BYTES = LDS_Q + 2048
NB = 4
PRE = 20


class Gen13:
    def __init__(self, NK=(23, 28), NV=(21, 26), delta=6, th=24, every=2, kpol="nt", epol="", diag=False,
                 outpol="", sslot=3, pslot=2, N0=52, warm=1, tl=None, endhi=0, dbgt=False, glob=None, gev=4, par=0, codewarm=False, pat='lin', D=32768, ts=False, nopiece=False, nocomp=False, efirst=0, e0pol='', NB0=20, vtlb=True, NP=2, gws=False, gsh=4, cw2=0, cwpos=8, direct=True, cw3=0, ploop=False):
        self.cw3, self.ploop = cw3, ploop
        self.direct = direct
        self.cw2, self.cwpos = cw2, cwpos
        self.gws, self.gsh = gws, gsh
        self.vtlb, self.NP = vtlb, NP
        self.efirst, self.e0pol, self.NB0 = efirst, e0pol, NB0
        self.ts, self.nopiece, self.nocomp = ts, nopiece, nocomp
        self.pat, self.D = pat, D
        self.codewarm = codewarm
        self.par = par
        self.gev = gev
        self.glob = glob
        self.dbgt = dbgt
        self.NK, self.NV, self.delta, self.th, self.every = NK, NV, delta, th, every
        self.kpol, self.epol, self.diag, self.outpol = kpol, epol, diag, outpol
        self.sslot, self.pslot, self.N0, self.warm = sslot, pslot, N0, warm
        self.tl, self.endhi = tl, endhi
        self.nm = len(NK)
        self.lines = []
        self.vK, self.vE, self.vQ, self.vE0 = 1, 2, 3, 4
        self.vH, self.vG, self.vM = 5, 10, 11
        self.P = [6, 8]
        self.vGA = 30
        self.W, self.R, self.X = 12, 16, 20
        r = 32
        self.T = r; r += 32
        self.acc = r; r += 32
        self.tb = []
        for b in range(NB):
            self.tb.append(r); r += 32
        self.QR, self.A = r, r + 16
        r += 32
        self.nv = r
        self.nagpr = 16 if warm else 0
        self.nops = 0
        self.done = -1
        self.ldidx = {}
        self.blk = {}
        self.freed = set()

    def e(self, s):
        self.lines.append("    " + s)

    def label(self, s):
        self.lines.append(s + ":")

    def emit(self, ins):
        for s in ins:
            if self.nocomp and s.startswith(("v_perm", "v_mfma")):
                continue
            self.lines.append(s if s.endswith(":") else "    " + s)

    def wait(self, n):
        self.e(f"s_waitcnt vmcnt({n})")
        self.done = max(self.done, self.nops - n - 1)

    def aoff(self, t):
        D = self.D
        if self.pat == "lin":
            return t * 8192
        if self.pat == "h":
            nb = D // 4096
            return (t // nb) * 2 * D + (t % nb) * 4096
        nb = 2 * D // 8192
        return (t // nb) * 2 * D + (t & 1) * D + ((t % nb) >> 1) * 8192

    def boff(self):
        return self.D if self.pat == "h" else 4096

    def nblk(self):
        return {"lin": 4, "h": self.D // 4096, "big": 2 * self.D // 8192}[self.pat]

    def step(self, reg, tau, second):
        inc = self.aoff(tau % 4 + 1) - self.aoff(tau % 4) if (tau % 4 != 3 or self.nblk() > 4) else \
            self.aoff(4) - self.aoff(3)
        if inc >= 0:
            self.e(f"s_add_u32 s{reg}, s{reg}, {inc}")
        else:
            self.e(f"s_sub_u32 s{reg}, s{reg}, {-inc}")
        if tau % 4 == 3 and self.nblk() > 4:
            low = (self.boff() if second else 0) & (self.D - 1)
            self.e(f"s_and_b32 s{S_TMP}, s{reg}, {self.D-1}")
            self.e(f"s_cmp_eq_u32 s{S_TMP}, {low}")
            self.e(f"s_cselect_b32 s{S_TMP}, {self.D}, 0")
            self.e(f"s_add_u32 s{reg}, s{reg}, s{S_TMP}")

    def estep(self, c):
        vE = self.vE
        j = c % 4
        nb = self.nblk()
        inc = (self.aoff(j + 1) - self.aoff(j)) // 128
        if j == 3 and nb > 4:
            q = nb // 4
            return [f"s_and_b32 s{S_TMP}, s{S_CNT}, {q-1}", f"s_cmp_eq_u32 s{S_TMP}, 1",
                    f"s_cselect_b32 s{S_TMP}, {inc + self.D//128}, {inc}",
                    f"v_add_u32 v{vE}, s{S_TMP}, v{vE}"]
        if inc >= 0:
            return [f"v_add_u32 v{vE}, {inc}, v{vE}"]
        return [f"v_subrev_u32 v{vE}, {-inc}, v{vE}"]

    def kload(self, L):
        tau, k = divmod(L, 8)
        if tau >= NB:
            assert (tau - NB, k >> 1) in self.freed, (tau, k)
        t = self.tb[tau % NB] + 4 * k
        pol = (" " + self.kpol) if self.kpol else ""
        o, so = k * 1024, S_P
        if o >= 4096:
            o -= 4096; so = S_P2
        off = f" offset:{o}" if o else ""
        self.e(f"buffer_load_dwordx4 v[{t}:{t+3}], v{self.vK}, s[{SRD_D}:{SRD_D+3}], s{so} offen{off}{pol}")
        self.ldidx[(tau, k)] = self.nops
        self.nops += 1
        if k == 3:
            self.step(S_P, tau, False)
        if k == 7:
            self.step(S_P2, tau, True)

    def piece_of(self, c):
        if c < 128 - PRE:
            return PRE + c
        if 128 <= c < 256:
            return c
        return None

    def note_piece(self, p):
        which, b = ("E", p // 16) if p < 128 else ("F", (p - 128) // 16)
        pos = b if which == "E" else (b + 8) % 9
        if p % 16 == 0 and pos in self.blk:
            old = self.blk[pos][0]
            assert old[0] == "E" and self.lastread >= 128 + 16 * old[1] + 15, (p, old, self.lastread)
        self.blk[pos] = ((which, b), self.nops if p % 16 == 15 else 1 << 30)
        self.nops += 1

    def piece_ins(self):
        pol = (" " + self.epol) if self.epol else ""
        return f"buffer_load_dwordx4 v{self.vK}, s[{SRD_P}:{SRD_P+3}], s{S_PO} offen{pol} lds"

    def piece_next(self, j, tag):
        out = [f"s_add_u32 s{S_PO}, s{S_PO}, 8192", f"s_add_u32 m0, m0, {ROWB}"]
        if j == 3:
            out += [f"s_cmp_ge_u32 s{S_PO}, 0x20000", f"s_cbranch_scc0 L_{tag}_np",
                    f"s_sub_u32 s{S_PO}, s{S_PO}, {0x20000-1024}", f"s_sub_u32 m0, m0, {16*ROWB-1024}",
                    f"s_cmp_eq_u32 m0, {9*1024}", f"s_cselect_b32 m0, 0, m0"]
        return out

    def check_read(self, n):
        which, b = ("E" if n < 256 else "F"), (n % 128) // 16
        pos = b if which == "E" else (b + 8) % 9
        content, idx = self.blk[pos]
        assert content == (which, b) and idx <= self.done, (n, content, idx, self.done)

    def perms(self, c, m, half):
        t = self.tb[c % NB]
        out = []
        for ec in range(4 * half, 4 * half + 4):
            sel = S_SEL_HI if ec & 1 else S_SEL_LO
            cc = ec >> 1
            out.append(f"v_perm_b32 v{self.T+4*ec+m}, v{t+4*(2*m+1)+cc}, v{t+4*(2*m)+cc}, s{sel}")
        return out

    def mfmas(self, kind, es, czero=False):
        W = self.W
        out = []
        for ec in es:
            a, tm = self.acc + 4 * ec, self.T + 4 * ec
            x, y = f"v[{tm}:{tm+3}]", f"v[{W}:{W+3}]"
            if kind == "V":
                x, y = y, x
            cin = "0" if czero else f"v[{a}:{a+3}]"
            out.append(f"v_mfma_f32_16x16x32_bf16 v[{a}:{a+3}], {x}, {y}, {cin}")
        return out

    def shuffle(self, c, fix, nxt=True):
        W, R = self.W, self.R
        g = ["s_waitcnt lgkmcnt(0)",
             f"v_perm_b32 v{W}, v{R+2}, v{R}, s{S_SEL_LO}",
             f"v_perm_b32 v{W+2}, v{R+3}, v{R+1}, s{S_SEL_LO}",
             f"v_perm_b32 v{W+1}, v{R+2}, v{R}, s{S_SEL_HI}",
             f"v_perm_b32 v{W+3}, v{R+3}, v{R+1}, s{S_SEL_HI}",
             f"v_permlane32_swap_b32 v{W}, v{W+2}"]
        g += self.estep(c) if nxt else ["s_nop 0"]
        g += [f"v_permlane32_swap_b32 v{W+1}, v{W+3}"]
        if fix:
            g += fix
        g += [f"ds_read_b128 v[{R}:{R+3}], v{self.vE}" if nxt else "s_nop 0"]
        g2 = [f"v_permlane16_swap_b32 v{W}, v{W+1}", f"v_permlane16_swap_b32 v{W+2}, v{W+3}"]
        return g, g2

    def tile(self, c, kind, N, j=0, fix=None, post=None, tag="x", ckind=None, czero=False, cczero=False,
             weave=None):
        nxt = c + 1 < 512
        late = []
        for i in range(8):
            m, half = i >> 1, i & 1
            if kind == "K" and i == self.pslot:
                p = self.piece_of(c)
                self.e(f"s_cbranch_vccz L_{tag}_np")
                if p is not None:
                    self.wait(N - 1)
                    self.note_piece(p)
                else:
                    self.e(f"s_waitcnt vmcnt({N-1})")
                self.e(self.piece_ins())
                self.emit(self.piece_next(j, tag))
                self.label(f"L_{tag}_np")
            L = 8 * (c + 3) + i + self.delta
            if L < 4096:
                self.wait(N - 1)
                self.kload(L)
                if L % 8 == 7 and post:
                    self.emit(post)
            idx = self.ldidx[(c, 2 * m + 1)]
            if L >= 4096 and idx > self.done:
                self.wait(self.nops - 1 - idx)
            assert idx <= self.done, (c, i)
            pm = self.perms(c, m, half)
            if i == 0:
                for a, b in zip(self.mfmas(ckind or kind, range(4, 8), cczero), pm):
                    self.emit([a, b])
            elif i == 7:
                for a, b in zip(self.mfmas(kind, range(4), czero), pm):
                    self.emit([a, b])
            else:
                self.emit(pm)
            if half:
                self.freed.add((c, m))
            if late:
                self.emit(late)
                late = []
            if i == self.sslot:
                self.lastread = c
                if nxt:
                    self.check_read(c + 1)
                g, late = self.shuffle(c, fix, nxt)
                self.emit(g)
            if weave and (j, i) in weave:
                self.emit(weave[(j, i)])

    def xlane(self, op, a, b):
        return [f"v_mov_b32 v{b}, v{a}", "s_nop 1", f"v_permlane16_swap_b32 v{a}, v{b}", "s_nop 1",
                f"{op} v{a}, v{a}, v{b}",
                f"v_mov_b32 v{b}, v{a}", "s_nop 1", f"v_permlane32_swap_b32 v{a}, v{b}", "s_nop 1",
                f"{op} v{a}, v{a}, v{b}"]

    def zero(self):
        return [f"v_mov_b32 v{self.acc+i}, 0" for i in range(32)]

    def spread(self, w, ins, start, per):
        k = start
        while ins:
            w.setdefault(divmod(k, 8), []).extend(ins[:per])
            ins = ins[per:]
            k += 1
        assert k <= 32

    def k_weave(self):
        acc, X, QR, A = self.acc, self.X, self.QR, self.A
        assert self.sslot == 3
        S = X
        w = {}
        cv = [f"v_cvt_pk_bf16_f32 v{A+4*g+m}, v{acc+4*(2*m)+g}, v{acc+4*(2*m+1)+g}" for g in range(4) for m in range(4)]
        w[(0, 1)] = [f"ds_read_b128 v[{QR+4*g}:{QR+4*g+3}], v{self.vQ} offset:{g*16}" for g in range(4)] + cv[:4]
        w[(0, 2)] = cv[4:12] + [f"v_add_u32 v{self.vQ}, 1024, v{self.vQ}"]
        w[(0, 3)] = cv[12:]
        mf = [f"v_mfma_f32_16x16x32_bf16 v[{S}:{S+3}], v[{A+4*g}:{A+4*g+3}], v[{QR+4*g}:{QR+4*g+3}], "
              + ("0" if g == 0 else f"v[{S}:{S+3}]") for g in range(4)]
        w[(0, 4)] = mf[:2]
        w[(0, 5)] = mf[2:]
        x = X + 4
        p = [f"v_cvt_pk_bf16_f32 v{x+4}, v{S}, v{S+1}", f"v_cvt_pk_bf16_f32 v{x+5}, v{S+2}, v{S+3}"]
        unpack = [f"v_lshlrev_b32 v{x+0}, 16, v{x+4}", f"v_and_b32 v{x+1}, 0xffff0000, v{x+4}",
                  f"v_lshlrev_b32 v{x+2}, 16, v{x+5}", f"v_and_b32 v{x+3}, 0xffff0000, v{x+5}"]
        p += unpack
        p += [f"v_mul_f32 v{x+i}, s{S_SCALE}, v{x+i}" for i in range(4)]
        p += [f"v_cvt_pk_bf16_f32 v{x+4}, v{x}, v{x+1}", f"v_cvt_pk_bf16_f32 v{x+5}, v{x+2}, v{x+3}"]
        p += unpack
        p += [f"v_max3_f32 v{x+6}, v{x}, v{x+1}, v{x+2}", f"v_max_f32 v{x+6}, v{x+6}, v{x+3}"]
        p += self.xlane("v_max_f32", x + 6, x + 7)
        p += [f"v_sub_f32 v{x+i}, v{x+i}, v{x+6}" for i in range(4)]
        p += [f"v_mul_f32 v{x+i}, s{S_LOG2E}, v{x+i}" for i in range(4)]
        p += [f"v_exp_f32 v{x+i}, v{x+i}" for i in range(4)]
        p += ["s_nop 0", f"v_add_f32 v{x+6}, v{x}, v{x+1}", f"v_add_f32 v{x+7}, v{x+2}, v{x+3}",
              f"v_add_f32 v{x+6}, v{x+6}, v{x+7}"]
        p += self.xlane("v_add_f32", x + 6, x + 7)
        p += [f"v_rcp_f32 v{x+6}, v{x+6}", "s_nop 0"]
        p += [f"v_mul_f32 v{x+i}, v{x+i}, v{x+6}" for i in range(4)]
        P0, P1 = self.P
        p += [f"v_mov_b32 v{P0}, v{P1}", f"v_mov_b32 v{P0+1}, v{P1+1}",
              f"v_cvt_pk_bf16_f32 v{P1}, v{x}, v{x+1}", f"v_cvt_pk_bf16_f32 v{P1+1}, v{x+2}, v{x+3}"]
        self.spread(w, p, 8, 4)
        return w

    def v_weave(self):
        acc, X, QR, A, P = self.acc, self.X, self.QR, self.A, self.P[0]
        w = {}
        cv = []
        for ec in range(8):
            a = acc + 4 * ec
            cv += [f"v_cvt_pk_bf16_f32 v{A+2*ec}, v{a}, v{a+1}", f"v_cvt_pk_bf16_f32 v{A+2*ec+1}, v{a+2}, v{a+3}"]
        w[(0, 1)], w[(0, 2)], w[(0, 3)] = cv[:6], cv[6:12], cv[12:]
        mf = [f"v_mfma_f32_16x16x16_bf16 v[{QR+4*(ec&3)}:{QR+4*(ec&3)+3}], v[{P}:{P+1}], v[{A+2*ec}:{A+2*ec+1}], 0"
              for ec in range(8)]
        o = X + 4
        oc = [f"v_cvt_pk_bf16_f32 v{o+m}, v{QR+8*(m&1)}, v{QR+8*(m&1)+4}" for m in range(4)]
        w[(0, 4)], w[(0, 5)] = mf[:2], mf[2:4]
        w[(1, 1)] = oc[:2]
        w[(1, 2)], w[(1, 3)] = mf[4:6], mf[6:]
        pol = (" " + self.outpol) if self.outpol else ""
        w[(1, 6)] = oc[2:] + [f"buffer_store_dwordx4 v[{o}:{o+3}], v{self.vK}, s[{SRD_O}:{SRD_O+3}], 0 offen{pol}"]
        return w

    def v_epilogue(self, head):
        acc, X, P, T = self.acc, self.X, self.P[head], self.T
        p = ["s_nop 3"]
        for ec in range(8):
            a = acc + 4 * ec
            p.append(f"v_cvt_pk_bf16_f32 v{a}, v{a}, v{a+1}")
            p.append(f"v_cvt_pk_bf16_f32 v{a+1}, v{a+2}, v{a+3}")
            if ec:
                a = acc + 4 * (ec - 1)
                p.append(f"v_mfma_f32_16x16x16_bf16 v[{T+4*(ec-1)}:{T+4*(ec-1)+3}], v[{P}:{P+1}], v[{a}:{a+1}], 0")
        a = acc + 28
        p.append("s_nop 0")
        p.append(f"v_mfma_f32_16x16x16_bf16 v[{T+28}:{T+31}], v[{P}:{P+1}], v[{a}:{a+1}], 0")
        p += ["s_nop 4"]
        o = X + 4
        for m in range(4):
            p.append(f"v_cvt_pk_bf16_f32 v{o+m}, v{T+4*(2*m)}, v{T+4*(2*m+1)}")
        off = " offset:1024" if head else ""
        pol = (" " + self.outpol) if self.outpol else ""
        p.append(f"buffer_store_dwordx4 v[{o}:{o+3}], v{self.vK}, s[{SRD_O}:{SRD_O+3}], 0 offen{off}{pol}")
        return p

    def stamp(self):
        if not self.ts:
            return
        g = self.vG
        self.emit([f"s_memrealtime s[{S_T1}:{S_T1+1}]", "s_waitcnt lgkmcnt(0)",
                   f"v_mov_b32_dpp v{g}, v{g} row_shr:1 row_mask:0xf bank_mask:0xf",
                   "s_nop 1", f"v_writelane_b32 v{g}, s{S_T1}, 0"])

    def flush(self, kind):
        self.emit(["s_nop 1"] + self.mfmas(kind, range(4, 8)))

    def srd(self, d, ptr, offreg, nrec):
        if offreg is None:
            self.e(f"s_mov_b32 s{d}, s{ptr}")
            self.e(f"s_mov_b32 s{d+1}, s{ptr+1}")
        else:
            self.e(f"s_add_u32 s{d}, s{ptr}, s{offreg}")
            self.e(f"s_addc_u32 s{d+1}, s{ptr+1}, 0")
        self.e(f"s_mov_b32 s{d+2}, {nrec:#x}")
        self.e(f"s_mov_b32 s{d+3}, 0x20000")

    def hooks(self, kind, j, tag):
        fix = post = None
        if j == 3 and kind == "K":
            fix = [f"s_cmp_eq_u32 s{S_CNT}, 1", f"s_cbranch_scc0 L_{tag}_nw",
                   f"v_add_u32 v{self.vE}, s{S_PH}, v{self.vE0}", f"L_{tag}_nw:"]
        if j == 3 and kind == "V":
            fix = [f"s_cmp_eq_u32 s{S_CNT}, 29", f"s_cbranch_scc0 L_{tag}_nw",
                   f"v_mov_b32 v{self.vE}, v{self.vE0}", f"L_{tag}_nw:",
                   f"s_cmp_eq_u32 s{S_CNT}, 1", f"s_cbranch_scc0 L_{tag}_nx",
                   f"v_add_u32 v{self.vE}, 8192, v{self.vE0}", f"L_{tag}_nx:"]
        if j == 0 and kind == "K":
            post = [f"s_add_u32 s{S_TMP}, s{S_CNT}, s{S_PH}",
                    f"s_cmp_eq_u32 s{S_TMP}, 8193",
                    f"s_cbranch_scc0 L_{tag}_ns",
                    f"s_mov_b32 s{SRD_D}, s{S_V}",
                    f"s_mov_b32 s{SRD_D+1}, s{S_V+1}",
                    f"s_lshl_b32 s{S_P}, s2, 21",
                    f"s_add_u32 s{S_P2}, s{S_P}, {self.boff()}",
                    f"L_{tag}_ns:"]
        return dict(fix=fix, post=post)

    def control(self, tag, branch=True):
        e = self.e
        if self.nm == 1:
            return
        e(f"s_and_b32 s{S_TMP}, s{S_CNT}, {self.every-1}")
        e(f"s_cbranch_scc1 L_{tag}_sel")
        H = f"s[{SRD_H}:{SRD_H+3}]"
        e(f"v_cmp_le_u32 s[{S_CMP}:{S_CMP+1}], s{S_MARK}, v{self.vH}")
        if self.glob:
            e(f"v_cmp_ne_u32 s[{S_CM2}:{S_CM2+1}], 0, v{self.vH}")
            e(f"v_readlane_b32 s{S_TH}, v{self.vH}, 15")
        e(f"s_add_u32 s{S_MARK}, s{S_MARK}, 1")
        e(f"v_mov_b32 v{self.vM}, s{S_MARK}")
        if self.glob:
            e(f"s_and_b64 s[{S_CMP}:{S_CMP+1}], s[{S_CMP}:{S_CMP+1}], s[{S_MSK}:{S_MSK+1}]")
        e(f"s_bcnt1_i32_b64 s{S_TMP}, s[{S_CMP}:{S_CMP+1}]")
        e(f"buffer_store_byte v{self.vM}, off, {H}, s{S_SLOT}")
        e(f"buffer_load_ubyte v{self.vH}, v0, {H}, 0 offen sc1")
        if self.glob:
            A, B = self.glob
            e(f"s_cmp_eq_u32 s{S_TH}, 0")
            e(f"s_cselect_b32 s{S_TH}, {self.th}, s{S_TH}")
            e(f"s_cmp_ge_u32 s{S_TMP}, s{S_TH}")
            e(f"s_cselect_b32 s{S_MODE}, 1, 0")
            e(f"s_and_b64 s[{S_CM2}:{S_CM2+1}], s[{S_CM2}:{S_CM2+1}], s[{S_MSK}:{S_MSK+1}]")
            e(f"s_ff1_i32_b64 s{S_TMP2}, s[{S_CM2}:{S_CM2+1}]")
            e(f"s_cmp_eq_u32 s{S_TMP2}, s{S_SLOT}")
            e(f"s_cbranch_scc0 L_{tag}_sel")
            if self.gev > 1:
                e(f"s_and_b32 s{S_TMP2}, s{S_MARK}, {self.gev-1}")
                e(f"s_cbranch_scc1 L_{tag}_sel")
            G = f"s[{SRD_G}:{SRD_G+3}]"
            e(f"v_cmp_le_u32 s[{S_CM2}:{S_CM2+1}], s{S_GM}, v{self.vG}")
            e(f"v_lshlrev_b32 v{self.vGA}, {self.gsh}, v0")
            e("s_mov_b64 exec, 1")
            e(f"buffer_store_dword v{self.vM}, off, {G}, s{S_XO} sc1")
            e("s_mov_b64 exec, -1")
            e(f"s_andn2_b64 s[{S_CM2}:{S_CM2+1}], s[{S_CM2}:{S_CM2+1}], s[{S_XM}:{S_XM+1}]")
            e(f"s_bcnt1_i32_b64 s{S_TMP2}, s[{S_CM2}:{S_CM2+1}]")
            e(f"s_cmp_eq_u32 s{S_GM}, 255")
            e(f"buffer_load_dword v{self.vG}, v{self.vGA}, {G}, 0 offen sc0 sc1")
            e(f"s_mov_b32 s{S_GM}, s{S_MARK}")
            e(f"s_cbranch_scc1 L_{tag}_sel")
            e(f"s_mul_i32 s{S_TMP2}, s{S_TMP2}, {B}")
            e(f"s_sub_u32 s{S_TMP2}, {A}, s{S_TMP2}")
            e(f"v_mov_b32 v{self.X+11}, s{S_TMP2}")
            e(f"buffer_store_byte v{self.X+11}, off, {H}, 0 offset:15")
        else:
            e(f"s_cmp_ge_u32 s{S_TMP}, s{S_TH}")
            e(f"s_cselect_b32 s{S_MODE}, 1, 0")
        if self.nm == 3:
            e(f"s_cmp_lt_u32 s{S_TMP}, {self.tl}")
            e(f"s_cselect_b32 s{S_MODE}, 2, s{S_MODE}")
        self.label(f"L_{tag}_sel")
        if tag == "v" and self.endhi:
            e(f"s_sub_u32 s{S_TMP}, s{S_CNT}, s{S_END}")
            e(f"s_mul_i32 s{S_TMP2}, s{S_END}, {self.endhi}")
            e(f"s_cmp_le_u32 s{S_TMP}, s{S_TMP2}")
            e(f"s_cselect_b32 s{S_MODE}, 1, s{S_MODE}")
        if self.diag:
            e(f"s_add_u32 s{S_NHI}, s{S_NHI}, s{S_MODE}")
        for md in range(1, self.nm if branch else 0):
            e(f"s_cmp_eq_u32 s{S_MODE}, {md}")
            e(f"s_cbranch_scc1 L_{tag}m{md}")

    def bodies(self, kind, c0, tag, Ns):
        state = (self.nops, self.done, dict(self.ldidx), dict(self.blk), set(self.freed), self.lastread)
        nmax = max(Ns)
        for md, N in enumerate(Ns):
            self.nops, self.done, self.ldidx, self.blk, self.freed, self.lastread = \
                state[0], state[1], dict(state[2]), dict(state[3]), set(state[4]), state[5]
            self.label(f"L_{tag}m{md}")
            for j in range(4):
                t = f"{tag}{md}_{j}"
                self.tile(c0 + j, kind, N, j=j, tag=t, **self.hooks(kind, j, t))
            if md < len(Ns) - 1:
                self.e(f"s_branch L_{tag}_next")
        self.label(f"L_{tag}_next")
        self.nops, self.done, self.ldidx, self.blk, self.freed, self.lastread = \
            state[0], state[1], dict(state[2]), dict(state[3]), set(state[4]), state[5]

    def peeled(self, kind, c0, tag, N, ckind, weave):
        state = (self.nops, self.done, dict(self.ldidx), dict(self.blk), set(self.freed), self.lastread)
        self.e(f"s_mov_b32 s{S_CNT}, 32")
        if kind == "K":
            self.e("s_mov_b64 vcc, 0" if self.nopiece else "s_mov_b64 vcc, -1")
        self.control(tag, branch=False)
        for j in range(4):
            t = f"{tag}_{j}"
            self.tile(c0 + j, kind, N, j=j, tag=t, ckind=ckind if j == 0 else None, czero=j == 0, cczero=j == 1,
                      weave=weave)
        self.nops, self.done, self.ldidx, self.blk, self.freed, self.lastread = state

    def replay(self, kind, c_from, c_to, N):
        keep = self.lines
        self.lines = []
        for c in range(c_from, c_to):
            self.tile(c, kind, N, j=c % 4)
        self.lines = keep

    def warmup(self, waits):
        e = self.e
        e(f"s_lshr_b32 s{S_TMP}, s2, 3")
        e(f"s_lshl_b32 s{S_TMP}, s{S_TMP}, 12")
        for i in range(4):
            off = f" offset:{i*1024}" if i else ""
            e(f"buffer_load_dwordx4 a[{4*i}:{3+4*i}], v{self.vK}, s[{SRD_P}:{SRD_P+3}], s{S_TMP} offen{off}")
            if waits:
                self.nops += 1

    def build(self):
        e = self.e
        NK, NV = self.NK, self.NV
        t0, t1 = self.X, self.X + 1
        self.lastread = -1
        e("s_cmp_ge_u32 s2, 256")
        e("s_cbranch_scc1 L_end")
        e("s_load_dwordx16 s[4:19], s[0:1], 0")
        if self.diag:
            e(f"s_memrealtime s[{S_T0}:{S_T0+1}]")
        if self.dbgt:
            e(f"s_memrealtime s[{S_T0}:{S_T0+1}]")
        if self.cw3:
            e(f"s_getpc_b64 s[{S_CM2}:{S_CM2+1}]")
            e(f"v_lshlrev_b32 v{self.vG}, 7, v0")
            if self.cw3 == 1:
                e(f"s_bfe_u32 s{S_TMP}, s2, 0x20003")
                e(f"s_min_u32 s{S_TMP}, s{S_TMP}, 2")
                e(f"s_lshl_b32 s{S_TMP}, s{S_TMP}, 13")
                e(f"s_add_u32 s{S_CM2}, s{S_CM2}, s{S_TMP}")
                e(f"s_addc_u32 s{S_CM2+1}, s{S_CM2+1}, 0")
            e(f"global_load_dword v{self.vM}, v{self.vG}, s[{S_CM2}:{S_CM2+1}]")
            self.nops += 1
        e(f"v_lshlrev_b32 v{self.vK}, 4, v0")
        e(f"s_lshl_b32 s{S_P}, s2, 21")
        e(f"s_add_u32 s{S_P2}, s{S_P}, {self.boff()}")
        e(f"s_mov_b32 s{SRD_D+2}, 0x20000000")
        e(f"s_mov_b32 s{SRD_D+3}, 0x20000")
        e(f"s_mov_b32 s{SRD_P+2}, 0x20000")
        e(f"s_mov_b32 s{SRD_P+3}, 0x20000")
        e(f"s_mov_b32 s{S_PO}, 0")
        e("s_mov_b32 m0, 0")
        e("s_waitcnt lgkmcnt(0)")
        e(f"s_mov_b32 s{SRD_D}, s{S_K}")
        e(f"s_mov_b32 s{SRD_D+1}, s{S_K+1}")
        e(f"s_mov_b32 s{SRD_P}, s{S_E}")
        e(f"s_mov_b32 s{SRD_P+1}, s{S_E+1}")
        NB0 = self.NB0

        def pieces(a, b):
            keep = self.epol
            self.epol = self.e0pol
            if self.ploop and a == 0:
                self.label("L_p0")
                e(self.piece_ins())
                e(f"s_add_u32 m0, m0, {ROWB}")
                e(f"s_add_u32 s{S_PO}, s{S_PO}, 8192")
                e(f"s_cmp_lt_u32 s{S_PO}, 0x20000")
                e("s_cbranch_scc1 L_p0")
                e(f"s_mov_b32 m0, 1024")
                e(f"s_mov_b32 s{S_PO}, 1024")
                for p in range(a, b):
                    self.note_piece(p)
                a = b
            for p in range(a, b):
                e(self.piece_ins())
                self.note_piece(p)
                if p == 15:
                    e(f"s_mov_b32 m0, 1024")
                    e(f"s_mov_b32 s{S_PO}, 1024")
                else:
                    e(f"s_add_u32 m0, m0, {ROWB}")
                    e(f"s_add_u32 s{S_PO}, s{S_PO}, 8192")
            self.epol = keep
        def codewarm():
            e(f"s_getpc_b64 s[{S_CM2}:{S_CM2+1}]")
            e(f"s_lshr_b32 s{S_TMP}, s2, 3")
            e(f"s_mul_i32 s{S_TMP}, s{S_TMP}, {128*self.cw2}")
            e(f"s_add_u32 s{S_CM2}, s{S_CM2}, s{S_TMP}")
            e(f"s_addc_u32 s{S_CM2+1}, s{S_CM2+1}, 0")
            for i in range(self.cw2):
                e(f"s_load_dword s{84+i}, s[{S_CM2}:{S_CM2+1}], {128*i}")
        nfirst = self.efirst
        for L in range(nfirst):
            self.kload(L)
        if self.cw2:
            codewarm()
        pieces(0, 16)
        for L in range(nfirst, NB0):
            self.kload(L)
        pieces(16, PRE)
        if self.warm:
            self.warmup(True)
        e(f"s_mov_b32 s{S_TMP2}, m0")
        e(f"s_lshl_b32 s{S_TMP}, s2, 11")
        e(f"s_mov_b32 m0, {LDS_Q}")
        self.srd(SRD_Q, S_Q, S_TMP, 0x800)
        e(f"buffer_load_dwordx4 v{self.vK}, s[{SRD_Q}:{SRD_Q+3}], 0 offen lds")
        e(f"buffer_load_dwordx4 v{self.vK}, s[{SRD_Q}:{SRD_Q+3}], 0 offen offset:1024 lds")
        self.nops += 2
        e(f"s_mov_b32 m0, s{S_TMP2}")
        self.srd(SRD_O, S_O, S_TMP, 0x800)
        if self.vtlb:
            e(f"s_lshl_b32 s{S_TMP}, s2, 21")
            e(f"s_add_u32 s{S_CM2}, s{S_V}, s{S_TMP}")
            e(f"s_addc_u32 s{S_CM2+1}, s{S_V+1}, 0")
            e(f"s_load_dword s{S_T1}, s[{S_CM2}:{S_CM2+1}], 0")
        e(f"v_and_b32 v{t0}, 15, v0")
        e(f"v_lshrrev_b32 v{t1}, 4, v0")
        e(f"v_mul_u32_u24 v{self.vE0}, {ROWB}, v{t0}")
        if self.pat == "h":
            e(f"v_bfe_u32 v{self.vE}, v0, 4, 1")
            e(f"v_lshl_add_u32 v{self.vE0}, v{self.vE}, 4, v{self.vE0}")
            e(f"v_lshrrev_b32 v{self.vE}, 5, v0")
            e(f"v_lshl_add_u32 v{self.vE0}, v{self.vE}, {(self.D//128).bit_length()-1}, v{self.vE0}")
        else:
            e(f"v_lshl_add_u32 v{self.vE0}, v{t1}, 4, v{self.vE0}")
        e(f"v_mov_b32 v{self.vE}, v{self.vE0}")
        e(f"v_lshrrev_b32 v{self.vQ}, 2, v{t0}")
        e(f"v_lshlrev_b32 v{self.vQ}, 8, v{self.vQ}")
        e(f"v_lshl_add_u32 v{self.vQ}, v{t1}, 6, v{self.vQ}")
        e(f"v_add_u32 v{self.vQ}, {LDS_Q-(0 if self.direct else 1024)}, v{self.vQ}")
        e(f"s_mov_b32 s{S_SEL_LO}, 0x05040100")
        e(f"s_mov_b32 s{S_SEL_HI}, 0x07060302")
        e(f"s_mov_b32 s{S_SCALE}, 0x3db504f3")
        e(f"s_mov_b32 s{S_LOG2E}, 0x3fb8aa3b")
        if self.nm > 1:
            self.srd(SRD_H, S_DBG, None, 256)
            e(f"s_getreg_b32 s{S_TMP}, hwreg(HW_REG_HW_ID, 8, 4)")
            e(f"s_getreg_b32 s{S_TMP2}, hwreg(HW_REG_HW_ID, 13, 2)")
            e(f"s_getreg_b32 s{S_XCC}, hwreg(HW_REG_XCC_ID, 0, 3)")
            e(f"s_lshl_b32 s{S_TMP2}, s{S_TMP2}, 4")
            e(f"s_or_b32 s{S_SLOT}, s{S_TMP}, s{S_TMP2}")
            e(f"s_mov_b32 s{S_MSK}, 0x7fff7fff")
            e(f"s_mov_b32 s{S_MSK+1}, 0x7fff7fff")
            e(f"s_bitcmp1_b32 s{S_XCC}, 0")
            e(f"s_cselect_b32 s{S_TH}, {self.th + self.par}, {self.th - self.par}")
            if self.glob:
                e(f"s_mov_b32 s{S_GM}, 255")
                e(f"s_lshl_b64 s[{S_XM}:{S_XM+1}], 1, s{S_XCC}")
                sh = self.gsh
                if self.gws:
                    e(f"s_mov_b32 s{S_TMP}, 0x380000")
                    self.srd(SRD_G, S_WS, S_TMP, 8 << sh)
                else:
                    e(f"s_mov_b32 s{S_TMP}, 128")
                    self.srd(SRD_G, S_DBG, S_TMP, 8 << sh)
                e(f"s_lshl_b32 s{S_XO}, s{S_XCC}, {sh}")

            e(f"v_mov_b32 v{self.vG}, 0")
            e(f"v_mov_b32 v{self.vH}, 0")
            e(f"s_mov_b32 s{S_MARK}, 1")
            e(f"s_mov_b32 s{S_MODE}, 0")
        if self.codewarm:
            e(f"s_getpc_b64 s[{S_T1}:{S_T1+1}]")
            e(f"s_lshr_b32 s{S_TMP}, s2, 3")
            e(f"s_and_b32 s{S_TMP}, s{S_TMP}, 15")
            e(f"s_lshl_b32 s{S_TMP}, s{S_TMP}, 10")
            e(f"s_add_u32 s{S_T1}, s{S_T1}, s{S_TMP}")
            e(f"s_addc_u32 s{S_T1+1}, s{S_T1+1}, 0")
            e(f"global_load_dwordx4 a[12:15], v{self.vK}, s[{S_T1}:{S_T1+1}]")
            self.nops += 1
        if self.diag:
            self.srd(SRD_W, S_WS, None, 0x1000000)
            e(f"s_mov_b32 s{S_NHI}, 0")
        if self.direct:
            for r in list(range(self.acc, self.acc + 32)) + list(range(self.T + 16, self.T + 32)) + \
                    list(range(self.W, self.W + 4)):
                e(f"v_mov_b32 v{r}, 0")
        for L in range(NB0, 24 + self.delta):
            self.wait(self.nops - 1 - self.ldidx[divmod(L - NB0, 8)])
            self.kload(L)
        idx = self.blk[0][1]
        if idx > self.done:
            self.wait(self.nops - 1 - idx)
        self.check_read(0)
        e(f"ds_read_b128 v[{self.R}:{self.R+3}], v{self.vE}")
        self.stamp()
        e(f"s_mov_b32 s{S_PH}, 0")
        e(f"s_mov_b32 s{S_END}, {PRE//4}")
        if self.direct:
            e(f"s_mov_b32 s{S_CNT}, 32")
        else:
            self.label("L_khead")
            self.peeled("K", 0, "kp", NK[0] + self.NP, "K", self.k_weave())
            e("s_branch L_k_next")
        self.label("L_k")
        e(f"s_cmp_eq_u32 s{S_CNT}, s{S_END}")
        e("s_cbranch_scc0 L_nf")
        e(f"s_mov_b32 s{SRD_P}, s{S_F}")
        e(f"s_mov_b32 s{SRD_P+1}, s{S_F+1}")
        e(f"s_mov_b32 s{S_PO}, 0")
        e(f"s_mov_b32 m0, 8192")
        if self.warm:
            self.warmup(False)
        self.label("L_nf")
        e(f"s_cmp_gt_u32 s{S_CNT}, s{S_END}")
        e("s_cselect_b64 vcc, 0, 0" if self.nopiece else "s_cselect_b64 vcc, -1, 0")
        self.control("k")
        self.bodies("K", 0, "k", NK)
        e(f"s_sub_u32 s{S_CNT}, s{S_CNT}, 1")
        e(f"s_cmp_lg_u32 s{S_CNT}, 0")
        e("s_cbranch_scc1 L_k")
        self.stamp()
        e(f"s_cmp_eq_u32 s{S_PH}, 0")
        e(f"s_mov_b32 s{S_END}, 0")
        e(f"s_mov_b32 s{S_PH}, 8192")
        if self.direct:
            e("s_cbranch_scc0 L_vstart")
            self.peeled("K", 0, "kp", NK[0] + self.NP, "K", self.k_weave())
            e("s_branch L_k_next")
            self.label("L_vstart")
        else:
            e("s_cbranch_scc1 L_khead")
        self.replay("K", 0, 256, max(NK))
        self.peeled("V", 256, "vp", NV[0] + self.NP, "K", self.k_weave())
        e("s_branch L_v_next")
        self.label("L_v")
        self.control("v")
        self.bodies("V", 256, "v", NV)
        e(f"s_sub_u32 s{S_CNT}, s{S_CNT}, 1")
        e(f"s_cmp_lg_u32 s{S_CNT}, s{S_END}")
        e("s_cbranch_scc1 L_v")
        e(f"s_cmp_eq_u32 s{S_END}, 1")
        e("s_cbranch_scc1 L_tail")
        self.stamp()
        e(f"s_mov_b32 s{S_END}, 1")
        self.peeled("V", 256, "vq", NV[0] + self.NP, "V", self.v_weave())
        e("s_branch L_v_next")
        self.label("L_tail")
        self.replay("V", 256, 508, max(NV))
        self.stamp()
        for c in range(508, 512):
            self.tile(c, "V", max(NV))
        self.stamp()
        self.flush("V")
        self.emit(self.v_epilogue(1))
        if self.diag:
            e("s_waitcnt vmcnt(0)")
            e(f"s_memrealtime s[{S_T1}:{S_T1+1}]")
            e(f"s_getreg_b32 s{S_TMP2}, hwreg(HW_REG_XCC_ID)")
            e(f"s_and_b32 s{S_TMP2}, s{S_TMP2}, 15")
            e(f"s_lshl_b32 s{S_TMP}, s2, 4")
            e("s_waitcnt lgkmcnt(0)")
            o = self.W
            e(f"v_mov_b32 v{o}, s{S_T0}")
            e(f"v_mov_b32 v{o+1}, s{S_T1}")
            e(f"v_mov_b32 v{o+2}, s{S_TMP2}")
            e(f"s_lshl_b32 s{S_NHI}, s{S_NHI}, 8")
            e(f"v_mov_b32 v{o+3}, s{S_NHI}")
            e(f"v_mov_b32 v{t0}, s{S_TMP}")
            if self.ts:
                e(f"v_lshlrev_b32 v{t1}, 2, v0")
                e(f"s_lshl_b32 s{S_TMP}, s2, 8")
                e(f"s_add_u32 s{S_TMP}, s{S_TMP}, 0x200000")
                e(f"buffer_store_dword v{self.vG}, v{t1}, s[{SRD_W}:{SRD_W+3}], s{S_TMP} offen")
            e("s_mov_b64 exec, 1")
            e(f"buffer_store_dwordx4 v[{o}:{o+3}], v{t0}, s[{SRD_W}:{SRD_W+3}], 0 offen")
        if self.dbgt:
            e("s_waitcnt vmcnt(0)")
            e(f"s_memrealtime s[{S_T1}:{S_T1+1}]")
            e("s_waitcnt lgkmcnt(0)")
            e(f"s_sub_u32 s{S_TMP}, s{S_T1}, s{S_T0}")
            e(f"s_not_b32 s{S_T0}, s{S_T0}")
            e(f"s_atomic_umax s{S_T1}, s[{S_DBG}:{S_DBG+1}], 0x0")
            e(f"s_atomic_umax s{S_T0}, s[{S_DBG}:{S_DBG+1}], 0x4")
            e(f"s_atomic_add s{S_TMP}, s[{S_DBG}:{S_DBG+1}], 0x8")
            e("s_waitcnt lgkmcnt(0)")
        self.label("L_end")
        e("s_endpgm")

        out = HEADER
        out += f"; @launch grid=(256,1,1) block=(64,1,1) lds={LDS_BYTES}\n"
        out += '.amdgcn_target "amdgcn-amd-amdhsa--gfx950"\n.text\n'
        out += f".globl {NAME}_kernel\n.p2align 8\n.type {NAME}_kernel,@function\n{NAME}_kernel:\n"
        out += "\n".join(self.lines) + "\n"
        if self.cw2 or self.cw3:
            out += ".fill CWPAD, 4, 0xbf800000\n    s_endpgm\n"
        if self.codewarm:
            out += ".fill 1280, 4, 0xbf800000\n    s_endpgm\n"
        out += '.section .rodata,"a"\n.p2align 6\n'
        out += f".amdhsa_kernel {NAME}_kernel\n"
        out += f"  .amdhsa_next_free_vgpr {self.nv + self.nagpr}\n"
        out += f"  .amdhsa_next_free_sgpr 96\n"
        out += f"  .amdhsa_accum_offset {self.nv}\n"
        out += "  .amdhsa_group_segment_fixed_size 0\n  .amdhsa_kernarg_size 64\n"
        out += "  .amdhsa_user_sgpr_count 2\n  .amdhsa_user_sgpr_kernarg_segment_ptr 1\n"
        out += "  .amdhsa_system_sgpr_workgroup_id_x 1\n"
        out += "  .amdhsa_float_denorm_mode_32 3\n"
        out += ".end_amdhsa_kernel\n"
        if self.cw2 or self.cw3:
            k = next(i for i, l in enumerate(self.lines) if "s_getpc" in l)
            low = sum(8 if l.split()[0].startswith(("buffer_", "ds_", "v_perm_", "v_mfma", "v_cvt_pk")) else
                      0 if l.endswith(":") else 4 for l in self.lines[k:])
            out = out.replace("CWPAD", str(max(1, (max(32 * 128 * self.cw2, 24576 if self.cw3 else 0) + 256 - low) // 4 + 1)))
        return out


if __name__ == "__main__":
    ap = argparse.ArgumentParser()
    tup = lambda s: tuple(int(x) for x in s.split(","))
    ap.add_argument("-o", default=f"cdna_kernels/{NAME}.s")
    ap.add_argument("--NK", type=tup, default=(23, 28))
    ap.add_argument("--NV", type=tup, default=(21, 26))
    ap.add_argument("--delta", type=int, default=6)
    ap.add_argument("--th", type=int, default=24)
    ap.add_argument("--tl", type=int, default=9)
    ap.add_argument("--every", type=int, default=2)
    ap.add_argument("--kpol", default="nt")
    ap.add_argument("--epol", default="")
    ap.add_argument("--outpol", default="")
    ap.add_argument("--sslot", type=int, default=3)
    ap.add_argument("--pslot", type=int, default=2)
    ap.add_argument("--warm", type=int, default=1)
    ap.add_argument("--endhi", type=int, default=0)
    ap.add_argument("--dbgt", action="store_true")
    ap.add_argument("--cw3", type=int, default=0)
    ap.add_argument("--ploop", action="store_true")
    ap.add_argument("--nodirect", action="store_true")
    ap.add_argument("--cw2", type=int, default=0)
    ap.add_argument("--gws", action="store_true")
    ap.add_argument("--gsh", type=int, default=4)
    ap.add_argument("--novtlb", action="store_true")
    ap.add_argument("--NP", type=int, default=2)
    ap.add_argument("--efirst", type=int, default=20)
    ap.add_argument("--NB0", type=int, default=20)
    ap.add_argument("--e0pol", default="")
    ap.add_argument("--ts", action="store_true")
    ap.add_argument("--nopiece", action="store_true")
    ap.add_argument("--nocomp", action="store_true")
    ap.add_argument("--pat", default="lin")
    ap.add_argument("--D", type=int, default=32)
    ap.add_argument("--codewarm", action="store_true")
    ap.add_argument("--par", type=int, default=0)
    ap.add_argument("--gev", type=int, default=4)
    ap.add_argument("--glob", type=tup, default=None)
    ap.add_argument("--diag", action="store_true")
    a = ap.parse_args()
    g = Gen13(a.NK, a.NV, a.delta, a.th, a.every, a.kpol, a.epol, a.diag, a.outpol, a.sslot, a.pslot,
              warm=a.warm, tl=a.tl, endhi=a.endhi, dbgt=a.dbgt, glob=a.glob, gev=a.gev, par=a.par, codewarm=a.codewarm, pat=a.pat, D=a.D*1024, ts=a.ts, nopiece=a.nopiece, nocomp=a.nocomp, efirst=a.efirst, e0pol=a.e0pol, NB0=a.NB0, vtlb=not a.novtlb, NP=a.NP, gws=a.gws, gsh=a.gsh, cw2=a.cw2, direct=not a.nodirect, cw3=a.cw3, ploop=a.ploop)
    s = g.build()
    open(a.o, "w").write(s)
    print(f"wrote {a.o}: nv={g.nv} lines={len(g.lines)}")
```

```python
import argparse
from gen import HEADER, NAME

S_Q, S_K, S_V, S_E, S_F, S_O, S_DBG, S_WS = 4, 6, 8, 10, 12, 14, 16, 18
SRD_D, SRD_P, SRD_O, SRD_W, SRD_Q, SRD_H = 20, 24, 28, 32, 56, 60
S_P, S_P2, S_CNT, S_SEL_LO, S_SEL_HI, S_TMP, S_TMP2 = 36, 37, 38, 39, 40, 41, 42
S_SCALE, S_LOG2E, S_END = 43, 44, 45
S_PO, S_PH, S_MARK, S_MODE = 46, 47, 52, 53
S_CMP = 54
S_T0, S_T1 = 48, 50
S_NHI = 68
S_SLOT, S_XCC, S_GM, S_TH = 64, 65, 66, 67
S_MSK, S_CM2, S_XM = 70, 72, 74
SRD_G, S_XO = 76, 69
ROWB = 9 * 1024 + 16
LDS_Q = 16 * ROWB
LDS_BYTES = LDS_Q + 2048
NB = 4
PRE = 20


class Gen13:
    def __init__(self, NK=(23, 28), NV=(21, 26), delta=6, th=24, every=2, kpol="nt", epol="", diag=False,
                 outpol="", sslot=3, pslot=2, N0=52, warm=1, tl=None, endhi=0, dbgt=False, glob=None, gev=4, par=0, codewarm=False, pat='lin', D=32768, ts=False, nopiece=False, nocomp=False, efirst=0, e0pol='', NB0=20, vtlb=True, NP=2, gws=False, gsh=4, cw2=0, cwpos=8, direct=True, cw3=0, ploop=False, sub=1, late=0, hold=False):
        self.sub, self.late, self.hold = sub, late, hold
        self.cw3, self.ploop = cw3, ploop
        self.direct = direct
        self.cw2, self.cwpos = cw2, cwpos
        self.gws, self.gsh = gws, gsh
        self.vtlb, self.NP = vtlb, NP
        self.efirst, self.e0pol, self.NB0 = efirst, e0pol, NB0
        self.ts, self.nopiece, self.nocomp = ts, nopiece, nocomp
        self.pat, self.D = pat, D
        self.codewarm = codewarm
        self.par = par
        self.gev = gev
        self.glob = glob
        self.dbgt = dbgt
        self.NK, self.NV, self.delta, self.th, self.every = NK, NV, delta, th, every
        self.kpol, self.epol, self.diag, self.outpol = kpol, epol, diag, outpol
        self.sslot, self.pslot, self.N0, self.warm = sslot, pslot, N0, warm
        self.tl, self.endhi = tl, endhi
        self.nm = len(NK)
        self.lines = []
        self.vK, self.vE, self.vQ, self.vE0 = 1, 2, 3, 4
        self.vH, self.vG, self.vM = 5, 10, 11
        self.P = [6, 8]
        self.vL2, self.vH2, self.vH3 = 0, 0, 0
        self.vGA = 30
        self.W, self.R, self.X = 12, 16, 20
        r = 32
        self.T = r; r += 32
        self.acc = r; r += 32
        self.tb = []
        for b in range(NB):
            self.tb.append(r); r += 32
        self.QR, self.A = r, r + 16
        r += 32
        self.nv = r
        self.nagpr = 16 if warm else 0
        self.nops = 0
        self.done = -1
        self.ldidx = {}
        self.blk = {}
        self.freed = set()

    def e(self, s):
        self.lines.append("    " + s)

    def label(self, s):
        self.lines.append(s + ":")

    def emit(self, ins):
        for s in ins:
            if self.nocomp and s.startswith(("v_perm", "v_mfma")):
                continue
            self.lines.append(s if s.endswith(":") else "    " + s)

    def wait(self, n):
        self.e(f"s_waitcnt vmcnt({n})")
        self.done = max(self.done, self.nops - n - 1)

    def aoff(self, t):
        D = self.D
        if self.pat == "lin":
            return t * 8192
        if self.pat == "h":
            nb = D // 4096
            return (t // nb) * 2 * D + (t % nb) * 4096
        nb = 2 * D // 8192
        return (t // nb) * 2 * D + (t & 1) * D + ((t % nb) >> 1) * 8192

    def boff(self):
        return self.D if self.pat == "h" else 4096

    def nblk(self):
        return {"lin": 4, "h": self.D // 4096, "big": 2 * self.D // 8192}[self.pat]

    def step(self, reg, tau, second):
        inc = self.aoff(tau % 4 + 1) - self.aoff(tau % 4) if (tau % 4 != 3 or self.nblk() > 4) else \
            self.aoff(4) - self.aoff(3)
        if inc >= 0:
            self.e(f"s_add_u32 s{reg}, s{reg}, {inc}")
        else:
            self.e(f"s_sub_u32 s{reg}, s{reg}, {-inc}")
        if tau % 4 == 3 and self.nblk() > 4:
            low = (self.boff() if second else 0) & (self.D - 1)
            self.e(f"s_and_b32 s{S_TMP}, s{reg}, {self.D-1}")
            self.e(f"s_cmp_eq_u32 s{S_TMP}, {low}")
            self.e(f"s_cselect_b32 s{S_TMP}, {self.D}, 0")
            self.e(f"s_add_u32 s{reg}, s{reg}, s{S_TMP}")

    def estep(self, c):
        vE = self.vE
        j = c % 4
        nb = self.nblk()
        inc = (self.aoff(j + 1) - self.aoff(j)) // 128
        if j == 3 and nb > 4:
            q = nb // 4
            return [f"s_and_b32 s{S_TMP}, s{S_CNT}, {q-1}", f"s_cmp_eq_u32 s{S_TMP}, 1",
                    f"s_cselect_b32 s{S_TMP}, {inc + self.D//128}, {inc}",
                    f"v_add_u32 v{vE}, s{S_TMP}, v{vE}"]
        if inc >= 0:
            return [f"v_add_u32 v{vE}, {inc}, v{vE}"]
        return [f"v_subrev_u32 v{vE}, {-inc}, v{vE}"]

    def kload(self, L):
        tau, k = divmod(L, 8)
        if tau >= NB:
            assert (tau - NB, k >> 1) in self.freed, (tau, k)
        t = self.tb[tau % NB] + 4 * k
        pol = (" " + self.kpol) if self.kpol else ""
        o, so = k * 1024, S_P
        if o >= 4096:
            o -= 4096; so = S_P2
        off = f" offset:{o}" if o else ""
        self.e(f"buffer_load_dwordx4 v[{t}:{t+3}], v{self.vK}, s[{SRD_D}:{SRD_D+3}], s{so} offen{off}{pol}")
        self.ldidx[(tau, k)] = self.nops
        self.nops += 1
        if k == 3:
            self.step(S_P, tau, False)
        if k == 7:
            self.step(S_P2, tau, True)

    def piece_of(self, c):
        if c < 128 - PRE:
            return PRE + c
        if 128 <= c < 256:
            return c
        return None

    def note_piece(self, p):
        which, b = ("E", p // 16) if p < 128 else ("F", (p - 128) // 16)
        pos = b if which == "E" else (b + 8) % 9
        if p % 16 == 0 and pos in self.blk:
            old = self.blk[pos][0]
            assert old[0] == "E" and self.lastread >= 128 + 16 * old[1] + 15, (p, old, self.lastread)
        self.blk[pos] = ((which, b), self.nops if p % 16 == 15 else 1 << 30)
        self.nops += 1

    def piece_ins(self):
        pol = (" " + self.epol) if self.epol else ""
        return f"buffer_load_dwordx4 v{self.vK}, s[{SRD_P}:{SRD_P+3}], s{S_PO} offen{pol} lds"

    def piece_next(self, j, tag):
        out = [f"s_add_u32 s{S_PO}, s{S_PO}, 8192", f"s_add_u32 m0, m0, {ROWB}"]
        if j == 3:
            out += [f"s_cmp_ge_u32 s{S_PO}, 0x20000", f"s_cbranch_scc0 L_{tag}_np",
                    f"s_sub_u32 s{S_PO}, s{S_PO}, {0x20000-1024}", f"s_sub_u32 m0, m0, {16*ROWB-1024}",
                    f"s_cmp_eq_u32 m0, {9*1024}", f"s_cselect_b32 m0, 0, m0"]
        return out

    def check_read(self, n):
        which, b = ("E" if n < 256 else "F"), (n % 128) // 16
        pos = b if which == "E" else (b + 8) % 9
        content, idx = self.blk[pos]
        assert content == (which, b) and idx <= self.done, (n, content, idx, self.done)

    def perms(self, c, m, half):
        t = self.tb[c % NB]
        out = []
        for ec in range(4 * half, 4 * half + 4):
            sel = S_SEL_HI if ec & 1 else S_SEL_LO
            cc = ec >> 1
            out.append(f"v_perm_b32 v{self.T+4*ec+m}, v{t+4*(2*m+1)+cc}, v{t+4*(2*m)+cc}, s{sel}")
        return out

    def mfmas(self, kind, es, czero=False):
        W = self.W
        out = []
        for ec in es:
            a, tm = self.acc + 4 * ec, self.T + 4 * ec
            x, y = f"v[{tm}:{tm+3}]", f"v[{W}:{W+3}]"
            if kind == "V":
                x, y = y, x
            cin = "0" if czero else f"v[{a}:{a+3}]"
            out.append(f"v_mfma_f32_16x16x32_bf16 v[{a}:{a+3}], {x}, {y}, {cin}")
        return out

    def shuffle(self, c, fix, nxt=True):
        W, R = self.W, self.R
        g = ["s_waitcnt lgkmcnt(0)",
             f"v_perm_b32 v{W}, v{R+2}, v{R}, s{S_SEL_LO}",
             f"v_perm_b32 v{W+2}, v{R+3}, v{R+1}, s{S_SEL_LO}",
             f"v_perm_b32 v{W+1}, v{R+2}, v{R}, s{S_SEL_HI}",
             f"v_perm_b32 v{W+3}, v{R+3}, v{R+1}, s{S_SEL_HI}",
             f"v_permlane32_swap_b32 v{W}, v{W+2}"]
        g += self.estep(c) if nxt else ["s_nop 0"]
        g += [f"v_permlane32_swap_b32 v{W+1}, v{W+3}"]
        if fix:
            g += fix
        g += [f"ds_read_b128 v[{R}:{R+3}], v{self.vE}" if nxt else "s_nop 0"]
        g2 = [f"v_permlane16_swap_b32 v{W}, v{W+1}", f"v_permlane16_swap_b32 v{W+2}, v{W+3}"]
        return g, g2

    def tile(self, c, kind, N, j=0, fix=None, post=None, tag="x", ckind=None, czero=False, cczero=False,
             weave=None):
        nxt = c + 1 < 512
        late = []
        for i in range(8):
            m, half = i >> 1, i & 1
            if kind == "K" and i == self.pslot:
                p = self.piece_of(c)
                self.e(f"s_cbranch_vccz L_{tag}_np")
                if p is not None:
                    self.wait(N - 1)
                    self.note_piece(p)
                else:
                    self.e(f"s_waitcnt vmcnt({N-1})")
                self.e(self.piece_ins())
                self.emit(self.piece_next(j, tag))
                self.label(f"L_{tag}_np")
            L = 8 * (c + 3) + i + self.delta
            if L < 4096:
                self.wait(N - 1)
                self.kload(L)
                if L % 8 == 7 and post:
                    self.emit(post)
            idx = self.ldidx[(c, 2 * m + 1)]
            if L >= 4096 and idx > self.done:
                self.wait(self.nops - 1 - idx)
            assert idx <= self.done, (c, i)
            pm = self.perms(c, m, half)
            if i == 0:
                for a, b in zip(self.mfmas(ckind or kind, range(4, 8), cczero), pm):
                    self.emit([a, b])
            elif i == 7:
                for a, b in zip(self.mfmas(kind, range(4), czero), pm):
                    self.emit([a, b])
            else:
                self.emit(pm)
            if half:
                self.freed.add((c, m))
            if late:
                self.emit(late)
                late = []
            if i == self.sslot:
                self.lastread = c
                if nxt:
                    self.check_read(c + 1)
                g, late = self.shuffle(c, fix, nxt)
                self.emit(g)
            if weave and (j, i) in weave:
                self.emit(weave[(j, i)])

    def xlane(self, op, a, b):
        return [f"v_mov_b32 v{b}, v{a}", "s_nop 1", f"v_permlane16_swap_b32 v{a}, v{b}", "s_nop 1",
                f"{op} v{a}, v{a}, v{b}",
                f"v_mov_b32 v{b}, v{a}", "s_nop 1", f"v_permlane32_swap_b32 v{a}, v{b}", "s_nop 1",
                f"{op} v{a}, v{a}, v{b}"]

    def zero(self):
        return [f"v_mov_b32 v{self.acc+i}, 0" for i in range(32)]

    def spread(self, w, ins, start, per):
        k = start
        while ins:
            w.setdefault(divmod(k, 8), []).extend(ins[:per])
            ins = ins[per:]
            k += 1
        assert k <= 32

    def k_weave(self):
        acc, X, QR, A = self.acc, self.X, self.QR, self.A
        assert self.sslot == 3
        S = X
        w = {}
        cv = [f"v_cvt_pk_bf16_f32 v{A+4*g+m}, v{acc+4*(2*m)+g}, v{acc+4*(2*m+1)+g}" for g in range(4) for m in range(4)]
        w[(0, 1)] = [f"ds_read_b128 v[{QR+4*g}:{QR+4*g+3}], v{self.vQ} offset:{g*16}" for g in range(4)] + cv[:4]
        w[(0, 2)] = cv[4:12] + [f"v_add_u32 v{self.vQ}, 1024, v{self.vQ}"]
        w[(0, 3)] = cv[12:]
        mf = [f"v_mfma_f32_16x16x32_bf16 v[{S}:{S+3}], v[{A+4*g}:{A+4*g+3}], v[{QR+4*g}:{QR+4*g+3}], "
              + ("0" if g == 0 else f"v[{S}:{S+3}]") for g in range(4)]
        w[(0, 4)] = mf[:2]
        w[(0, 5)] = mf[2:]
        x = X + 4
        p = [f"v_cvt_pk_bf16_f32 v{x+4}, v{S}, v{S+1}", f"v_cvt_pk_bf16_f32 v{x+5}, v{S+2}, v{S+3}"]
        unpack = [f"v_lshlrev_b32 v{x+0}, 16, v{x+4}", f"v_and_b32 v{x+1}, 0xffff0000, v{x+4}",
                  f"v_lshlrev_b32 v{x+2}, 16, v{x+5}", f"v_and_b32 v{x+3}, 0xffff0000, v{x+5}"]
        p += unpack
        p += [f"v_mul_f32 v{x+i}, s{S_SCALE}, v{x+i}" for i in range(4)]
        p += [f"v_cvt_pk_bf16_f32 v{x+4}, v{x}, v{x+1}", f"v_cvt_pk_bf16_f32 v{x+5}, v{x+2}, v{x+3}"]
        p += unpack
        p += [f"v_max3_f32 v{x+6}, v{x}, v{x+1}, v{x+2}", f"v_max_f32 v{x+6}, v{x+6}, v{x+3}"]
        p += self.xlane("v_max_f32", x + 6, x + 7)
        p += [f"v_sub_f32 v{x+i}, v{x+i}, v{x+6}" for i in range(4)]
        p += [f"v_mul_f32 v{x+i}, s{S_LOG2E}, v{x+i}" for i in range(4)]
        p += [f"v_exp_f32 v{x+i}, v{x+i}" for i in range(4)]
        p += ["s_nop 0", f"v_add_f32 v{x+6}, v{x}, v{x+1}", f"v_add_f32 v{x+7}, v{x+2}, v{x+3}",
              f"v_add_f32 v{x+6}, v{x+6}, v{x+7}"]
        p += self.xlane("v_add_f32", x + 6, x + 7)
        p += [f"v_rcp_f32 v{x+6}, v{x+6}", "s_nop 0"]
        p += [f"v_mul_f32 v{x+i}, v{x+i}, v{x+6}" for i in range(4)]
        P0, P1 = self.P
        p += [f"v_mov_b32 v{P0}, v{P1}", f"v_mov_b32 v{P0+1}, v{P1+1}",
              f"v_cvt_pk_bf16_f32 v{P1}, v{x}, v{x+1}", f"v_cvt_pk_bf16_f32 v{P1+1}, v{x+2}, v{x+3}"]
        self.spread(w, p, 8, 4)
        return w

    def v_weave(self):
        acc, X, QR, A, P = self.acc, self.X, self.QR, self.A, self.P[0]
        w = {}
        cv = []
        for ec in range(8):
            a = acc + 4 * ec
            cv += [f"v_cvt_pk_bf16_f32 v{A+2*ec}, v{a}, v{a+1}", f"v_cvt_pk_bf16_f32 v{A+2*ec+1}, v{a+2}, v{a+3}"]
        w[(0, 1)], w[(0, 2)], w[(0, 3)] = cv[:6], cv[6:12], cv[12:]
        mf = [f"v_mfma_f32_16x16x16_bf16 v[{QR+4*(ec&3)}:{QR+4*(ec&3)+3}], v[{P}:{P+1}], v[{A+2*ec}:{A+2*ec+1}], 0"
              for ec in range(8)]
        o = X + 4
        oc = [f"v_cvt_pk_bf16_f32 v{o+m}, v{QR+8*(m&1)}, v{QR+8*(m&1)+4}" for m in range(4)]
        w[(0, 4)], w[(0, 5)] = mf[:2], mf[2:4]
        w[(1, 1)] = oc[:2]
        w[(1, 2)], w[(1, 3)] = mf[4:6], mf[6:]
        pol = (" " + self.outpol) if self.outpol else ""
        w[(1, 6)] = oc[2:] + [f"buffer_store_dwordx4 v[{o}:{o+3}], v{self.vK}, s[{SRD_O}:{SRD_O+3}], 0 offen{pol}"]
        return w

    def v_epilogue(self, head):
        acc, X, P, T = self.acc, self.X, self.P[head], self.T
        p = ["s_nop 3"]
        for ec in range(8):
            a = acc + 4 * ec
            p.append(f"v_cvt_pk_bf16_f32 v{a}, v{a}, v{a+1}")
            p.append(f"v_cvt_pk_bf16_f32 v{a+1}, v{a+2}, v{a+3}")
            if ec:
                a = acc + 4 * (ec - 1)
                p.append(f"v_mfma_f32_16x16x16_bf16 v[{T+4*(ec-1)}:{T+4*(ec-1)+3}], v[{P}:{P+1}], v[{a}:{a+1}], 0")
        a = acc + 28
        p.append("s_nop 0")
        p.append(f"v_mfma_f32_16x16x16_bf16 v[{T+28}:{T+31}], v[{P}:{P+1}], v[{a}:{a+1}], 0")
        p += ["s_nop 4"]
        o = X + 4
        for m in range(4):
            p.append(f"v_cvt_pk_bf16_f32 v{o+m}, v{T+4*(2*m)}, v{T+4*(2*m+1)}")
        off = " offset:1024" if head else ""
        pol = (" " + self.outpol) if self.outpol else ""
        p.append(f"buffer_store_dwordx4 v[{o}:{o+3}], v{self.vK}, s[{SRD_O}:{SRD_O+3}], 0 offen{off}{pol}")
        return p

    def stamp(self):
        if not self.ts:
            return
        g = self.vG
        self.emit([f"s_memrealtime s[{S_T1}:{S_T1+1}]", "s_waitcnt lgkmcnt(0)",
                   f"v_mov_b32_dpp v{g}, v{g} row_shr:1 row_mask:0xf bank_mask:0xf",
                   "s_nop 1", f"v_writelane_b32 v{g}, s{S_T1}, 0"])

    def flush(self, kind):
        self.emit(["s_nop 1"] + self.mfmas(kind, range(4, 8)))

    def srd(self, d, ptr, offreg, nrec):
        if offreg is None:
            self.e(f"s_mov_b32 s{d}, s{ptr}")
            self.e(f"s_mov_b32 s{d+1}, s{ptr+1}")
        else:
            self.e(f"s_add_u32 s{d}, s{ptr}, s{offreg}")
            self.e(f"s_addc_u32 s{d+1}, s{ptr+1}, 0")
        self.e(f"s_mov_b32 s{d+2}, {nrec:#x}")
        self.e(f"s_mov_b32 s{d+3}, 0x20000")

    def hooks(self, kind, j, tag):
        fix = post = None
        if j == 3 and kind == "K":
            fix = [f"s_cmp_eq_u32 s{S_CNT}, 1", f"s_cbranch_scc0 L_{tag}_nw",
                   f"v_add_u32 v{self.vE}, s{S_PH}, v{self.vE0}", f"L_{tag}_nw:"]
        if j == 3 and kind == "V":
            fix = [f"s_cmp_eq_u32 s{S_CNT}, 29", f"s_cbranch_scc0 L_{tag}_nw",
                   f"v_mov_b32 v{self.vE}, v{self.vE0}", f"L_{tag}_nw:",
                   f"s_cmp_eq_u32 s{S_CNT}, 1", f"s_cbranch_scc0 L_{tag}_nx",
                   f"v_add_u32 v{self.vE}, 8192, v{self.vE0}", f"L_{tag}_nx:"]
        if j == 0 and kind == "K":
            post = [f"s_add_u32 s{S_TMP}, s{S_CNT}, s{S_PH}",
                    f"s_cmp_eq_u32 s{S_TMP}, 8193",
                    f"s_cbranch_scc0 L_{tag}_ns",
                    f"s_mov_b32 s{SRD_D}, s{S_V}",
                    f"s_mov_b32 s{SRD_D+1}, s{S_V+1}",
                    f"s_lshl_b32 s{S_P}, s2, 21",
                    f"s_add_u32 s{S_P2}, s{S_P}, {self.boff()}",
                    f"L_{tag}_ns:"]
        return dict(fix=fix, post=post)

    def control(self, tag, branch=True):
        e = self.e
        if self.nm == 1 or self.sub > 1:
            return
        e(f"s_and_b32 s{S_TMP}, s{S_CNT}, {self.every-1}")
        e(f"s_cbranch_scc1 L_{tag}_sel")
        H = f"s[{SRD_H}:{SRD_H+3}]"
        e(f"v_cmp_le_u32 s[{S_CMP}:{S_CMP+1}], s{S_MARK}, v{self.vH}")
        if self.glob:
            e(f"v_cmp_ne_u32 s[{S_CM2}:{S_CM2+1}], 0, v{self.vH}")
            e(f"v_readlane_b32 s{S_TH}, v{self.vH}, 15")
        e(f"s_add_u32 s{S_MARK}, s{S_MARK}, 1")
        e(f"v_mov_b32 v{self.vM}, s{S_MARK}")
        if self.glob:
            e(f"s_and_b64 s[{S_CMP}:{S_CMP+1}], s[{S_CMP}:{S_CMP+1}], s[{S_MSK}:{S_MSK+1}]")
        e(f"s_bcnt1_i32_b64 s{S_TMP}, s[{S_CMP}:{S_CMP+1}]")
        e(f"buffer_store_byte v{self.vM}, off, {H}, s{S_SLOT}")
        e(f"buffer_load_ubyte v{self.vH}, v0, {H}, 0 offen sc1")
        if self.glob:
            A, B = self.glob
            e(f"s_cmp_eq_u32 s{S_TH}, 0")
            e(f"s_cselect_b32 s{S_TH}, {self.th}, s{S_TH}")
            e(f"s_cmp_ge_u32 s{S_TMP}, s{S_TH}")
            e(f"s_cselect_b32 s{S_MODE}, 1, 0")
            e(f"s_and_b64 s[{S_CM2}:{S_CM2+1}], s[{S_CM2}:{S_CM2+1}], s[{S_MSK}:{S_MSK+1}]")
            e(f"s_ff1_i32_b64 s{S_TMP2}, s[{S_CM2}:{S_CM2+1}]")
            e(f"s_cmp_eq_u32 s{S_TMP2}, s{S_SLOT}")
            e(f"s_cbranch_scc0 L_{tag}_sel")
            if self.gev > 1:
                e(f"s_and_b32 s{S_TMP2}, s{S_MARK}, {self.gev-1}")
                e(f"s_cbranch_scc1 L_{tag}_sel")
            G = f"s[{SRD_G}:{SRD_G+3}]"
            e(f"v_cmp_le_u32 s[{S_CM2}:{S_CM2+1}], s{S_GM}, v{self.vG}")
            e(f"v_lshlrev_b32 v{self.vGA}, {self.gsh}, v0")
            e("s_mov_b64 exec, 1")
            e(f"buffer_store_dword v{self.vM}, off, {G}, s{S_XO} sc1")
            e("s_mov_b64 exec, -1")
            e(f"s_andn2_b64 s[{S_CM2}:{S_CM2+1}], s[{S_CM2}:{S_CM2+1}], s[{S_XM}:{S_XM+1}]")
            e(f"s_bcnt1_i32_b64 s{S_TMP2}, s[{S_CM2}:{S_CM2+1}]")
            e(f"s_cmp_eq_u32 s{S_GM}, 255")
            e(f"buffer_load_dword v{self.vG}, v{self.vGA}, {G}, 0 offen sc0 sc1")
            e(f"s_mov_b32 s{S_GM}, s{S_MARK}")
            e(f"s_cbranch_scc1 L_{tag}_sel")
            e(f"s_mul_i32 s{S_TMP2}, s{S_TMP2}, {B}")
            e(f"s_sub_u32 s{S_TMP2}, {A}, s{S_TMP2}")
            e(f"v_mov_b32 v{self.X+11}, s{S_TMP2}")
            e(f"buffer_store_byte v{self.X+11}, off, {H}, 0 offset:15")
        else:
            e(f"s_cmp_ge_u32 s{S_TMP}, s{S_TH}")
            e(f"s_cselect_b32 s{S_MODE}, 1, 0")
        if self.nm == 3:
            e(f"s_cmp_lt_u32 s{S_TMP}, {self.tl}")
            e(f"s_cselect_b32 s{S_MODE}, 2, s{S_MODE}")
        self.label(f"L_{tag}_sel")
        if tag == "v" and self.endhi:
            e(f"s_sub_u32 s{S_TMP}, s{S_CNT}, s{S_END}")
            e(f"s_mul_i32 s{S_TMP2}, s{S_END}, {self.endhi}")
            e(f"s_cmp_le_u32 s{S_TMP}, s{S_TMP2}")
            e(f"s_cselect_b32 s{S_MODE}, 1, s{S_MODE}")
        if self.diag:
            e(f"s_add_u32 s{S_NHI}, s{S_NHI}, s{S_MODE}")
        for md in range(1, self.nm if branch else 0):
            e(f"s_cmp_eq_u32 s{S_MODE}, {md}")
            e(f"s_cbranch_scc1 L_{tag}m{md}")

    def post_sample(self, v):
        H = f"s[{SRD_H}:{SRD_H+3}]"
        return [f"s_add_u32 s{S_MARK}, s{S_MARK}, 1", f"v_mov_b32 v{self.vM}, s{S_MARK}",
                f"buffer_store_short v{self.vM}, off, {H}, s{S_SLOT}",
                f"buffer_load_ushort v{v}, v{self.vL2}, {H}, 0 offen sc1"]

    def decide(self, v, back):
        e = self.e
        if back:
            e(f"s_sub_u32 s{S_TMP}, s{S_MARK}, {back}")
            e(f"v_cmp_le_u32 s[{S_CMP}:{S_CMP+1}], s{S_TMP}, v{v}")
        else:
            e(f"v_cmp_le_u32 s[{S_CMP}:{S_CMP+1}], s{S_MARK}, v{v}")
        e("s_nop 0")
        e(f"s_bcnt1_i32_b64 s{S_TMP}, s[{S_CMP}:{S_CMP+1}]")
        e(f"s_cmp_ge_u32 s{S_TMP}, s{S_TH}")

    def bodies2(self, kind, c0, tag, Ns):
        state = (self.nops, self.done, dict(self.ldidx), dict(self.blk), set(self.freed), self.lastread)
        step = 4 // self.sub
        regs = [self.vH, self.vG, self.vH2, self.vH3][:self.sub]
        for md, N in enumerate(Ns):
            self.nops, self.done, self.ldidx, self.blk, self.freed, self.lastread = \
                state[0], state[1], dict(state[2]), dict(state[3]), set(state[4]), state[5]
            for j in range(4):
                if j % step == 0:
                    k = j // step
                    if md == 0 or j:
                        self.decide(regs[k], self.sub - 1)
                        if self.diag:
                            self.e(f"s_cselect_b32 s{S_TMP}, 1, 0")
                            self.e(f"s_add_u32 s{S_NHI}, s{S_NHI}, s{S_TMP}")
                            self.e(f"s_cmp_eq_u32 s{S_TMP}, 1")
                        self.e(f"s_cbranch_scc{1-md} L_{tag}m{1-md}_{j}")
                    self.label(f"L_{tag}m{md}_{j}")
                    self.emit(self.post_sample(regs[k]))
                t = f"{tag}{md}_{j}"
                self.tile(c0 + j, kind, N, j=j, tag=t, **self.hooks(kind, j, t))
            if md == 0:
                self.e(f"s_branch L_{tag}_next")
        self.label(f"L_{tag}_next")
        self.nops, self.done, self.ldidx, self.blk, self.freed, self.lastread = \
            state[0], state[1], dict(state[2]), dict(state[3]), set(state[4]), state[5]

    def bodies(self, kind, c0, tag, Ns):
        if self.sub > 1:
            return self.bodies2(kind, c0, tag, Ns)
        state = (self.nops, self.done, dict(self.ldidx), dict(self.blk), set(self.freed), self.lastread)
        nmax = max(Ns)
        for md, N in enumerate(Ns):
            self.nops, self.done, self.ldidx, self.blk, self.freed, self.lastread = \
                state[0], state[1], dict(state[2]), dict(state[3]), set(state[4]), state[5]
            self.label(f"L_{tag}m{md}")
            for j in range(4):
                t = f"{tag}{md}_{j}"
                self.tile(c0 + j, kind, N, j=j, tag=t, **self.hooks(kind, j, t))
            if md < len(Ns) - 1:
                self.e(f"s_branch L_{tag}_next")
        self.label(f"L_{tag}_next")
        self.nops, self.done, self.ldidx, self.blk, self.freed, self.lastread = \
            state[0], state[1], dict(state[2]), dict(state[3]), set(state[4]), state[5]

    def peeled(self, kind, c0, tag, N, ckind, weave):
        state = (self.nops, self.done, dict(self.ldidx), dict(self.blk), set(self.freed), self.lastread)
        self.e(f"s_mov_b32 s{S_CNT}, 32")
        if kind == "K":
            self.e("s_mov_b64 vcc, 0" if self.nopiece else "s_mov_b64 vcc, -1")
        self.control(tag, branch=False)
        for j in range(4):
            t = f"{tag}_{j}"
            if self.sub > 1 and j % (4 // self.sub) == 0:
                self.emit(self.post_sample([self.vH, self.vG, self.vH2, self.vH3][j // (4 // self.sub)]))
            self.tile(c0 + j, kind, N, j=j, tag=t, ckind=ckind if j == 0 else None, czero=j == 0, cczero=j == 1,
                      weave=weave)
        self.nops, self.done, self.ldidx, self.blk, self.freed, self.lastread = state

    def replay(self, kind, c_from, c_to, N):
        keep = self.lines
        self.lines = []
        for c in range(c_from, c_to):
            self.tile(c, kind, N, j=c % 4)
        self.lines = keep

    def warmup(self, waits):
        e = self.e
        e(f"s_lshr_b32 s{S_TMP}, s2, 3")
        e(f"s_lshl_b32 s{S_TMP}, s{S_TMP}, 12")
        for i in range(4):
            off = f" offset:{i*1024}" if i else ""
            e(f"buffer_load_dwordx4 a[{4*i}:{3+4*i}], v{self.vK}, s[{SRD_P}:{SRD_P+3}], s{S_TMP} offen{off}")
            if waits:
                self.nops += 1

    def build(self):
        e = self.e
        NK, NV = self.NK, self.NV
        t0, t1 = self.X, self.X + 1
        self.lastread = -1
        e("s_cmp_ge_u32 s2, 256")
        e("s_cbranch_scc1 L_end")
        e("s_load_dwordx16 s[4:19], s[0:1], 0")
        if self.diag:
            e(f"s_memrealtime s[{S_T0}:{S_T0+1}]")
        if self.dbgt:
            e(f"s_memrealtime s[{S_T0}:{S_T0+1}]")
        if self.cw3:
            e(f"s_getpc_b64 s[{S_CM2}:{S_CM2+1}]")
            e(f"v_lshlrev_b32 v{self.vG}, 7, v0")
            if self.cw3 == 1:
                e(f"s_bfe_u32 s{S_TMP}, s2, 0x20003")
                e(f"s_min_u32 s{S_TMP}, s{S_TMP}, 2")
                e(f"s_lshl_b32 s{S_TMP}, s{S_TMP}, 13")
                e(f"s_add_u32 s{S_CM2}, s{S_CM2}, s{S_TMP}")
                e(f"s_addc_u32 s{S_CM2+1}, s{S_CM2+1}, 0")
            e(f"global_load_dword v{self.vM}, v{self.vG}, s[{S_CM2}:{S_CM2+1}]")
            self.nops += 1
        e(f"v_lshlrev_b32 v{self.vK}, 4, v0")
        e(f"s_lshl_b32 s{S_P}, s2, 21")
        e(f"s_add_u32 s{S_P2}, s{S_P}, {self.boff()}")
        e(f"s_mov_b32 s{SRD_D+2}, 0x20000000")
        e(f"s_mov_b32 s{SRD_D+3}, 0x20000")
        e(f"s_mov_b32 s{SRD_P+2}, 0x20000")
        e(f"s_mov_b32 s{SRD_P+3}, 0x20000")
        e(f"s_mov_b32 s{S_PO}, 0")
        e("s_mov_b32 m0, 0")
        e("s_waitcnt lgkmcnt(0)")
        e(f"s_mov_b32 s{SRD_D}, s{S_K}")
        e(f"s_mov_b32 s{SRD_D+1}, s{S_K+1}")
        e(f"s_mov_b32 s{SRD_P}, s{S_E}")
        e(f"s_mov_b32 s{SRD_P+1}, s{S_E+1}")
        NB0 = self.NB0

        def pieces(a, b):
            keep = self.epol
            self.epol = self.e0pol
            if self.ploop and a == 0:
                self.label("L_p0")
                e(self.piece_ins())
                e(f"s_add_u32 m0, m0, {ROWB}")
                e(f"s_add_u32 s{S_PO}, s{S_PO}, 8192")
                e(f"s_cmp_lt_u32 s{S_PO}, 0x20000")
                e("s_cbranch_scc1 L_p0")
                e(f"s_mov_b32 m0, 1024")
                e(f"s_mov_b32 s{S_PO}, 1024")
                for p in range(a, b):
                    self.note_piece(p)
                a = b
            for p in range(a, b):
                e(self.piece_ins())
                self.note_piece(p)
                if p == 15:
                    e(f"s_mov_b32 m0, 1024")
                    e(f"s_mov_b32 s{S_PO}, 1024")
                else:
                    e(f"s_add_u32 m0, m0, {ROWB}")
                    e(f"s_add_u32 s{S_PO}, s{S_PO}, 8192")
            self.epol = keep
        def codewarm():
            e(f"s_getpc_b64 s[{S_CM2}:{S_CM2+1}]")
            e(f"s_lshr_b32 s{S_TMP}, s2, 3")
            e(f"s_mul_i32 s{S_TMP}, s{S_TMP}, {128*self.cw2}")
            e(f"s_add_u32 s{S_CM2}, s{S_CM2}, s{S_TMP}")
            e(f"s_addc_u32 s{S_CM2+1}, s{S_CM2+1}, 0")
            for i in range(self.cw2):
                e(f"s_load_dword s{84+i}, s[{S_CM2}:{S_CM2+1}], {128*i}")
        nfirst = self.efirst
        for L in range(nfirst):
            self.kload(L)
        if self.cw2:
            codewarm()
        pieces(0, 16)
        for L in range(nfirst, NB0):
            self.kload(L)
        pieces(16, PRE)
        if self.warm:
            self.warmup(True)
        e(f"s_mov_b32 s{S_TMP2}, m0")
        e(f"s_lshl_b32 s{S_TMP}, s2, 11")
        e(f"s_mov_b32 m0, {LDS_Q}")
        self.srd(SRD_Q, S_Q, S_TMP, 0x800)
        e(f"buffer_load_dwordx4 v{self.vK}, s[{SRD_Q}:{SRD_Q+3}], 0 offen lds")
        e(f"buffer_load_dwordx4 v{self.vK}, s[{SRD_Q}:{SRD_Q+3}], 0 offen offset:1024 lds")
        self.nops += 2
        e(f"s_mov_b32 m0, s{S_TMP2}")
        self.srd(SRD_O, S_O, S_TMP, 0x800)
        if self.vtlb:
            e(f"s_lshl_b32 s{S_TMP}, s2, 21")
            e(f"s_add_u32 s{S_CM2}, s{S_V}, s{S_TMP}")
            e(f"s_addc_u32 s{S_CM2+1}, s{S_V+1}, 0")
            e(f"s_load_dword s{S_T1}, s[{S_CM2}:{S_CM2+1}], 0")
        e(f"v_and_b32 v{t0}, 15, v0")
        e(f"v_lshrrev_b32 v{t1}, 4, v0")
        e(f"v_mul_u32_u24 v{self.vE0}, {ROWB}, v{t0}")
        if self.pat == "h":
            e(f"v_bfe_u32 v{self.vE}, v0, 4, 1")
            e(f"v_lshl_add_u32 v{self.vE0}, v{self.vE}, 4, v{self.vE0}")
            e(f"v_lshrrev_b32 v{self.vE}, 5, v0")
            e(f"v_lshl_add_u32 v{self.vE0}, v{self.vE}, {(self.D//128).bit_length()-1}, v{self.vE0}")
        else:
            e(f"v_lshl_add_u32 v{self.vE0}, v{t1}, 4, v{self.vE0}")
        e(f"v_mov_b32 v{self.vE}, v{self.vE0}")
        e(f"v_lshrrev_b32 v{self.vQ}, 2, v{t0}")
        e(f"v_lshlrev_b32 v{self.vQ}, 8, v{self.vQ}")
        e(f"v_lshl_add_u32 v{self.vQ}, v{t1}, 6, v{self.vQ}")
        e(f"v_add_u32 v{self.vQ}, {LDS_Q-(0 if self.direct else 1024)}, v{self.vQ}")
        e(f"s_mov_b32 s{S_SEL_LO}, 0x05040100")
        e(f"s_mov_b32 s{S_SEL_HI}, 0x07060302")
        e(f"s_mov_b32 s{S_SCALE}, 0x3db504f3")
        e(f"s_mov_b32 s{S_LOG2E}, 0x3fb8aa3b")
        if self.nm > 1:
            self.srd(SRD_H, S_DBG, None, 256)
            e(f"s_getreg_b32 s{S_TMP}, hwreg(HW_REG_HW_ID, 8, 4)")
            e(f"s_getreg_b32 s{S_TMP2}, hwreg(HW_REG_HW_ID, 13, 2)")
            e(f"s_getreg_b32 s{S_XCC}, hwreg(HW_REG_XCC_ID, 0, 3)")
            e(f"s_lshl_b32 s{S_TMP2}, s{S_TMP2}, 4")
            e(f"s_or_b32 s{S_SLOT}, s{S_TMP}, s{S_TMP2}")
            e(f"s_mov_b32 s{S_MSK}, 0x7fff7fff")
            e(f"s_mov_b32 s{S_MSK+1}, 0x7fff7fff")
            e(f"s_bitcmp1_b32 s{S_XCC}, 0")
            e(f"s_cselect_b32 s{S_TH}, {self.th + self.par}, {self.th - self.par}")
            if self.glob:
                e(f"s_mov_b32 s{S_GM}, 255")
                e(f"s_lshl_b64 s[{S_XM}:{S_XM+1}], 1, s{S_XCC}")
                sh = self.gsh
                if self.gws:
                    e(f"s_mov_b32 s{S_TMP}, 0x380000")
                    self.srd(SRD_G, S_WS, S_TMP, 8 << sh)
                else:
                    e(f"s_mov_b32 s{S_TMP}, 128")
                    self.srd(SRD_G, S_DBG, S_TMP, 8 << sh)
                e(f"s_lshl_b32 s{S_XO}, s{S_XCC}, {sh}")

            e(f"v_mov_b32 v{self.vG}, 0")
            e(f"v_mov_b32 v{self.vH}, 0")
            if self.sub > 1:
                e(f"s_lshl_b32 s{S_SLOT}, s{S_SLOT}, 1")
                e(f"v_lshlrev_b32 v{self.vL2}, 1, v0")
                assert self.sub == 2 and not self.ts
                e(f"s_mov_b32 s{S_MARK}, 8")
            if self.sub == 1:
                e(f"s_mov_b32 s{S_MARK}, 1")
            e(f"s_mov_b32 s{S_MODE}, 0")
        if self.codewarm:
            e(f"s_getpc_b64 s[{S_T1}:{S_T1+1}]")
            e(f"s_lshr_b32 s{S_TMP}, s2, 3")
            e(f"s_and_b32 s{S_TMP}, s{S_TMP}, 15")
            e(f"s_lshl_b32 s{S_TMP}, s{S_TMP}, 10")
            e(f"s_add_u32 s{S_T1}, s{S_T1}, s{S_TMP}")
            e(f"s_addc_u32 s{S_T1+1}, s{S_T1+1}, 0")
            e(f"global_load_dwordx4 a[12:15], v{self.vK}, s[{S_T1}:{S_T1+1}]")
            self.nops += 1
        if self.diag:
            self.srd(SRD_W, S_WS, None, 0x1000000)
            e(f"s_mov_b32 s{S_NHI}, 0")
        if self.direct:
            for r in list(range(self.acc, self.acc + 32)) + list(range(self.T + 16, self.T + 32)) + \
                    list(range(self.W, self.W + 4)):
                e(f"v_mov_b32 v{r}, 0")
        for L in range(NB0, 24 + self.delta):
            self.wait(self.nops - 1 - self.ldidx[divmod(L - NB0, 8)])
            self.kload(L)
        idx = self.blk[0][1]
        if idx > self.done:
            self.wait(self.nops - 1 - idx)
        self.check_read(0)
        e(f"ds_read_b128 v[{self.R}:{self.R+3}], v{self.vE}")
        self.stamp()
        e(f"s_mov_b32 s{S_PH}, 0")
        e(f"s_mov_b32 s{S_END}, {PRE//4}")
        if self.direct:
            e(f"s_mov_b32 s{S_CNT}, 32")
        else:
            self.label("L_khead")
            self.peeled("K", 0, "kp", NK[0] + self.NP, "K", self.k_weave())
            e("s_branch L_k_next")
        self.label("L_k")
        e(f"s_cmp_eq_u32 s{S_CNT}, s{S_END}")
        e("s_cbranch_scc0 L_nf")
        e(f"s_mov_b32 s{SRD_P}, s{S_F}")
        e(f"s_mov_b32 s{SRD_P+1}, s{S_F+1}")
        e(f"s_mov_b32 s{S_PO}, 0")
        e(f"s_mov_b32 m0, 8192")
        if self.warm:
            self.warmup(False)
        self.label("L_nf")
        e(f"s_cmp_gt_u32 s{S_CNT}, s{S_END}")
        e("s_cselect_b64 vcc, 0, 0" if self.nopiece else "s_cselect_b64 vcc, -1, 0")
        self.control("k")
        self.bodies("K", 0, "k", NK)
        e(f"s_sub_u32 s{S_CNT}, s{S_CNT}, 1")
        e(f"s_cmp_lg_u32 s{S_CNT}, 0")
        e("s_cbranch_scc1 L_k")
        self.stamp()
        e(f"s_cmp_eq_u32 s{S_PH}, 0")
        e(f"s_mov_b32 s{S_END}, 0")
        e(f"s_mov_b32 s{S_PH}, 8192")
        if self.direct:
            e("s_cbranch_scc0 L_vstart")
            self.peeled("K", 0, "kp", NK[0] + self.NP, "K", self.k_weave())
            e("s_branch L_k_next")
            self.label("L_vstart")
        else:
            e("s_cbranch_scc1 L_khead")
        self.replay("K", 0, 256, max(NK))
        self.peeled("V", 256, "vp", NV[0] + self.NP, "K", self.k_weave())
        e("s_branch L_v_next")
        self.label("L_v")
        self.control("v")
        self.bodies("V", 256, "v", NV)
        e(f"s_sub_u32 s{S_CNT}, s{S_CNT}, 1")
        e(f"s_cmp_lg_u32 s{S_CNT}, s{S_END}")
        e("s_cbranch_scc1 L_v")
        e(f"s_cmp_eq_u32 s{S_END}, 1")
        e("s_cbranch_scc1 L_tail")
        self.stamp()
        e(f"s_mov_b32 s{S_END}, 1")
        self.peeled("V", 256, "vq", NV[0] + self.NP, "V", self.v_weave())
        e("s_branch L_v_next")
        self.label("L_tail")
        self.replay("V", 256, 508, max(NV))
        self.stamp()
        for c in range(508, 512):
            self.tile(c, "V", max(NV))
        self.stamp()
        self.flush("V")
        self.emit(self.v_epilogue(1))
        if self.diag:
            e("s_waitcnt vmcnt(0)")
            e(f"s_memrealtime s[{S_T1}:{S_T1+1}]")
            e(f"s_getreg_b32 s{S_TMP2}, hwreg(HW_REG_XCC_ID)")
            e(f"s_and_b32 s{S_TMP2}, s{S_TMP2}, 15")
            e(f"s_lshl_b32 s{S_TMP}, s2, 4")
            e("s_waitcnt lgkmcnt(0)")
            o = self.W
            e(f"v_mov_b32 v{o}, s{S_T0}")
            e(f"v_mov_b32 v{o+1}, s{S_T1}")
            e(f"v_mov_b32 v{o+2}, s{S_TMP2}")
            e(f"s_lshl_b32 s{S_NHI}, s{S_NHI}, 8")
            e(f"v_mov_b32 v{o+3}, s{S_NHI}")
            e(f"v_mov_b32 v{t0}, s{S_TMP}")
            if self.ts:
                e(f"v_lshlrev_b32 v{t1}, 2, v0")
                e(f"s_lshl_b32 s{S_TMP}, s2, 8")
                e(f"s_add_u32 s{S_TMP}, s{S_TMP}, 0x200000")
                e(f"buffer_store_dword v{self.vG}, v{t1}, s[{SRD_W}:{SRD_W+3}], s{S_TMP} offen")
            e("s_mov_b64 exec, 1")
            e(f"buffer_store_dwordx4 v[{o}:{o+3}], v{t0}, s[{SRD_W}:{SRD_W+3}], 0 offen")
        if self.dbgt:
            e("s_waitcnt vmcnt(0)")
            e(f"s_memrealtime s[{S_T1}:{S_T1+1}]")
            e("s_waitcnt lgkmcnt(0)")
            e(f"s_sub_u32 s{S_TMP}, s{S_T1}, s{S_T0}")
            e(f"s_not_b32 s{S_T0}, s{S_T0}")
            e(f"s_atomic_umax s{S_T1}, s[{S_DBG}:{S_DBG+1}], 0x0")
            e(f"s_atomic_umax s{S_T0}, s[{S_DBG}:{S_DBG+1}], 0x4")
            e(f"s_atomic_add s{S_TMP}, s[{S_DBG}:{S_DBG+1}], 0x8")
            e("s_waitcnt lgkmcnt(0)")
        self.label("L_end")
        e("s_endpgm")

        out = HEADER
        out += f"; @launch grid=(256,1,1) block=(64,1,1) lds={LDS_BYTES}\n"
        out += '.amdgcn_target "amdgcn-amd-amdhsa--gfx950"\n.text\n'
        out += f".globl {NAME}_kernel\n.p2align 8\n.type {NAME}_kernel,@function\n{NAME}_kernel:\n"
        out += "\n".join(self.lines) + "\n"
        if self.cw2 or self.cw3:
            out += ".fill CWPAD, 4, 0xbf800000\n    s_endpgm\n"
        if self.codewarm:
            out += ".fill 1280, 4, 0xbf800000\n    s_endpgm\n"
        out += '.section .rodata,"a"\n.p2align 6\n'
        out += f".amdhsa_kernel {NAME}_kernel\n"
        out += f"  .amdhsa_next_free_vgpr {self.nv + self.nagpr}\n"
        out += f"  .amdhsa_next_free_sgpr 96\n"
        out += f"  .amdhsa_accum_offset {self.nv}\n"
        out += "  .amdhsa_group_segment_fixed_size 0\n  .amdhsa_kernarg_size 64\n"
        out += "  .amdhsa_user_sgpr_count 2\n  .amdhsa_user_sgpr_kernarg_segment_ptr 1\n"
        out += "  .amdhsa_system_sgpr_workgroup_id_x 1\n"
        out += "  .amdhsa_float_denorm_mode_32 3\n"
        out += ".end_amdhsa_kernel\n"
        if self.cw2 or self.cw3:
            k = next(i for i, l in enumerate(self.lines) if "s_getpc" in l)
            low = sum(8 if l.split()[0].startswith(("buffer_", "ds_", "v_perm_", "v_mfma", "v_cvt_pk")) else
                      0 if l.endswith(":") else 4 for l in self.lines[k:])
            out = out.replace("CWPAD", str(max(1, (max(32 * 128 * self.cw2, 24576 if self.cw3 else 0) + 256 - low) // 4 + 1)))
        return out


if __name__ == "__main__":
    ap = argparse.ArgumentParser()
    tup = lambda s: tuple(int(x) for x in s.split(","))
    ap.add_argument("-o", default=f"cdna_kernels/{NAME}.s")
    ap.add_argument("--NK", type=tup, default=(23, 28))
    ap.add_argument("--NV", type=tup, default=(21, 26))
    ap.add_argument("--delta", type=int, default=6)
    ap.add_argument("--th", type=int, default=24)
    ap.add_argument("--tl", type=int, default=9)
    ap.add_argument("--every", type=int, default=2)
    ap.add_argument("--kpol", default="nt")
    ap.add_argument("--epol", default="")
    ap.add_argument("--outpol", default="")
    ap.add_argument("--sslot", type=int, default=3)
    ap.add_argument("--pslot", type=int, default=2)
    ap.add_argument("--warm", type=int, default=1)
    ap.add_argument("--endhi", type=int, default=0)
    ap.add_argument("--dbgt", action="store_true")
    ap.add_argument("--sub", type=int, default=1)
    ap.add_argument("--cw3", type=int, default=0)
    ap.add_argument("--ploop", action="store_true")
    ap.add_argument("--nodirect", action="store_true")
    ap.add_argument("--cw2", type=int, default=0)
    ap.add_argument("--gws", action="store_true")
    ap.add_argument("--gsh", type=int, default=4)
    ap.add_argument("--novtlb", action="store_true")
    ap.add_argument("--NP", type=int, default=2)
    ap.add_argument("--efirst", type=int, default=20)
    ap.add_argument("--NB0", type=int, default=20)
    ap.add_argument("--e0pol", default="")
    ap.add_argument("--ts", action="store_true")
    ap.add_argument("--nopiece", action="store_true")
    ap.add_argument("--nocomp", action="store_true")
    ap.add_argument("--pat", default="lin")
    ap.add_argument("--D", type=int, default=32)
    ap.add_argument("--codewarm", action="store_true")
    ap.add_argument("--par", type=int, default=0)
    ap.add_argument("--gev", type=int, default=4)
    ap.add_argument("--glob", type=tup, default=None)
    ap.add_argument("--diag", action="store_true")
    a = ap.parse_args()
    g = Gen13(a.NK, a.NV, a.delta, a.th, a.every, a.kpol, a.epol, a.diag, a.outpol, a.sslot, a.pslot,
              warm=a.warm, tl=a.tl, endhi=a.endhi, dbgt=a.dbgt, glob=a.glob, gev=a.gev, par=a.par, codewarm=a.codewarm, pat=a.pat, D=a.D*1024, ts=a.ts, nopiece=a.nopiece, nocomp=a.nocomp, efirst=a.efirst, e0pol=a.e0pol, NB0=a.NB0, vtlb=not a.novtlb, NP=a.NP, gws=a.gws, gsh=a.gsh, cw2=a.cw2, direct=not a.nodirect, cw3=a.cw3, ploop=a.ploop, sub=a.sub)
    s = g.build()
    open(a.o, "w").write(s)
    print(f"wrote {a.o}: nv={g.nv} lines={len(g.lines)}")
```

```python
import argparse
from gen import HEADER, NAME

S_Q, S_K, S_V, S_E, S_F, S_O, S_DBG, S_WS = 4, 6, 8, 10, 12, 14, 16, 18
SRD_D, SRD_P, SRD_O, SRD_W, SRD_Q, SRD_H = 20, 24, 28, 32, 56, 60
S_P, S_P2, S_CNT, S_SEL_LO, S_SEL_HI, S_TMP, S_TMP2 = 36, 37, 38, 39, 40, 41, 42
S_SCALE, S_LOG2E, S_END = 43, 44, 45
S_PO, S_PH, S_MARK, S_MODE = 46, 47, 52, 53
S_CMP = 54
S_T0, S_T1 = 48, 50
S_NHI = 68
S_SLOT, S_XCC, S_GM, S_TH = 64, 65, 66, 67
S_MSK, S_CM2, S_XM = 70, 72, 74
SRD_G, S_XO = 76, 69
ROWB = 9 * 1024 + 16
LDS_Q = 16 * ROWB
LDS_BYTES = LDS_Q + 2048
NB = 4
PRE = 20


class Gen13:
    def __init__(self, NK=(23, 28), NV=(21, 26), delta=6, th=24, every=2, kpol="nt", epol="", diag=False,
                 outpol="", sslot=3, pslot=2, N0=52, warm=1, tl=None, endhi=0, dbgt=False, glob=None, gev=4, par=0, codewarm=False, pat='lin', D=32768, ts=False, nopiece=False, nocomp=False, efirst=0, e0pol='', NB0=20, vtlb=True, NP=2, gws=False, gsh=4, cw2=0, cwpos=8, direct=True, cw3=0, ploop=False, sub=1, late=0, hold=False, lateq=False, starthi=False, warmfirst=False, thtab=None, hrot=0, hsearch=False, hmap=None, lsearch=0):
        self.lsearch = lsearch
        self.hsearch, self.hmap = hsearch, hmap
        self.hrot = hrot
        self.thtab = thtab
        self.lateq, self.starthi, self.warmfirst = lateq, starthi, warmfirst
        self.sub, self.late, self.hold = sub, late, hold
        self.cw3, self.ploop = cw3, ploop
        self.direct = direct
        self.cw2, self.cwpos = cw2, cwpos
        self.gws, self.gsh = gws, gsh
        self.vtlb, self.NP = vtlb, NP
        self.efirst, self.e0pol, self.NB0 = efirst, e0pol, NB0
        self.ts, self.nopiece, self.nocomp = ts, nopiece, nocomp
        self.pat, self.D = pat, D
        self.codewarm = codewarm
        self.par = par
        self.gev = gev
        self.glob = glob
        self.dbgt = dbgt
        self.NK, self.NV, self.delta, self.th, self.every = NK, NV, delta, th, every
        self.kpol, self.epol, self.diag, self.outpol = kpol, epol, diag, outpol
        self.sslot, self.pslot, self.N0, self.warm = sslot, pslot, N0, warm
        self.tl, self.endhi = tl, endhi
        self.nm = len(NK)
        self.lines = []
        self.vK, self.vE, self.vQ, self.vE0 = 1, 2, 3, 4
        self.vH, self.vG, self.vM = 5, 10, 11
        self.P = [6, 8]
        self.vL2, self.vH2, self.vH3 = 0, 0, 0
        self.vGA = 30
        self.W, self.R, self.X = 12, 16, 20
        r = 32
        self.T = r; r += 32
        self.acc = r; r += 32
        self.tb = []
        for b in range(NB):
            self.tb.append(r); r += 32
        self.QR, self.A = r, r + 16
        r += 32
        self.nv = r
        self.nagpr = 16 if warm else 0
        self.nops = 0
        self.done = -1
        self.ldidx = {}
        self.blk = {}
        self.freed = set()

    def e(self, s):
        self.lines.append("    " + s)

    def label(self, s):
        self.lines.append(s + ":")

    def emit(self, ins):
        for s in ins:
            if self.nocomp and s.startswith(("v_perm", "v_mfma")):
                continue
            self.lines.append(s if s.endswith(":") else "    " + s)

    def wait(self, n):
        self.e(f"s_waitcnt vmcnt({n})")
        self.done = max(self.done, self.nops - n - 1)

    def aoff(self, t):
        D = self.D
        if self.pat == "lin":
            return t * 8192
        if self.pat == "h":
            nb = D // 4096
            return (t // nb) * 2 * D + (t % nb) * 4096
        nb = 2 * D // 8192
        return (t // nb) * 2 * D + (t & 1) * D + ((t % nb) >> 1) * 8192

    def boff(self):
        return self.D if self.pat == "h" else 4096

    def nblk(self):
        return {"lin": 4, "h": self.D // 4096, "big": 2 * self.D // 8192}[self.pat]

    def step(self, reg, tau, second):
        inc = self.aoff(tau % 4 + 1) - self.aoff(tau % 4) if (tau % 4 != 3 or self.nblk() > 4) else \
            self.aoff(4) - self.aoff(3)
        if inc >= 0:
            self.e(f"s_add_u32 s{reg}, s{reg}, {inc}")
        else:
            self.e(f"s_sub_u32 s{reg}, s{reg}, {-inc}")
        if tau % 4 == 3 and self.nblk() > 4:
            low = (self.boff() if second else 0) & (self.D - 1)
            self.e(f"s_and_b32 s{S_TMP}, s{reg}, {self.D-1}")
            self.e(f"s_cmp_eq_u32 s{S_TMP}, {low}")
            self.e(f"s_cselect_b32 s{S_TMP}, {self.D}, 0")
            self.e(f"s_add_u32 s{reg}, s{reg}, s{S_TMP}")

    def estep(self, c):
        vE = self.vE
        j = c % 4
        nb = self.nblk()
        inc = (self.aoff(j + 1) - self.aoff(j)) // 128
        if j == 3 and nb > 4:
            q = nb // 4
            return [f"s_and_b32 s{S_TMP}, s{S_CNT}, {q-1}", f"s_cmp_eq_u32 s{S_TMP}, 1",
                    f"s_cselect_b32 s{S_TMP}, {inc + self.D//128}, {inc}",
                    f"v_add_u32 v{vE}, s{S_TMP}, v{vE}"]
        if inc >= 0:
            return [f"v_add_u32 v{vE}, {inc}, v{vE}"]
        return [f"v_subrev_u32 v{vE}, {-inc}, v{vE}"]

    def kload(self, L):
        tau, k = divmod(L, 8)
        if tau >= NB:
            assert (tau - NB, k >> 1) in self.freed, (tau, k)
        t = self.tb[tau % NB] + 4 * k
        pol = (" " + self.kpol) if self.kpol else ""
        o, so = k * 1024, S_P
        if o >= 4096:
            o -= 4096; so = S_P2
        off = f" offset:{o}" if o else ""
        if self.lsearch:
            so = 81 if so == S_P else 82
        self.e(f"buffer_load_dwordx4 v[{t}:{t+3}], v{self.vK}, s[{SRD_D}:{SRD_D+3}], s{so} offen{off}{pol}")
        self.ldidx[(tau, k)] = self.nops
        self.nops += 1
        if k == 3:
            self.step(S_P, tau, False)
            if self.lsearch:
                self.e(f"s_xor_b32 s81, s{S_P}, s80")
        if k == 7:
            self.step(S_P2, tau, True)
            if self.lsearch:
                self.e(f"s_xor_b32 s82, s{S_P2}, s80")

    def piece_of(self, c):
        if c < 128 - PRE:
            return PRE + c
        if 128 <= c < 256:
            return c
        return None

    def note_piece(self, p):
        which, b = ("E", p // 16) if p < 128 else ("F", (p - 128) // 16)
        pos = b if which == "E" else (b + 8) % 9
        if p % 16 == 0 and pos in self.blk:
            old = self.blk[pos][0]
            assert old[0] == "E" and self.lastread >= 128 + 16 * old[1] + 15, (p, old, self.lastread)
        self.blk[pos] = ((which, b), self.nops if p % 16 == 15 else 1 << 30)
        self.nops += 1

    def piece_ins(self):
        pol = (" " + self.epol) if self.epol else ""
        return f"buffer_load_dwordx4 v{self.vK}, s[{SRD_P}:{SRD_P+3}], s{S_PO} offen{pol} lds"

    def piece_next(self, j, tag):
        out = [f"s_add_u32 s{S_PO}, s{S_PO}, 8192", f"s_add_u32 m0, m0, {ROWB}"]
        if j == 3:
            out += [f"s_cmp_ge_u32 s{S_PO}, 0x20000", f"s_cbranch_scc0 L_{tag}_np",
                    f"s_sub_u32 s{S_PO}, s{S_PO}, {0x20000-1024}", f"s_sub_u32 m0, m0, {16*ROWB-1024}",
                    f"s_cmp_eq_u32 m0, {9*1024}", f"s_cselect_b32 m0, 0, m0"]
        return out

    def check_read(self, n):
        which, b = ("E" if n < 256 else "F"), (n % 128) // 16
        pos = b if which == "E" else (b + 8) % 9
        content, idx = self.blk[pos]
        assert content == (which, b) and idx <= self.done, (n, content, idx, self.done)

    def perms(self, c, m, half):
        t = self.tb[c % NB]
        out = []
        for ec in range(4 * half, 4 * half + 4):
            sel = S_SEL_HI if ec & 1 else S_SEL_LO
            cc = ec >> 1
            out.append(f"v_perm_b32 v{self.T+4*ec+m}, v{t+4*(2*m+1)+cc}, v{t+4*(2*m)+cc}, s{sel}")
        return out

    def mfmas(self, kind, es, czero=False):
        W = self.W
        out = []
        for ec in es:
            a, tm = self.acc + 4 * ec, self.T + 4 * ec
            x, y = f"v[{tm}:{tm+3}]", f"v[{W}:{W+3}]"
            if kind == "V":
                x, y = y, x
            cin = "0" if czero else f"v[{a}:{a+3}]"
            out.append(f"v_mfma_f32_16x16x32_bf16 v[{a}:{a+3}], {x}, {y}, {cin}")
        return out

    def shuffle(self, c, fix, nxt=True):
        W, R = self.W, self.R
        g = ["s_waitcnt lgkmcnt(0)",
             f"v_perm_b32 v{W}, v{R+2}, v{R}, s{S_SEL_LO}",
             f"v_perm_b32 v{W+2}, v{R+3}, v{R+1}, s{S_SEL_LO}",
             f"v_perm_b32 v{W+1}, v{R+2}, v{R}, s{S_SEL_HI}",
             f"v_perm_b32 v{W+3}, v{R+3}, v{R+1}, s{S_SEL_HI}",
             f"v_permlane32_swap_b32 v{W}, v{W+2}"]
        g += self.estep(c) if nxt else ["s_nop 0"]
        g += [f"v_permlane32_swap_b32 v{W+1}, v{W+3}"]
        if fix:
            g += fix
        g += [f"ds_read_b128 v[{R}:{R+3}], v{self.vE}" if nxt else "s_nop 0"]
        g2 = [f"v_permlane16_swap_b32 v{W}, v{W+1}", f"v_permlane16_swap_b32 v{W+2}, v{W+3}"]
        return g, g2

    def tile(self, c, kind, N, j=0, fix=None, post=None, tag="x", ckind=None, czero=False, cczero=False,
             weave=None):
        nxt = c + 1 < 512
        late = []
        for i in range(8):
            m, half = i >> 1, i & 1
            if kind == "K" and i == self.pslot:
                p = self.piece_of(c)
                self.e(f"s_cbranch_vccz L_{tag}_np")
                if p is not None:
                    self.wait(N - 1)
                    self.note_piece(p)
                else:
                    self.e(f"s_waitcnt vmcnt({N-1})")
                self.e(self.piece_ins())
                self.emit(self.piece_next(j, tag))
                self.label(f"L_{tag}_np")
            L = 8 * (c + 3) + i + self.delta
            if L < 4096:
                self.wait(N - 1)
                self.kload(L)
                if L % 8 == 7 and post:
                    self.emit(post)
            idx = self.ldidx[(c, 2 * m + 1)]
            if L >= 4096 and idx > self.done:
                self.wait(self.nops - 1 - idx)
            assert idx <= self.done, (c, i)
            pm = self.perms(c, m, half)
            if i == 0:
                for a, b in zip(self.mfmas(ckind or kind, range(4, 8), cczero), pm):
                    self.emit([a, b])
            elif i == 7:
                for a, b in zip(self.mfmas(kind, range(4), czero), pm):
                    self.emit([a, b])
            else:
                self.emit(pm)
            if half:
                self.freed.add((c, m))
            if late:
                self.emit(late)
                late = []
            if i == self.sslot:
                self.lastread = c
                if nxt:
                    self.check_read(c + 1)
                g, late = self.shuffle(c, fix, nxt)
                self.emit(g)
            if weave and (j, i) in weave:
                self.emit(weave[(j, i)])

    def xlane(self, op, a, b):
        return [f"v_mov_b32 v{b}, v{a}", "s_nop 1", f"v_permlane16_swap_b32 v{a}, v{b}", "s_nop 1",
                f"{op} v{a}, v{a}, v{b}",
                f"v_mov_b32 v{b}, v{a}", "s_nop 1", f"v_permlane32_swap_b32 v{a}, v{b}", "s_nop 1",
                f"{op} v{a}, v{a}, v{b}"]

    def zero(self):
        return [f"v_mov_b32 v{self.acc+i}, 0" for i in range(32)]

    def spread(self, w, ins, start, per):
        k = start
        while ins:
            w.setdefault(divmod(k, 8), []).extend(ins[:per])
            ins = ins[per:]
            k += 1
        assert k <= 32

    def k_weave(self):
        acc, X, QR, A = self.acc, self.X, self.QR, self.A
        assert self.sslot == 3
        S = X
        w = {}
        cv = [f"v_cvt_pk_bf16_f32 v{A+4*g+m}, v{acc+4*(2*m)+g}, v{acc+4*(2*m+1)+g}" for g in range(4) for m in range(4)]
        w[(0, 1)] = [f"ds_read_b128 v[{QR+4*g}:{QR+4*g+3}], v{self.vQ} offset:{g*16}" for g in range(4)] + cv[:4]
        w[(0, 2)] = cv[4:12] + [f"v_add_u32 v{self.vQ}, 1024, v{self.vQ}"]
        w[(0, 3)] = cv[12:]
        mf = [f"v_mfma_f32_16x16x32_bf16 v[{S}:{S+3}], v[{A+4*g}:{A+4*g+3}], v[{QR+4*g}:{QR+4*g+3}], "
              + ("0" if g == 0 else f"v[{S}:{S+3}]") for g in range(4)]
        w[(0, 4)] = mf[:2]
        w[(0, 5)] = mf[2:]
        x = X + 4
        p = [f"v_cvt_pk_bf16_f32 v{x+4}, v{S}, v{S+1}", f"v_cvt_pk_bf16_f32 v{x+5}, v{S+2}, v{S+3}"]
        unpack = [f"v_lshlrev_b32 v{x+0}, 16, v{x+4}", f"v_and_b32 v{x+1}, 0xffff0000, v{x+4}",
                  f"v_lshlrev_b32 v{x+2}, 16, v{x+5}", f"v_and_b32 v{x+3}, 0xffff0000, v{x+5}"]
        p += unpack
        p += [f"v_mul_f32 v{x+i}, s{S_SCALE}, v{x+i}" for i in range(4)]
        p += [f"v_cvt_pk_bf16_f32 v{x+4}, v{x}, v{x+1}", f"v_cvt_pk_bf16_f32 v{x+5}, v{x+2}, v{x+3}"]
        p += unpack
        p += [f"v_max3_f32 v{x+6}, v{x}, v{x+1}, v{x+2}", f"v_max_f32 v{x+6}, v{x+6}, v{x+3}"]
        p += self.xlane("v_max_f32", x + 6, x + 7)
        p += [f"v_sub_f32 v{x+i}, v{x+i}, v{x+6}" for i in range(4)]
        p += [f"v_mul_f32 v{x+i}, s{S_LOG2E}, v{x+i}" for i in range(4)]
        p += [f"v_exp_f32 v{x+i}, v{x+i}" for i in range(4)]
        p += ["s_nop 0", f"v_add_f32 v{x+6}, v{x}, v{x+1}", f"v_add_f32 v{x+7}, v{x+2}, v{x+3}",
              f"v_add_f32 v{x+6}, v{x+6}, v{x+7}"]
        p += self.xlane("v_add_f32", x + 6, x + 7)
        p += [f"v_rcp_f32 v{x+6}, v{x+6}", "s_nop 0"]
        p += [f"v_mul_f32 v{x+i}, v{x+i}, v{x+6}" for i in range(4)]
        P0, P1 = self.P
        p += [f"v_mov_b32 v{P0}, v{P1}", f"v_mov_b32 v{P0+1}, v{P1+1}",
              f"v_cvt_pk_bf16_f32 v{P1}, v{x}, v{x+1}", f"v_cvt_pk_bf16_f32 v{P1+1}, v{x+2}, v{x+3}"]
        self.spread(w, p, 8, 4)
        return w

    def v_weave(self):
        acc, X, QR, A, P = self.acc, self.X, self.QR, self.A, self.P[0]
        w = {}
        cv = []
        for ec in range(8):
            a = acc + 4 * ec
            cv += [f"v_cvt_pk_bf16_f32 v{A+2*ec}, v{a}, v{a+1}", f"v_cvt_pk_bf16_f32 v{A+2*ec+1}, v{a+2}, v{a+3}"]
        w[(0, 1)], w[(0, 2)], w[(0, 3)] = cv[:6], cv[6:12], cv[12:]
        mf = [f"v_mfma_f32_16x16x16_bf16 v[{QR+4*(ec&3)}:{QR+4*(ec&3)+3}], v[{P}:{P+1}], v[{A+2*ec}:{A+2*ec+1}], 0"
              for ec in range(8)]
        o = X + 4
        oc = [f"v_cvt_pk_bf16_f32 v{o+m}, v{QR+8*(m&1)}, v{QR+8*(m&1)+4}" for m in range(4)]
        w[(0, 4)], w[(0, 5)] = mf[:2], mf[2:4]
        w[(1, 1)] = oc[:2]
        w[(1, 2)], w[(1, 3)] = mf[4:6], mf[6:]
        pol = (" " + self.outpol) if self.outpol else ""
        w[(1, 6)] = oc[2:] + [f"buffer_store_dwordx4 v[{o}:{o+3}], v{self.vK}, s[{SRD_O}:{SRD_O+3}], 0 offen{pol}"]
        return w

    def v_epilogue(self, head):
        acc, X, P, T = self.acc, self.X, self.P[head], self.T
        p = ["s_nop 3"]
        for ec in range(8):
            a = acc + 4 * ec
            p.append(f"v_cvt_pk_bf16_f32 v{a}, v{a}, v{a+1}")
            p.append(f"v_cvt_pk_bf16_f32 v{a+1}, v{a+2}, v{a+3}")
            if ec:
                a = acc + 4 * (ec - 1)
                p.append(f"v_mfma_f32_16x16x16_bf16 v[{T+4*(ec-1)}:{T+4*(ec-1)+3}], v[{P}:{P+1}], v[{a}:{a+1}], 0")
        a = acc + 28
        p.append("s_nop 0")
        p.append(f"v_mfma_f32_16x16x16_bf16 v[{T+28}:{T+31}], v[{P}:{P+1}], v[{a}:{a+1}], 0")
        p += ["s_nop 4"]
        o = X + 4
        for m in range(4):
            p.append(f"v_cvt_pk_bf16_f32 v{o+m}, v{T+4*(2*m)}, v{T+4*(2*m+1)}")
        off = " offset:1024" if head else ""
        pol = (" " + self.outpol) if self.outpol else ""
        p.append(f"buffer_store_dwordx4 v[{o}:{o+3}], v{self.vK}, s[{SRD_O}:{SRD_O+3}], 0 offen{off}{pol}")
        return p

    def stamp(self):
        if not self.ts:
            return
        g = self.vG
        self.emit([f"s_memrealtime s[{S_T1}:{S_T1+1}]", "s_waitcnt lgkmcnt(0)",
                   f"v_mov_b32_dpp v{g}, v{g} row_shr:1 row_mask:0xf bank_mask:0xf",
                   "s_nop 1", f"v_writelane_b32 v{g}, s{S_T1}, 0"])

    def flush(self, kind):
        self.emit(["s_nop 1"] + self.mfmas(kind, range(4, 8)))

    def srd(self, d, ptr, offreg, nrec):
        if offreg is None:
            self.e(f"s_mov_b32 s{d}, s{ptr}")
            self.e(f"s_mov_b32 s{d+1}, s{ptr+1}")
        else:
            self.e(f"s_add_u32 s{d}, s{ptr}, s{offreg}")
            self.e(f"s_addc_u32 s{d+1}, s{ptr+1}, 0")
        self.e(f"s_mov_b32 s{d+2}, {nrec:#x}")
        self.e(f"s_mov_b32 s{d+3}, 0x20000")

    def hooks(self, kind, j, tag):
        fix = post = None
        if j == 3 and kind == "K":
            fix = [f"s_cmp_eq_u32 s{S_CNT}, 1", f"s_cbranch_scc0 L_{tag}_nw",
                   f"v_add_u32 v{self.vE}, s{S_PH}, v{self.vE0}", f"L_{tag}_nw:"]
        if j == 3 and kind == "V":
            fix = [f"s_cmp_eq_u32 s{S_CNT}, 29", f"s_cbranch_scc0 L_{tag}_nw",
                   f"v_mov_b32 v{self.vE}, v{self.vE0}", f"L_{tag}_nw:",
                   f"s_cmp_eq_u32 s{S_CNT}, 1", f"s_cbranch_scc0 L_{tag}_nx",
                   f"v_add_u32 v{self.vE}, 8192, v{self.vE0}", f"L_{tag}_nx:"]
        if j == 0 and kind == "K":
            post = [f"s_add_u32 s{S_TMP}, s{S_CNT}, s{S_PH}",
                    f"s_cmp_eq_u32 s{S_TMP}, 8193",
                    f"s_cbranch_scc0 L_{tag}_ns",
                    f"s_mov_b32 s{SRD_D}, s{S_V}",
                    f"s_mov_b32 s{SRD_D+1}, s{S_V+1}",
                    f"s_lshl_b32 s{S_P}, s2, 21",
                    f"s_add_u32 s{S_P2}, s{S_P}, {self.boff()}"] + \
                   ([f"s_xor_b32 s81, s{S_P}, s80", f"s_xor_b32 s82, s{S_P2}, s80"] if self.lsearch else []) + \
                   [f"L_{tag}_ns:"]
        return dict(fix=fix, post=post)

    def control(self, tag, branch=True):
        e = self.e
        if self.nm == 1 or self.sub > 1:
            return
        e(f"s_and_b32 s{S_TMP}, s{S_CNT}, {self.every-1}")
        e(f"s_cbranch_scc1 L_{tag}_sel")
        H = f"s[{SRD_H}:{SRD_H+3}]"
        e(f"v_cmp_le_u32 s[{S_CMP}:{S_CMP+1}], s{S_MARK}, v{self.vH}")
        if self.glob:
            e(f"v_cmp_ne_u32 s[{S_CM2}:{S_CM2+1}], 0, v{self.vH}")
            e(f"v_readlane_b32 s{S_TH}, v{self.vH}, 15")
        e(f"s_add_u32 s{S_MARK}, s{S_MARK}, 1")
        e(f"v_mov_b32 v{self.vM}, s{S_MARK}")
        if self.glob:
            e(f"s_and_b64 s[{S_CMP}:{S_CMP+1}], s[{S_CMP}:{S_CMP+1}], s[{S_MSK}:{S_MSK+1}]")
        e(f"s_bcnt1_i32_b64 s{S_TMP}, s[{S_CMP}:{S_CMP+1}]")
        e(f"buffer_store_byte v{self.vM}, off, {H}, s{S_SLOT}")
        e(f"buffer_load_ubyte v{self.vH}, v0, {H}, 0 offen sc1")
        if self.glob:
            A, B = self.glob
            e(f"s_cmp_eq_u32 s{S_TH}, 0")
            e(f"s_cselect_b32 s{S_TH}, {self.th}, s{S_TH}")
            e(f"s_cmp_ge_u32 s{S_TMP}, s{S_TH}")
            e(f"s_cselect_b32 s{S_MODE}, 1, 0")
            e(f"s_and_b64 s[{S_CM2}:{S_CM2+1}], s[{S_CM2}:{S_CM2+1}], s[{S_MSK}:{S_MSK+1}]")
            e(f"s_ff1_i32_b64 s{S_TMP2}, s[{S_CM2}:{S_CM2+1}]")
            e(f"s_cmp_eq_u32 s{S_TMP2}, s{S_SLOT}")
            e(f"s_cbranch_scc0 L_{tag}_sel")
            if self.gev > 1:
                e(f"s_and_b32 s{S_TMP2}, s{S_MARK}, {self.gev-1}")
                e(f"s_cbranch_scc1 L_{tag}_sel")
            G = f"s[{SRD_G}:{SRD_G+3}]"
            e(f"v_cmp_le_u32 s[{S_CM2}:{S_CM2+1}], s{S_GM}, v{self.vG}")
            e(f"v_lshlrev_b32 v{self.vGA}, {self.gsh}, v0")
            e("s_mov_b64 exec, 1")
            e(f"buffer_store_dword v{self.vM}, off, {G}, s{S_XO} sc1")
            e("s_mov_b64 exec, -1")
            e(f"s_andn2_b64 s[{S_CM2}:{S_CM2+1}], s[{S_CM2}:{S_CM2+1}], s[{S_XM}:{S_XM+1}]")
            e(f"s_bcnt1_i32_b64 s{S_TMP2}, s[{S_CM2}:{S_CM2+1}]")
            e(f"s_cmp_eq_u32 s{S_GM}, 255")
            e(f"buffer_load_dword v{self.vG}, v{self.vGA}, {G}, 0 offen sc0 sc1")
            e(f"s_mov_b32 s{S_GM}, s{S_MARK}")
            e(f"s_cbranch_scc1 L_{tag}_sel")
            e(f"s_mul_i32 s{S_TMP2}, s{S_TMP2}, {B}")
            e(f"s_sub_u32 s{S_TMP2}, {A}, s{S_TMP2}")
            e(f"v_mov_b32 v{self.X+11}, s{S_TMP2}")
            e(f"buffer_store_byte v{self.X+11}, off, {H}, 0 offset:15")
        else:
            e(f"s_cmp_ge_u32 s{S_TMP}, s{S_TH}")
            e(f"s_cselect_b32 s{S_MODE}, 1, 0")
        if self.nm == 3:
            e(f"s_cmp_lt_u32 s{S_TMP}, {self.tl}")
            e(f"s_cselect_b32 s{S_MODE}, 2, s{S_MODE}")
        self.label(f"L_{tag}_sel")
        if tag == "v" and self.endhi:
            e(f"s_sub_u32 s{S_TMP}, s{S_CNT}, s{S_END}")
            e(f"s_mul_i32 s{S_TMP2}, s{S_END}, {self.endhi}")
            e(f"s_cmp_le_u32 s{S_TMP}, s{S_TMP2}")
            e(f"s_cselect_b32 s{S_MODE}, 1, s{S_MODE}")
        if self.diag:
            e(f"s_add_u32 s{S_NHI}, s{S_NHI}, s{S_MODE}")
        for md in range(1, self.nm if branch else 0):
            e(f"s_cmp_eq_u32 s{S_MODE}, {md}")
            e(f"s_cbranch_scc1 L_{tag}m{md}")

    def post_sample(self, v):
        H = f"s[{SRD_H}:{SRD_H+3}]"
        return [f"s_add_u32 s{S_MARK}, s{S_MARK}, 1", f"v_mov_b32 v{self.vM}, s{S_MARK}",
                f"buffer_store_short v{self.vM}, off, {H}, s{S_SLOT}",
                f"buffer_load_ushort v{v}, v{self.vL2}, {H}, 0 offen sc1"]

    def decide(self, v, back):
        e = self.e
        if back:
            e(f"s_sub_u32 s{S_TMP}, s{S_MARK}, {back}")
            e(f"v_cmp_le_u32 s[{S_CMP}:{S_CMP+1}], s{S_TMP}, v{v}")
        else:
            e(f"v_cmp_le_u32 s[{S_CMP}:{S_CMP+1}], s{S_MARK}, v{v}")
        e("s_nop 0")
        e(f"s_bcnt1_i32_b64 s{S_TMP}, s[{S_CMP}:{S_CMP+1}]")
        e(f"s_cmp_ge_u32 s{S_TMP}, s{S_TH}")

    def bodies2(self, kind, c0, tag, Ns):
        state = (self.nops, self.done, dict(self.ldidx), dict(self.blk), set(self.freed), self.lastread)
        step = 4 // self.sub
        regs = [self.vH, self.vG, self.vH2, self.vH3][:self.sub]
        for md, N in enumerate(Ns):
            self.nops, self.done, self.ldidx, self.blk, self.freed, self.lastread = \
                state[0], state[1], dict(state[2]), dict(state[3]), set(state[4]), state[5]
            for j in range(4):
                if j % step == 0:
                    k = j // step
                    if md == 0 or j:
                        self.decide(regs[k], self.sub - 1)
                        if self.diag:
                            self.e(f"s_cselect_b32 s{S_TMP}, 1, 0")
                            self.e(f"s_add_u32 s{S_NHI}, s{S_NHI}, s{S_TMP}")
                            self.e(f"s_cmp_eq_u32 s{S_TMP}, 1")
                        self.e(f"s_cbranch_scc{1-md} L_{tag}m{1-md}_{j}")
                    self.label(f"L_{tag}m{md}_{j}")
                    self.emit(self.post_sample(regs[k]))
                t = f"{tag}{md}_{j}"
                self.tile(c0 + j, kind, N, j=j, tag=t, **self.hooks(kind, j, t))
            if md == 0:
                self.e(f"s_branch L_{tag}_next")
        self.label(f"L_{tag}_next")
        self.nops, self.done, self.ldidx, self.blk, self.freed, self.lastread = \
            state[0], state[1], dict(state[2]), dict(state[3]), set(state[4]), state[5]

    def bodies(self, kind, c0, tag, Ns):
        if self.sub > 1:
            return self.bodies2(kind, c0, tag, Ns)
        state = (self.nops, self.done, dict(self.ldidx), dict(self.blk), set(self.freed), self.lastread)
        nmax = max(Ns)
        for md, N in enumerate(Ns):
            self.nops, self.done, self.ldidx, self.blk, self.freed, self.lastread = \
                state[0], state[1], dict(state[2]), dict(state[3]), set(state[4]), state[5]
            self.label(f"L_{tag}m{md}")
            for j in range(4):
                t = f"{tag}{md}_{j}"
                self.tile(c0 + j, kind, N, j=j, tag=t, **self.hooks(kind, j, t))
            if md < len(Ns) - 1:
                self.e(f"s_branch L_{tag}_next")
        self.label(f"L_{tag}_next")
        self.nops, self.done, self.ldidx, self.blk, self.freed, self.lastread = \
            state[0], state[1], dict(state[2]), dict(state[3]), set(state[4]), state[5]

    def peeled(self, kind, c0, tag, N, ckind, weave):
        state = (self.nops, self.done, dict(self.ldidx), dict(self.blk), set(self.freed), self.lastread)
        self.e(f"s_mov_b32 s{S_CNT}, 32")
        if kind == "K":
            self.e("s_mov_b64 vcc, 0" if self.nopiece else "s_mov_b64 vcc, -1")
        self.control(tag, branch=False)
        for j in range(4):
            t = f"{tag}_{j}"
            if self.sub > 1 and j % (4 // self.sub) == 0:
                self.emit(self.post_sample([self.vH, self.vG, self.vH2, self.vH3][j // (4 // self.sub)]))
            self.tile(c0 + j, kind, N, j=j, tag=t, ckind=ckind if j == 0 else None, czero=j == 0, cczero=j == 1,
                      weave=weave)
        self.nops, self.done, self.ldidx, self.blk, self.freed, self.lastread = state

    def replay(self, kind, c_from, c_to, N):
        keep = self.lines
        self.lines = []
        for c in range(c_from, c_to):
            self.tile(c, kind, N, j=c % 4)
        self.lines = keep

    def warmup(self, waits):
        e = self.e
        e(f"s_lshr_b32 s{S_TMP}, s3, 3")
        e(f"s_lshl_b32 s{S_TMP}, s{S_TMP}, 12")
        for i in range(4):
            off = f" offset:{i*1024}" if i else ""
            e(f"buffer_load_dwordx4 a[{4*i}:{3+4*i}], v{self.vK}, s[{SRD_P}:{SRD_P+3}], s{S_TMP} offen{off}")
            if waits:
                self.nops += 1

    def build(self):
        e = self.e
        NK, NV = self.NK, self.NV
        t0, t1 = self.X, self.X + 1
        self.lastread = -1
        e("s_cmp_ge_u32 s2, 256")
        e("s_cbranch_scc1 L_end")
        e("s_load_dwordx16 s[4:19], s[0:1], 0")
        e("s_mov_b32 s3, s2")
        if self.hmap:
            for i, m in enumerate(self.hmap):
                x = m ^ (1 << i)
                if x:
                    e(f"s_bitcmp1_b32 s3, {i}")
                    e(f"s_cselect_b32 s{S_TMP}, {x}, 0")
                    e(f"s_xor_b32 s2, s2, s{S_TMP}")
        if self.hrot:
            e(f"s_lshl_b32 s{S_TMP}, s2, {self.hrot}")
            e(f"s_lshr_b32 s2, s2, {8-self.hrot}")
            e(f"s_or_b32 s2, s2, s{S_TMP}")
            e(f"s_and_b32 s2, s2, 255")
        if self.diag:
            e(f"s_memrealtime s[{S_T0}:{S_T0+1}]")
        if self.dbgt:
            e(f"s_memrealtime s[{S_T0}:{S_T0+1}]")
        if self.cw3:
            e(f"s_getpc_b64 s[{S_CM2}:{S_CM2+1}]")
            self.label("L_pc")
            e(f"v_lshlrev_b32 v{self.vG}, 7, v0")
            if self.cw3 == 1:
                e(f"s_bfe_u32 s{S_TMP}, s3, 0x20003")
                e(f"s_lshl_b32 s{S_TMP}, s{S_TMP}, 13")
                e(f"s_min_u32 s{S_TMP}, s{S_TMP}, L_end-L_pc-8064")
                e(f"s_add_u32 s{S_CM2}, s{S_CM2}, s{S_TMP}")
                e(f"s_addc_u32 s{S_CM2+1}, s{S_CM2+1}, 0")
            e(f"global_load_dword v{self.vM}, v{self.vG}, s[{S_CM2}:{S_CM2+1}]")
            self.nops += 1
        e(f"v_lshlrev_b32 v{self.vK}, 4, v0")
        e(f"s_lshl_b32 s{S_P}, s2, 21")
        e(f"s_add_u32 s{S_P2}, s{S_P}, {self.boff()}")
        e(f"s_mov_b32 s{SRD_D+2}, 0x20000000")
        e(f"s_mov_b32 s{SRD_D+3}, 0x20000")
        e(f"s_mov_b32 s{SRD_P+2}, 0x20000")
        e(f"s_mov_b32 s{SRD_P+3}, 0x20000")
        e(f"s_mov_b32 s{S_PO}, 0")
        e("s_mov_b32 m0, 0")
        e("s_waitcnt lgkmcnt(0)")
        if self.lsearch:
            e("s_mov_b32 s80, 0")
            for i in range(8):
                e(f"s_bfe_u32 s{S_TMP}, s{18 + i // 4}, {(8 << 16) | (8 * (i % 4)):#x}")
                e(f"s_bitcmp1_b32 s3, {i}")
                e(f"s_cselect_b32 s{S_TMP}, s{S_TMP}, 0")
                e(f"s_xor_b32 s80, s80, s{S_TMP}")
            e(f"s_lshl_b32 s80, s80, {self.lsearch}")
            e(f"s_xor_b32 s81, s{S_P}, s80")
            e(f"s_xor_b32 s82, s{S_P2}, s80")
        if self.hsearch:
            e("s_mov_b32 s2, 0")
            for i in range(8):
                e(f"s_bfe_u32 s{S_TMP}, s{18 + i // 4}, {(8 << 16) | (8 * (i % 4)):#x}")
                e(f"s_bitcmp1_b32 s3, {i}")
                e(f"s_cselect_b32 s{S_TMP}, s{S_TMP}, 0")
                e(f"s_xor_b32 s2, s2, s{S_TMP}")
            e(f"s_lshl_b32 s{S_P}, s2, 21")
            e(f"s_add_u32 s{S_P2}, s{S_P}, {self.boff()}")
        e(f"s_mov_b32 s{SRD_D}, s{S_K}")
        e(f"s_mov_b32 s{SRD_D+1}, s{S_K+1}")
        e(f"s_mov_b32 s{SRD_P}, s{S_E}")
        e(f"s_mov_b32 s{SRD_P+1}, s{S_E+1}")
        NB0 = self.NB0

        def pieces(a, b):
            keep = self.epol
            self.epol = self.e0pol
            if self.ploop and a == 0:
                self.label("L_p0")
                e(self.piece_ins())
                e(f"s_add_u32 m0, m0, {ROWB}")
                e(f"s_add_u32 s{S_PO}, s{S_PO}, 8192")
                e(f"s_cmp_lt_u32 s{S_PO}, 0x20000")
                e("s_cbranch_scc1 L_p0")
                e(f"s_mov_b32 m0, 1024")
                e(f"s_mov_b32 s{S_PO}, 1024")
                for p in range(a, b):
                    self.note_piece(p)
                a = b
            for p in range(a, b):
                e(self.piece_ins())
                self.note_piece(p)
                if p == 15:
                    e(f"s_mov_b32 m0, 1024")
                    e(f"s_mov_b32 s{S_PO}, 1024")
                else:
                    e(f"s_add_u32 m0, m0, {ROWB}")
                    e(f"s_add_u32 s{S_PO}, s{S_PO}, 8192")
            self.epol = keep
        def codewarm():
            e(f"s_getpc_b64 s[{S_CM2}:{S_CM2+1}]")
            e(f"s_lshr_b32 s{S_TMP}, s2, 3")
            e(f"s_mul_i32 s{S_TMP}, s{S_TMP}, {128*self.cw2}")
            e(f"s_add_u32 s{S_CM2}, s{S_CM2}, s{S_TMP}")
            e(f"s_addc_u32 s{S_CM2+1}, s{S_CM2+1}, 0")
            for i in range(self.cw2):
                e(f"s_load_dword s{84+i}, s[{S_CM2}:{S_CM2+1}], {128*i}")
        nfirst = self.efirst
        for L in range(nfirst):
            self.kload(L)
        if self.cw2:
            codewarm()
        pieces(0, 16)
        if self.warm and self.warmfirst:
            self.warmup(True)
        for L in range(nfirst, NB0):
            self.kload(L)
        pieces(16, PRE)
        if self.warm and not self.warmfirst:
            self.warmup(True)
        e(f"s_mov_b32 s{S_TMP2}, m0")
        e(f"s_lshl_b32 s{S_TMP}, s2, 11")
        e(f"s_mov_b32 m0, {LDS_Q}")
        self.srd(SRD_Q, S_Q, S_TMP, 0x800)
        if not self.lateq:
            e(f"buffer_load_dwordx4 v{self.vK}, s[{SRD_Q}:{SRD_Q+3}], 0 offen lds")
            e(f"buffer_load_dwordx4 v{self.vK}, s[{SRD_Q}:{SRD_Q+3}], 0 offen offset:1024 lds")
            self.nops += 2
        e(f"s_mov_b32 m0, s{S_TMP2}")
        self.srd(SRD_O, S_O, S_TMP, 0x800)
        if self.vtlb:
            e(f"s_lshl_b32 s{S_TMP}, s2, 21")
            e(f"s_add_u32 s{S_CM2}, s{S_V}, s{S_TMP}")
            e(f"s_addc_u32 s{S_CM2+1}, s{S_V+1}, 0")
            e(f"s_load_dword s{S_T1}, s[{S_CM2}:{S_CM2+1}], 0")
        e(f"v_and_b32 v{t0}, 15, v0")
        e(f"v_lshrrev_b32 v{t1}, 4, v0")
        e(f"v_mul_u32_u24 v{self.vE0}, {ROWB}, v{t0}")
        if self.pat == "h":
            e(f"v_bfe_u32 v{self.vE}, v0, 4, 1")
            e(f"v_lshl_add_u32 v{self.vE0}, v{self.vE}, 4, v{self.vE0}")
            e(f"v_lshrrev_b32 v{self.vE}, 5, v0")
            e(f"v_lshl_add_u32 v{self.vE0}, v{self.vE}, {(self.D//128).bit_length()-1}, v{self.vE0}")
        else:
            e(f"v_lshl_add_u32 v{self.vE0}, v{t1}, 4, v{self.vE0}")
        e(f"v_mov_b32 v{self.vE}, v{self.vE0}")
        e(f"v_lshrrev_b32 v{self.vQ}, 2, v{t0}")
        e(f"v_lshlrev_b32 v{self.vQ}, 8, v{self.vQ}")
        e(f"v_lshl_add_u32 v{self.vQ}, v{t1}, 6, v{self.vQ}")
        e(f"v_add_u32 v{self.vQ}, {LDS_Q-(0 if self.direct else 1024)}, v{self.vQ}")
        e(f"s_mov_b32 s{S_SEL_LO}, 0x05040100")
        e(f"s_mov_b32 s{S_SEL_HI}, 0x07060302")
        e(f"s_mov_b32 s{S_SCALE}, 0x3db504f3")
        e(f"s_mov_b32 s{S_LOG2E}, 0x3fb8aa3b")
        if self.nm > 1:
            self.srd(SRD_H, S_DBG, None, 256)
            e(f"s_getreg_b32 s{S_TMP}, hwreg(HW_REG_HW_ID, 8, 4)")
            e(f"s_getreg_b32 s{S_TMP2}, hwreg(HW_REG_HW_ID, 13, 2)")
            e(f"s_getreg_b32 s{S_XCC}, hwreg(HW_REG_XCC_ID, 0, 3)")
            e(f"s_lshl_b32 s{S_TMP2}, s{S_TMP2}, 4")
            e(f"s_or_b32 s{S_SLOT}, s{S_TMP}, s{S_TMP2}")
            e(f"s_mov_b32 s{S_MSK}, 0x7fff7fff")
            e(f"s_mov_b32 s{S_MSK+1}, 0x7fff7fff")
            if self.thtab:
                tab = sum((t - 16) << (4 * i) for i, t in enumerate(self.thtab))
                e(f"s_lshl_b32 s{S_TH}, s{S_XCC}, 2")
                e(f"s_lshr_b32 s{S_TH}, {tab:#x}, s{S_TH}")
                e(f"s_and_b32 s{S_TH}, s{S_TH}, 15")
                e(f"s_add_u32 s{S_TH}, s{S_TH}, 16")
            else:
                e(f"s_bitcmp1_b32 s{S_XCC}, 0")
                e(f"s_cselect_b32 s{S_TH}, {self.th + self.par}, {self.th - self.par}")
            if self.glob:
                e(f"s_mov_b32 s{S_GM}, 255")
                e(f"s_lshl_b64 s[{S_XM}:{S_XM+1}], 1, s{S_XCC}")
                sh = self.gsh
                if self.gws:
                    e(f"s_mov_b32 s{S_TMP}, 0x380000")
                    self.srd(SRD_G, S_WS, S_TMP, 8 << sh)
                else:
                    e(f"s_mov_b32 s{S_TMP}, 128")
                    self.srd(SRD_G, S_DBG, S_TMP, 8 << sh)
                e(f"s_lshl_b32 s{S_XO}, s{S_XCC}, {sh}")

            e(f"v_mov_b32 v{self.vG}, 0")
            e(f"v_mov_b32 v{self.vH}, {1 if self.starthi else 0}")
            if self.sub > 1:
                e(f"s_lshl_b32 s{S_SLOT}, s{S_SLOT}, 1")
                e(f"v_lshlrev_b32 v{self.vL2}, 1, v0")
                assert self.sub == 2 and not self.ts
                e(f"s_mov_b32 s{S_MARK}, 8")
            if self.sub == 1:
                e(f"s_mov_b32 s{S_MARK}, 1")
            e(f"s_mov_b32 s{S_MODE}, 0")
        if self.codewarm:
            e(f"s_getpc_b64 s[{S_T1}:{S_T1+1}]")
            e(f"s_lshr_b32 s{S_TMP}, s2, 3")
            e(f"s_and_b32 s{S_TMP}, s{S_TMP}, 15")
            e(f"s_lshl_b32 s{S_TMP}, s{S_TMP}, 10")
            e(f"s_add_u32 s{S_T1}, s{S_T1}, s{S_TMP}")
            e(f"s_addc_u32 s{S_T1+1}, s{S_T1+1}, 0")
            e(f"global_load_dwordx4 a[12:15], v{self.vK}, s[{S_T1}:{S_T1+1}]")
            self.nops += 1
        if self.diag:
            self.srd(SRD_W, S_WS, None, 0x1000000)
            e(f"s_mov_b32 s{S_NHI}, 0")
        if self.direct:
            for r in list(range(self.acc, self.acc + 32)) + list(range(self.T + 16, self.T + 32)) + \
                    list(range(self.W, self.W + 4)):
                e(f"v_mov_b32 v{r}, 0")
        for L in range(NB0, 24 + self.delta):
            self.wait(self.nops - 1 - self.ldidx[divmod(L - NB0, 8)])
            self.kload(L)
        idx = self.blk[0][1]
        if idx > self.done:
            self.wait(self.nops - 1 - idx)
        self.check_read(0)
        e(f"ds_read_b128 v[{self.R}:{self.R+3}], v{self.vE}")
        self.stamp()
        e(f"s_mov_b32 s{S_PH}, 0")
        e(f"s_mov_b32 s{S_END}, {PRE//4}")
        if self.direct:
            e(f"s_mov_b32 s{S_CNT}, 32")
        else:
            self.label("L_khead")
            self.peeled("K", 0, "kp", NK[0] + self.NP, "K", self.k_weave())
            e("s_branch L_k_next")
        self.label("L_k")
        e(f"s_cmp_eq_u32 s{S_CNT}, s{S_END}")
        e("s_cbranch_scc0 L_nf")
        if self.lateq:
            e(f"s_mov_b32 m0, {LDS_Q}")
        e(f"s_mov_b32 s{SRD_P}, s{S_F}")
        e(f"s_mov_b32 s{SRD_P+1}, s{S_F+1}")
        if self.lateq:
            e(f"buffer_load_dwordx4 v{self.vK}, s[{SRD_Q}:{SRD_Q+3}], 0 offen nt lds")
            e(f"buffer_load_dwordx4 v{self.vK}, s[{SRD_Q}:{SRD_Q+3}], 0 offen offset:1024 nt lds")
        e(f"s_mov_b32 s{S_PO}, 0")
        e(f"s_mov_b32 m0, 8192")
        if self.warm:
            self.warmup(False)
        self.label("L_nf")
        e(f"s_cmp_gt_u32 s{S_CNT}, s{S_END}")
        e("s_cselect_b64 vcc, 0, 0" if self.nopiece else "s_cselect_b64 vcc, -1, 0")
        self.control("k")
        self.bodies("K", 0, "k", NK)
        e(f"s_sub_u32 s{S_CNT}, s{S_CNT}, 1")
        e(f"s_cmp_lg_u32 s{S_CNT}, 0")
        e("s_cbranch_scc1 L_k")
        self.stamp()
        e(f"s_cmp_eq_u32 s{S_PH}, 0")
        e(f"s_mov_b32 s{S_END}, 0")
        e(f"s_mov_b32 s{S_PH}, 8192")
        if self.direct:
            e("s_cbranch_scc0 L_vstart")
            self.peeled("K", 0, "kp", NK[0] + self.NP, "K", self.k_weave())
            e("s_branch L_k_next")
            self.label("L_vstart")
        else:
            e("s_cbranch_scc1 L_khead")
        self.replay("K", 0, 256, max(NK))
        self.peeled("V", 256, "vp", NV[0] + self.NP, "K", self.k_weave())
        e("s_branch L_v_next")
        self.label("L_v")
        self.control("v")
        self.bodies("V", 256, "v", NV)
        e(f"s_sub_u32 s{S_CNT}, s{S_CNT}, 1")
        e(f"s_cmp_lg_u32 s{S_CNT}, s{S_END}")
        e("s_cbranch_scc1 L_v")
        e(f"s_cmp_eq_u32 s{S_END}, 1")
        e("s_cbranch_scc1 L_tail")
        self.stamp()
        e(f"s_mov_b32 s{S_END}, 1")
        self.peeled("V", 256, "vq", NV[0] + self.NP, "V", self.v_weave())
        e("s_branch L_v_next")
        self.label("L_tail")
        self.replay("V", 256, 508, max(NV))
        self.stamp()
        for c in range(508, 512):
            self.tile(c, "V", max(NV))
        self.stamp()
        self.flush("V")
        self.emit(self.v_epilogue(1))
        if self.diag:
            e("s_waitcnt vmcnt(0)")
            e(f"s_memrealtime s[{S_T1}:{S_T1+1}]")
            e(f"s_getreg_b32 s{S_TMP2}, hwreg(HW_REG_XCC_ID)")
            e(f"s_and_b32 s{S_TMP2}, s{S_TMP2}, 15")
            e(f"s_lshl_b32 s{S_TMP}, s2, 4")
            e("s_waitcnt lgkmcnt(0)")
            o = self.W
            e(f"v_mov_b32 v{o}, s{S_T0}")
            e(f"v_mov_b32 v{o+1}, s{S_T1}")
            e(f"v_mov_b32 v{o+2}, s{S_TMP2}")
            e(f"s_lshl_b32 s{S_NHI}, s{S_NHI}, 8")
            e(f"v_mov_b32 v{o+3}, s{S_NHI}")
            e(f"v_mov_b32 v{t0}, s{S_TMP}")
            if self.ts:
                e(f"v_lshlrev_b32 v{t1}, 2, v0")
                e(f"s_lshl_b32 s{S_TMP}, s2, 8")
                e(f"s_add_u32 s{S_TMP}, s{S_TMP}, 0x200000")
                e(f"buffer_store_dword v{self.vG}, v{t1}, s[{SRD_W}:{SRD_W+3}], s{S_TMP} offen")
            e("s_mov_b64 exec, 1")
            e(f"buffer_store_dwordx4 v[{o}:{o+3}], v{t0}, s[{SRD_W}:{SRD_W+3}], 0 offen")
        if self.dbgt:
            e("s_waitcnt vmcnt(0)")
            e(f"s_memrealtime s[{S_T1}:{S_T1+1}]")
            e("s_waitcnt lgkmcnt(0)")
            e(f"s_sub_u32 s{S_TMP}, s{S_T1}, s{S_T0}")
            e(f"s_not_b32 s{S_T0}, s{S_T0}")
            e(f"s_atomic_umax s{S_T1}, s[{S_DBG}:{S_DBG+1}], 0x0")
            e(f"s_atomic_umax s{S_T0}, s[{S_DBG}:{S_DBG+1}], 0x4")
            e(f"s_atomic_add s{S_TMP}, s[{S_DBG}:{S_DBG+1}], 0x8")
            e("s_waitcnt lgkmcnt(0)")
        self.label("L_end")
        e("s_endpgm")

        out = HEADER
        out += f"; @launch grid=(256,1,1) block=(64,1,1) lds={LDS_BYTES}\n"
        out += '.amdgcn_target "amdgcn-amd-amdhsa--gfx950"\n.text\n'
        out += f".globl {NAME}_kernel\n.p2align 8\n.type {NAME}_kernel,@function\n{NAME}_kernel:\n"
        out += "\n".join(self.lines) + "\n"
        if self.cw2:
            out += ".fill CWPAD, 4, 0xbf800000\n    s_endpgm\n"
        if self.codewarm:
            out += ".fill 1280, 4, 0xbf800000\n    s_endpgm\n"
        out += '.section .rodata,"a"\n.p2align 6\n'
        out += f".amdhsa_kernel {NAME}_kernel\n"
        out += f"  .amdhsa_next_free_vgpr {self.nv + self.nagpr}\n"
        out += f"  .amdhsa_next_free_sgpr 96\n"
        out += f"  .amdhsa_accum_offset {self.nv}\n"
        out += "  .amdhsa_group_segment_fixed_size 0\n  .amdhsa_kernarg_size 64\n"
        out += "  .amdhsa_user_sgpr_count 2\n  .amdhsa_user_sgpr_kernarg_segment_ptr 1\n"
        out += "  .amdhsa_system_sgpr_workgroup_id_x 1\n"
        out += "  .amdhsa_float_denorm_mode_32 3\n"
        out += ".end_amdhsa_kernel\n"
        if self.cw2:
            k = next(i for i, l in enumerate(self.lines) if "s_getpc" in l)
            low = sum(8 if l.split()[0].startswith(("buffer_", "ds_", "v_perm_", "v_mfma", "v_cvt_pk")) else
                      0 if l.endswith(":") else 4 for l in self.lines[k:])
            out = out.replace("CWPAD", str(max(1, (max(32 * 128 * self.cw2, 24576 if self.cw3 else 0) + 256 - low) // 4 + 1)))
        return out


if __name__ == "__main__":
    ap = argparse.ArgumentParser()
    tup = lambda s: tuple(int(x) for x in s.split(","))
    ap.add_argument("-o", default=f"cdna_kernels/{NAME}.s")
    ap.add_argument("--NK", type=tup, default=(23, 28))
    ap.add_argument("--NV", type=tup, default=(21, 26))
    ap.add_argument("--delta", type=int, default=6)
    ap.add_argument("--th", type=int, default=24)
    ap.add_argument("--tl", type=int, default=9)
    ap.add_argument("--every", type=int, default=2)
    ap.add_argument("--kpol", default="nt")
    ap.add_argument("--epol", default="")
    ap.add_argument("--outpol", default="")
    ap.add_argument("--sslot", type=int, default=3)
    ap.add_argument("--pslot", type=int, default=2)
    ap.add_argument("--warm", type=int, default=1)
    ap.add_argument("--endhi", type=int, default=0)
    ap.add_argument("--dbgt", action="store_true")
    ap.add_argument("--lsearch", type=int, default=0)
    ap.add_argument("--hsearch", action="store_true")
    ap.add_argument("--hmap", type=tup, default=None)
    ap.add_argument("--hrot", type=int, default=0)
    ap.add_argument("--thtab", type=tup, default=None)
    ap.add_argument("--lateq", action="store_true")
    ap.add_argument("--starthi", action="store_true")
    ap.add_argument("--warmfirst", action="store_true")
    ap.add_argument("--sub", type=int, default=1)
    ap.add_argument("--cw3", type=int, default=0)
    ap.add_argument("--ploop", action="store_true")
    ap.add_argument("--nodirect", action="store_true")
    ap.add_argument("--cw2", type=int, default=0)
    ap.add_argument("--gws", action="store_true")
    ap.add_argument("--gsh", type=int, default=4)
    ap.add_argument("--novtlb", action="store_true")
    ap.add_argument("--NP", type=int, default=2)
    ap.add_argument("--efirst", type=int, default=20)
    ap.add_argument("--NB0", type=int, default=20)
    ap.add_argument("--e0pol", default="")
    ap.add_argument("--ts", action="store_true")
    ap.add_argument("--nopiece", action="store_true")
    ap.add_argument("--nocomp", action="store_true")
    ap.add_argument("--pat", default="lin")
    ap.add_argument("--D", type=int, default=32)
    ap.add_argument("--codewarm", action="store_true")
    ap.add_argument("--par", type=int, default=0)
    ap.add_argument("--gev", type=int, default=4)
    ap.add_argument("--glob", type=tup, default=None)
    ap.add_argument("--diag", action="store_true")
    a = ap.parse_args()
    g = Gen13(a.NK, a.NV, a.delta, a.th, a.every, a.kpol, a.epol, a.diag, a.outpol, a.sslot, a.pslot,
              warm=a.warm, tl=a.tl, endhi=a.endhi, dbgt=a.dbgt, glob=a.glob, gev=a.gev, par=a.par, codewarm=a.codewarm, pat=a.pat, D=a.D*1024, ts=a.ts, nopiece=a.nopiece, nocomp=a.nocomp, efirst=a.efirst, e0pol=a.e0pol, NB0=a.NB0, vtlb=not a.novtlb, NP=a.NP, gws=a.gws, gsh=a.gsh, cw2=a.cw2, direct=not a.nodirect, cw3=a.cw3, ploop=a.ploop, sub=a.sub, lateq=a.lateq, starthi=a.starthi, warmfirst=a.warmfirst, thtab=a.thtab, hrot=a.hrot, hsearch=a.hsearch, hmap=a.hmap, lsearch=a.lsearch)
    s = g.build()
    open(a.o, "w").write(s)
    print(f"wrote {a.o}: nv={g.nv} lines={len(g.lines)}")
```

```python
import argparse
from gen import HEADER, NAME

DOC = """;
;    number N of loads is in flight.  Row pairs are transposed with v_perm_b32 into MFMA fragments
;    (v_mfma_f32_16x16x32_bf16, fp32 accumulation); kp is accumulated transposed, vp straight, so that the
"""

S_Q, S_K, S_V, S_E, S_F, S_O, S_DBG, S_WS = 4, 6, 8, 10, 12, 14, 16, 18
SRD_D, SRD_P, SRD_O, SRD_W, SRD_Q, SRD_H = 20, 24, 28, 32, 56, 60
S_P, S_P2, S_CNT, S_SEL_LO, S_SEL_HI, S_TMP, S_TMP2 = 36, 37, 38, 39, 40, 41, 42
S_SCALE, S_LOG2E, S_END = 43, 44, 45
S_PO, S_PH, S_MARK, S_MODE = 46, 47, 52, 53
S_CMP = 54
S_T0, S_T1 = 48, 50
S_NHI = 68
S_SLOT, S_XCC, S_GM, S_TH = 64, 65, 66, 67
S_MSK, S_CM2, S_XM = 70, 72, 74
SRD_G, S_XO = 76, 69
ROWB = 9 * 1024 + 16
LDS_Q = 16 * ROWB
LDS_BYTES = LDS_Q + 2048
NB = 4
PRE = 20


class Gen13:
    def __init__(self, NK=(23, 28), NV=(21, 26), delta=6, th=24, every=2, kpol="nt", epol="", diag=False,
                 outpol="", sslot=3, pslot=2, N0=52, warm=1, tl=None, endhi=0, dbgt=False, glob=None, gev=4, par=0, codewarm=False, pat='lin', D=32768, ts=False, nopiece=False, nocomp=False, efirst=0, e0pol='', NB0=20, vtlb=True, NP=2, gws=False, gsh=4, cw2=0, cwpos=8, direct=True, cw3=0, ploop=False, sub=1, late=0, hold=False, lateq=False, starthi=False, warmfirst=False, thtab=None, hrot=0, hsearch=False, hmap=None, lsearch=0, pd=0):
        self.pd = pd
        self.lsearch = lsearch
        self.hsearch, self.hmap = hsearch, hmap
        self.hrot = hrot
        self.thtab = thtab
        self.lateq, self.starthi, self.warmfirst = lateq, starthi, warmfirst
        self.sub, self.late, self.hold = sub, late, hold
        self.cw3, self.ploop = cw3, ploop
        self.direct = direct
        self.cw2, self.cwpos = cw2, cwpos
        self.gws, self.gsh = gws, gsh
        self.vtlb, self.NP = vtlb, NP
        self.efirst, self.e0pol, self.NB0 = efirst, e0pol, NB0
        self.ts, self.nopiece, self.nocomp = ts, nopiece, nocomp
        self.pat, self.D = pat, D
        self.codewarm = codewarm
        self.par = par
        self.gev = gev
        self.glob = glob
        self.dbgt = dbgt
        self.NK, self.NV, self.delta, self.th, self.every = NK, NV, delta, th, every
        self.kpol, self.epol, self.diag, self.outpol = kpol, epol, diag, outpol
        self.sslot, self.pslot, self.N0, self.warm = sslot, pslot, N0, warm
        self.tl, self.endhi = tl, endhi
        self.nm = len(NK)
        self.lines = []
        self.inloop = True
        self.vK, self.vE, self.vQ, self.vE0 = 1, 2, 3, 4
        self.vH, self.vG, self.vM = 5, 10, 11
        self.P = [6, 8]
        self.vL2, self.vH2, self.vH3 = 0, 0, 0
        self.vGA = 30
        self.W, self.R, self.X = 12, 16, 20
        r = 32
        self.T = r; r += 32
        self.acc = r; r += 32
        self.tb = []
        for b in range(NB):
            self.tb.append(r); r += 32
        self.QR, self.A = r, r + 16
        r += 32
        self.nv = r
        self.nagpr = 16 if warm else 0
        self.nops = 0
        self.done = -1
        self.ldidx = {}
        self.blk = {}
        self.freed = set()

    def e(self, s):
        self.lines.append("    " + s)

    def c(self, s):
        self.lines.append("    ; " + s)

    def label(self, s):
        self.lines.append(s + ":")

    def emit(self, ins):
        for s in ins:
            if self.nocomp and s.startswith(("v_perm", "v_mfma")):
                continue
            self.lines.append(s if s.endswith(":") else "    " + s)

    def wait(self, n):
        self.e(f"s_waitcnt vmcnt({n})")
        self.done = max(self.done, self.nops - n - 1)

    def aoff(self, t):
        D = self.D
        if self.pat == "lin":
            return t * 8192
        if self.pat == "h":
            nb = D // 4096
            return (t // nb) * 2 * D + (t % nb) * 4096
        if self.pat == "w4":
            nb = 2 * D // 4096
            return (t // nb) * 4 * D + (t & 1) * 2 * D + ((t % nb) >> 1) * 4096
        nb = 2 * D // 8192
        return (t // nb) * 2 * D + (t & 1) * D + ((t % nb) >> 1) * 8192

    def boff(self):
        return self.D if self.pat in ("h", "w4") else 4096

    def wrapadd(self):
        return 3 * self.D if self.pat == "w4" else self.D

    def nblk(self):
        return {"lin": 4, "h": self.D // 4096, "big": 2 * self.D // 8192, "w4": self.D // 2048}[self.pat]

    def step(self, reg, tau, second):
        inc = self.aoff(tau % 4 + 1) - self.aoff(tau % 4) if (tau % 4 != 3 or self.nblk() > 4) else \
            self.aoff(4) - self.aoff(3)
        if inc >= 0:
            self.e(f"s_add_u32 s{reg}, s{reg}, {inc}")
        else:
            self.e(f"s_sub_u32 s{reg}, s{reg}, {-inc}")
        if tau % 4 == 3 and self.nblk() > 4:
            low = (self.boff() if second else 0) & (self.D - 1)
            self.e(f"s_and_b32 s{S_TMP}, s{reg}, {self.D-1}")
            self.e(f"s_cmp_eq_u32 s{S_TMP}, {low}")
            self.e(f"s_cselect_b32 s{S_TMP}, {self.wrapadd()}, 0")
            self.e(f"s_add_u32 s{reg}, s{reg}, s{S_TMP}")

    def estep(self, c):
        vE = self.vE
        j = c % 4
        nb = self.nblk()
        inc = (self.aoff(j + 1) - self.aoff(j)) // 128
        if j == 3 and nb > 4:
            q = nb // 4
            return [f"s_and_b32 s{S_TMP}, s{S_CNT}, {q-1}", f"s_cmp_eq_u32 s{S_TMP}, 1",
                    *([f"s_cselect_b32 s{S_TMP}, {inc + self.wrapadd()//128}, {inc}"] if -16 <= inc <= 64 else
                      [f"s_cselect_b32 s{S_TMP}, {self.wrapadd()//128}, 0", f"s_add_i32 s{S_TMP}, s{S_TMP}, {inc}"]),
                    f"v_add_u32 v{vE}, s{S_TMP}, v{vE}"]
        if inc >= 0:
            return [f"v_add_u32 v{vE}, {inc}, v{vE}"]
        return [f"v_subrev_u32 v{vE}, {-inc}, v{vE}"]

    def kload(self, L):
        tau, k = divmod(L, 8)
        if tau >= NB:
            assert (tau - NB, k >> 1) in self.freed, (tau, k)
        t = self.tb[tau % NB] + 4 * k
        pol = (" " + self.kpol) if self.kpol else ""
        o, so = k * 1024, S_P
        if o >= 4096:
            o -= 4096; so = S_P2
        off = f" offset:{o}" if o else ""
        if self.lsearch:
            so = 81 if so == S_P else 82
        self.e(f"buffer_load_dwordx4 v[{t}:{t+3}], v{self.vK}, s[{SRD_D}:{SRD_D+3}], s{so} offen{off}{pol}")
        self.ldidx[(tau, k)] = self.nops
        self.nops += 1
        if k == 3:
            self.step(S_P, tau, False)
            if self.lsearch:
                self.e(f"s_xor_b32 s81, s{S_P}, s80")
        if k == 7:
            self.step(S_P2, tau, True)
            if self.lsearch:
                self.e(f"s_xor_b32 s82, s{S_P2}, s80")

    def piece_of(self, c):
        if c < 128 - PRE:
            return PRE + c
        if 128 <= c < 256:
            return c
        return None

    def note_piece(self, p):
        which, b = ("E", p // 16) if p < 128 else ("F", (p - 128) // 16)
        pos = b if which == "E" else (b + 8) % 9
        if p % 16 == 0 and pos in self.blk:
            old = self.blk[pos][0]
            assert old[0] == "E" and self.lastread >= 128 + 16 * old[1] + 15, (p, old, self.lastread)
        self.blk[pos] = ((which, b), self.nops if p % 16 == 15 else 1 << 30)
        self.nops += 1

    def piece_ins(self):
        pol = (" " + self.epol) if self.epol else ""
        return f"buffer_load_dwordx4 v{self.vK}, s[{SRD_P}:{SRD_P+3}], s{S_PO} offen{pol} lds"

    def piece_next(self, j, tag):
        out = [f"s_add_u32 s{S_PO}, s{S_PO}, 8192", f"s_add_u32 m0, m0, {ROWB}"]
        if j == 3:
            out += [f"s_cmp_ge_u32 s{S_PO}, 0x20000", f"s_cbranch_scc0 L_{tag}_np",
                    f"s_sub_u32 s{S_PO}, s{S_PO}, {0x20000-1024}", f"s_sub_u32 m0, m0, {16*ROWB-1024}",
                    f"s_cmp_eq_u32 m0, {9*1024}", f"s_cselect_b32 m0, 0, m0"]
        return out

    def check_read(self, n):
        which, b = ("E" if n < 256 else "F"), (n % 128) // 16
        pos = b if which == "E" else (b + 8) % 9
        content, idx = self.blk[pos]
        assert content == (which, b) and idx <= self.done, (n, content, idx, self.done)

    def perms(self, c, m, half):
        t = self.tb[c % NB]
        out = []
        for ec in range(4 * half, 4 * half + 4):
            sel = S_SEL_HI if ec & 1 else S_SEL_LO
            cc = ec >> 1
            out.append(f"v_perm_b32 v{self.T+4*ec+m}, v{t+4*(2*m+1)+cc}, v{t+4*(2*m)+cc}, s{sel}")
        return out

    def mfmas(self, kind, es, czero=False):
        W = self.W
        out = []
        for ec in es:
            a, tm = self.acc + 4 * ec, self.T + 4 * ec
            x, y = f"v[{tm}:{tm+3}]", f"v[{W}:{W+3}]"
            if kind == "V":
                x, y = y, x
            cin = "0" if czero else f"v[{a}:{a+3}]"
            out.append(f"v_mfma_f32_16x16x32_bf16 v[{a}:{a+3}], {x}, {y}, {cin}")
        return out

    def shuffle(self, c, fix, nxt=True):
        W, R = self.W, self.R
        g = ["s_waitcnt lgkmcnt(0)",
             f"v_perm_b32 v{W}, v{R+2}, v{R}, s{S_SEL_LO}",
             f"v_perm_b32 v{W+2}, v{R+3}, v{R+1}, s{S_SEL_LO}",
             f"v_perm_b32 v{W+1}, v{R+2}, v{R}, s{S_SEL_HI}",
             f"v_perm_b32 v{W+3}, v{R+3}, v{R+1}, s{S_SEL_HI}",
             f"v_permlane32_swap_b32 v{W}, v{W+2}"]
        g += self.estep(c) if nxt else ["s_nop 0"]
        g += [f"v_permlane32_swap_b32 v{W+1}, v{W+3}"]
        if fix:
            g += fix
        g += [f"ds_read_b128 v[{R}:{R+3}], v{self.vE}" if nxt else "s_nop 0"]
        g2 = [f"v_permlane16_swap_b32 v{W}, v{W+1}", f"v_permlane16_swap_b32 v{W+2}, v{W+3}"]
        return g, g2

    def tile(self, c, kind, N, j=0, fix=None, post=None, tag="x", ckind=None, czero=False, cczero=False,
             weave=None):
        nxt = c + 1 < 512
        late = []
        for i in range(8):
            m, half = i >> 1, i & 1
            if kind == "K" and i == self.pslot:
                p = self.piece_of(c)
                self.e(f"s_cbranch_vccz L_{tag}_np")
                if p is not None:
                    self.wait(N - 1)
                    self.note_piece(p)
                else:
                    self.e(f"s_waitcnt vmcnt({N-1})")
                self.e(self.piece_ins())
                self.emit(self.piece_next(j, tag))
                self.label(f"L_{tag}_np")
            L = 8 * (c + 3) + i + self.delta
            if L < 4096:
                self.wait(N - 1)
                self.kload(L)
                if L % 8 == 7 and post:
                    self.emit(post)
            idx = self.ldidx[(c, 2 * m + 1)]
            if L >= 4096 and idx > self.done:
                self.wait(self.nops - 1 - idx)
            assert idx <= self.done, (c, i)
            pm = self.perms(c, m, half)
            if i == 0:
                for a, b in zip(self.mfmas(ckind or kind, range(4, 8), cczero), pm):
                    self.emit([a, b])
            elif i == 7:
                for a, b in zip(self.mfmas(kind, range(4), czero), pm):
                    self.emit([a, b])
            else:
                self.emit(pm)
            if half:
                self.freed.add((c, m))
            if late:
                self.emit(late)
                late = []
            if i == self.sslot:
                self.lastread = c
                if nxt:
                    self.check_read(c + 1)
                g, late = self.shuffle(c, fix, nxt)
                self.emit(g)
            if self.late and self.inloop and 8 * j + i == self.late:
                H = f"s[{SRD_H}:{SRD_H+3}]"
                self.c("post the next progress mark, sample all marks")
                self.emit([f"s_add_u32 s{S_MARK}, s{S_MARK}, 1", f"v_mov_b32 v{self.vM}, s{S_MARK}",
                           f"buffer_store_byte v{self.vM}, off, {H}, s{S_SLOT}",
                           f"buffer_load_ubyte v{self.vH}, v0, {H}, 0 offen sc1"])
            if weave and (j, i) in weave:
                self.emit(weave[(j, i)])

    def xlane(self, op, a, b):
        return [f"v_mov_b32 v{b}, v{a}", "s_nop 1", f"v_permlane16_swap_b32 v{a}, v{b}", "s_nop 1",
                f"{op} v{a}, v{a}, v{b}",
                f"v_mov_b32 v{b}, v{a}", "s_nop 1", f"v_permlane32_swap_b32 v{a}, v{b}", "s_nop 1",
                f"{op} v{a}, v{a}, v{b}"]

    def zero(self):
        return [f"v_mov_b32 v{self.acc+i}, 0" for i in range(32)]

    def spread(self, w, ins, start, per):
        k = start
        while ins:
            w.setdefault(divmod(k, 8), []).extend(ins[:per])
            ins = ins[per:]
            k += 1
        assert k <= 32

    def k_weave(self):
        acc, X, QR, A = self.acc, self.X, self.QR, self.A
        assert self.sslot == 3
        S = X
        w = {}
        cv = [f"v_cvt_pk_bf16_f32 v{A+4*g+m}, v{acc+4*(2*m)+g}, v{acc+4*(2*m+1)+g}" for g in range(4) for m in range(4)]
        w[(0, 1)] = [f"ds_read_b128 v[{QR+4*g}:{QR+4*g+3}], v{self.vQ} offset:{g*16}" for g in range(4)] + cv[:4]
        w[(0, 2)] = cv[4:12] + [f"v_add_u32 v{self.vQ}, 1024, v{self.vQ}"]
        w[(0, 3)] = cv[12:]
        mf = [f"v_mfma_f32_16x16x32_bf16 v[{S}:{S+3}], v[{A+4*g}:{A+4*g+3}], v[{QR+4*g}:{QR+4*g+3}], "
              + ("0" if g == 0 else f"v[{S}:{S+3}]") for g in range(4)]
        w[(0, 4)] = mf[:2]
        w[(0, 5)] = mf[2:]
        x = X + 4
        p = [f"v_cvt_pk_bf16_f32 v{x+4}, v{S}, v{S+1}", f"v_cvt_pk_bf16_f32 v{x+5}, v{S+2}, v{S+3}"]
        unpack = [f"v_lshlrev_b32 v{x+0}, 16, v{x+4}", f"v_and_b32 v{x+1}, 0xffff0000, v{x+4}",
                  f"v_lshlrev_b32 v{x+2}, 16, v{x+5}", f"v_and_b32 v{x+3}, 0xffff0000, v{x+5}"]
        p += unpack
        p += [f"v_mul_f32 v{x+i}, s{S_SCALE}, v{x+i}" for i in range(4)]
        p += [f"v_cvt_pk_bf16_f32 v{x+4}, v{x}, v{x+1}", f"v_cvt_pk_bf16_f32 v{x+5}, v{x+2}, v{x+3}"]
        p += unpack
        p += [f"v_max3_f32 v{x+6}, v{x}, v{x+1}, v{x+2}", f"v_max_f32 v{x+6}, v{x+6}, v{x+3}"]
        p += self.xlane("v_max_f32", x + 6, x + 7)
        p += [f"v_sub_f32 v{x+i}, v{x+i}, v{x+6}" for i in range(4)]
        p += [f"v_mul_f32 v{x+i}, s{S_LOG2E}, v{x+i}" for i in range(4)]
        p += [f"v_exp_f32 v{x+i}, v{x+i}" for i in range(4)]
        p += ["s_nop 0", f"v_add_f32 v{x+6}, v{x}, v{x+1}", f"v_add_f32 v{x+7}, v{x+2}, v{x+3}",
              f"v_add_f32 v{x+6}, v{x+6}, v{x+7}"]
        p += self.xlane("v_add_f32", x + 6, x + 7)
        p += [f"v_rcp_f32 v{x+6}, v{x+6}", "s_nop 0"]
        p += [f"v_mul_f32 v{x+i}, v{x+i}, v{x+6}" for i in range(4)]
        P0, P1 = self.P
        p += [f"v_mov_b32 v{P0}, v{P1}", f"v_mov_b32 v{P0+1}, v{P1+1}",
              f"v_cvt_pk_bf16_f32 v{P1}, v{x}, v{x+1}", f"v_cvt_pk_bf16_f32 v{P1+1}, v{x+2}, v{x+3}"]
        self.spread(w, p, 8, 4)
        return w

    def v_weave(self):
        acc, X, QR, A, P = self.acc, self.X, self.QR, self.A, self.P[0]
        w = {}
        cv = []
        for ec in range(8):
            a = acc + 4 * ec
            cv += [f"v_cvt_pk_bf16_f32 v{A+2*ec}, v{a}, v{a+1}", f"v_cvt_pk_bf16_f32 v{A+2*ec+1}, v{a+2}, v{a+3}"]
        w[(0, 1)], w[(0, 2)], w[(0, 3)] = cv[:6], cv[6:12], cv[12:]
        mf = [f"v_mfma_f32_16x16x16_bf16 v[{QR+4*(ec&3)}:{QR+4*(ec&3)+3}], v[{P}:{P+1}], v[{A+2*ec}:{A+2*ec+1}], 0"
              for ec in range(8)]
        o = X + 4
        oc = [f"v_cvt_pk_bf16_f32 v{o+m}, v{QR+8*(m&1)}, v{QR+8*(m&1)+4}" for m in range(4)]
        w[(0, 4)], w[(0, 5)] = mf[:2], mf[2:4]
        w[(1, 1)] = oc[:2]
        w[(1, 2)], w[(1, 3)] = mf[4:6], mf[6:]
        pol = (" " + self.outpol) if self.outpol else ""
        w[(1, 6)] = oc[2:] + [f"buffer_store_dwordx4 v[{o}:{o+3}], v{self.vK}, s[{SRD_O}:{SRD_O+3}], 0 offen{pol}"]
        return w

    def v_epilogue(self, head):
        acc, X, P, T = self.acc, self.X, self.P[head], self.T
        p = ["s_nop 3"]
        for ec in range(8):
            a = acc + 4 * ec
            p.append(f"v_cvt_pk_bf16_f32 v{a}, v{a}, v{a+1}")
            p.append(f"v_cvt_pk_bf16_f32 v{a+1}, v{a+2}, v{a+3}")
            if ec:
                a = acc + 4 * (ec - 1)
                p.append(f"v_mfma_f32_16x16x16_bf16 v[{T+4*(ec-1)}:{T+4*(ec-1)+3}], v[{P}:{P+1}], v[{a}:{a+1}], 0")
        a = acc + 28
        p.append("s_nop 0")
        p.append(f"v_mfma_f32_16x16x16_bf16 v[{T+28}:{T+31}], v[{P}:{P+1}], v[{a}:{a+1}], 0")
        p += ["s_nop 4"]
        o = X + 4
        for m in range(4):
            p.append(f"v_cvt_pk_bf16_f32 v{o+m}, v{T+4*(2*m)}, v{T+4*(2*m+1)}")
        off = " offset:1024" if head else ""
        pol = (" " + self.outpol) if self.outpol else ""
        p.append(f"buffer_store_dwordx4 v[{o}:{o+3}], v{self.vK}, s[{SRD_O}:{SRD_O+3}], 0 offen{off}{pol}")
        return p

    def stamp(self):
        if not self.ts:
            return
        g = self.vG
        self.emit([f"s_memrealtime s[{S_T1}:{S_T1+1}]", "s_waitcnt lgkmcnt(0)",
                   f"v_mov_b32_dpp v{g}, v{g} row_shr:1 row_mask:0xf bank_mask:0xf",
                   "s_nop 1", f"v_writelane_b32 v{g}, s{S_T1}, 0"])

    def flush(self, kind):
        self.emit(["s_nop 1"] + self.mfmas(kind, range(4, 8)))

    def srd(self, d, ptr, offreg, nrec):
        if offreg is None:
            self.e(f"s_mov_b32 s{d}, s{ptr}")
            self.e(f"s_mov_b32 s{d+1}, s{ptr+1}")
        else:
            self.e(f"s_add_u32 s{d}, s{ptr}, s{offreg}")
            self.e(f"s_addc_u32 s{d+1}, s{ptr+1}, 0")
        self.e(f"s_mov_b32 s{d+2}, {nrec:#x}")
        self.e(f"s_mov_b32 s{d+3}, 0x20000")

    def hooks(self, kind, j, tag):
        fix = post = None
        if j == 3 and kind == "K":
            fix = [f"s_cmp_eq_u32 s{S_CNT}, 1", f"s_cbranch_scc0 L_{tag}_nw",
                   f"v_add_u32 v{self.vE}, s{S_PH}, v{self.vE0}", f"L_{tag}_nw:"]
        if j == 3 and kind == "V":
            fix = [f"s_cmp_eq_u32 s{S_CNT}, 29", f"s_cbranch_scc0 L_{tag}_nw",
                   f"v_mov_b32 v{self.vE}, v{self.vE0}", f"L_{tag}_nw:",
                   f"s_cmp_eq_u32 s{S_CNT}, 1", f"s_cbranch_scc0 L_{tag}_nx",
                   f"v_add_u32 v{self.vE}, 8192, v{self.vE0}", f"L_{tag}_nx:"]
        if j == 0 and kind == "K":
            post = [f"s_add_u32 s{S_TMP}, s{S_CNT}, s{S_PH}",
                    f"s_cmp_eq_u32 s{S_TMP}, 8193",
                    f"s_cbranch_scc0 L_{tag}_ns",
                    f"s_mov_b32 s{SRD_D}, s{S_V}",
                    f"s_mov_b32 s{SRD_D+1}, s{S_V+1}",
                    f"s_lshl_b32 s{S_P}, s2, 21",
                    f"s_add_u32 s{S_P2}, s{S_P}, {self.boff()}"] + \
                   ([f"s_xor_b32 s81, s{S_P}, s80", f"s_xor_b32 s82, s{S_P2}, s80"] if self.lsearch else []) + \
                   [f"L_{tag}_ns:"]
        return dict(fix=fix, post=post)

    def control(self, tag, branch=True):
        e = self.e
        if self.nm == 1 or self.sub > 1:
            return
        if self.every > 1:
            e(f"s_and_b32 s{S_TMP}, s{S_CNT}, {self.every-1}")
            e(f"s_cbranch_scc1 L_{tag}_sel")
        H = f"s[{SRD_H}:{SRD_H+3}]"
        self.c("how many CUs had reached my last mark when I sampled -> window of this group")
        if self.late:
            e(f"s_waitcnt vmcnt({32 - self.late - 1})")
            e(f"v_cmp_le_u32 s[{S_CMP}:{S_CMP+1}], s{S_MARK}, v{self.vH}")
            e("s_nop 0")
            e(f"s_bcnt1_i32_b64 s{S_TMP}, s[{S_CMP}:{S_CMP+1}]")
            if self.pd:
                e(f"s_sub_i32 s{S_TMP2}, s{S_TMP}, s{S_GM}")
                e(f"s_mov_b32 s{S_GM}, s{S_TMP}")
                if self.pd == 2:
                    e(f"s_ashr_i32 s{S_TMP2}, s{S_TMP2}, 1")
                if self.pd == -1:
                    e(f"s_ashr_i32 s{S_TMP2}, s{S_TMP2}, 1")
                    e(f"s_sub_i32 s{S_TMP}, s{S_TMP}, s{S_TMP2}")
                else:
                    e(f"s_add_i32 s{S_TMP}, s{S_TMP}, s{S_TMP2}")
                e(f"s_cmp_ge_i32 s{S_TMP}, s{S_TH}")
            else:
                e(f"s_cmp_ge_u32 s{S_TMP}, s{S_TH}")
            if branch:
                e(f"s_cbranch_scc1 L_{tag}m1")
            return
        e(f"v_cmp_le_u32 s[{S_CMP}:{S_CMP+1}], s{S_MARK}, v{self.vH}")
        if self.glob:
            e(f"v_cmp_ne_u32 s[{S_CM2}:{S_CM2+1}], 0, v{self.vH}")
            e(f"v_readlane_b32 s{S_TH}, v{self.vH}, 15")
        e(f"s_add_u32 s{S_MARK}, s{S_MARK}, 1")
        e(f"v_mov_b32 v{self.vM}, s{S_MARK}")
        if self.glob:
            e(f"s_and_b64 s[{S_CMP}:{S_CMP+1}], s[{S_CMP}:{S_CMP+1}], s[{S_MSK}:{S_MSK+1}]")
        e(f"s_bcnt1_i32_b64 s{S_TMP}, s[{S_CMP}:{S_CMP+1}]")
        e(f"buffer_store_byte v{self.vM}, off, {H}, s{S_SLOT}")
        e(f"buffer_load_ubyte v{self.vH}, v0, {H}, 0 offen sc1")
        if self.glob:
            A, B = self.glob
            e(f"s_cmp_eq_u32 s{S_TH}, 0")
            e(f"s_cselect_b32 s{S_TH}, {self.th}, s{S_TH}")
            e(f"s_cmp_ge_u32 s{S_TMP}, s{S_TH}")
            e(f"s_cselect_b32 s{S_MODE}, 1, 0")
            e(f"s_and_b64 s[{S_CM2}:{S_CM2+1}], s[{S_CM2}:{S_CM2+1}], s[{S_MSK}:{S_MSK+1}]")
            e(f"s_ff1_i32_b64 s{S_TMP2}, s[{S_CM2}:{S_CM2+1}]")
            e(f"s_cmp_eq_u32 s{S_TMP2}, s{S_SLOT}")
            e(f"s_cbranch_scc0 L_{tag}_sel")
            if self.gev > 1:
                e(f"s_and_b32 s{S_TMP2}, s{S_MARK}, {self.gev-1}")
                e(f"s_cbranch_scc1 L_{tag}_sel")
            G = f"s[{SRD_G}:{SRD_G+3}]"
            e(f"v_cmp_le_u32 s[{S_CM2}:{S_CM2+1}], s{S_GM}, v{self.vG}")
            e(f"v_lshlrev_b32 v{self.vGA}, {self.gsh}, v0")
            e("s_mov_b64 exec, 1")
            e(f"buffer_store_dword v{self.vM}, off, {G}, s{S_XO} sc1")
            e("s_mov_b64 exec, -1")
            e(f"s_andn2_b64 s[{S_CM2}:{S_CM2+1}], s[{S_CM2}:{S_CM2+1}], s[{S_XM}:{S_XM+1}]")
            e(f"s_bcnt1_i32_b64 s{S_TMP2}, s[{S_CM2}:{S_CM2+1}]")
            e(f"s_cmp_eq_u32 s{S_GM}, 255")
            e(f"buffer_load_dword v{self.vG}, v{self.vGA}, {G}, 0 offen sc0 sc1")
            e(f"s_mov_b32 s{S_GM}, s{S_MARK}")
            e(f"s_cbranch_scc1 L_{tag}_sel")
            e(f"s_mul_i32 s{S_TMP2}, s{S_TMP2}, {B}")
            e(f"s_sub_u32 s{S_TMP2}, {A}, s{S_TMP2}")
            e(f"v_mov_b32 v{self.X+11}, s{S_TMP2}")
            e(f"buffer_store_byte v{self.X+11}, off, {H}, 0 offset:15")
        else:
            e(f"s_cmp_ge_u32 s{S_TMP}, s{S_TH}")
            e(f"s_cselect_b32 s{S_MODE}, 1, 0")
        if self.nm == 3:
            e(f"s_cmp_lt_u32 s{S_TMP}, {self.tl}")
            e(f"s_cselect_b32 s{S_MODE}, 2, s{S_MODE}")
        self.label(f"L_{tag}_sel")
        if tag == "v" and self.endhi:
            e(f"s_sub_u32 s{S_TMP}, s{S_CNT}, s{S_END}")
            e(f"s_mul_i32 s{S_TMP2}, s{S_END}, {self.endhi}")
            e(f"s_cmp_le_u32 s{S_TMP}, s{S_TMP2}")
            e(f"s_cselect_b32 s{S_MODE}, 1, s{S_MODE}")
        if self.diag:
            e(f"s_add_u32 s{S_NHI}, s{S_NHI}, s{S_MODE}")
        for md in range(1, self.nm if branch else 0):
            e(f"s_cmp_eq_u32 s{S_MODE}, {md}")
            e(f"s_cbranch_scc1 L_{tag}m{md}")

    def post_sample(self, v):
        H = f"s[{SRD_H}:{SRD_H+3}]"
        return [f"s_add_u32 s{S_MARK}, s{S_MARK}, 1", f"v_mov_b32 v{self.vM}, s{S_MARK}",
                f"buffer_store_short v{self.vM}, off, {H}, s{S_SLOT}",
                f"buffer_load_ushort v{v}, v{self.vL2}, {H}, 0 offen sc1"]

    def decide(self, v, back):
        e = self.e
        if back:
            e(f"s_sub_u32 s{S_TMP}, s{S_MARK}, {back}")
            e(f"v_cmp_le_u32 s[{S_CMP}:{S_CMP+1}], s{S_TMP}, v{v}")
        else:
            e(f"v_cmp_le_u32 s[{S_CMP}:{S_CMP+1}], s{S_MARK}, v{v}")
        e("s_nop 0")
        e(f"s_bcnt1_i32_b64 s{S_TMP}, s[{S_CMP}:{S_CMP+1}]")
        e(f"s_cmp_ge_u32 s{S_TMP}, s{S_TH}")

    def bodies2(self, kind, c0, tag, Ns):
        state = (self.nops, self.done, dict(self.ldidx), dict(self.blk), set(self.freed), self.lastread)
        step = 4 // self.sub
        regs = [self.vH, self.vG, self.vH2, self.vH3][:self.sub]
        for md, N in enumerate(Ns):
            self.nops, self.done, self.ldidx, self.blk, self.freed, self.lastread = \
                state[0], state[1], dict(state[2]), dict(state[3]), set(state[4]), state[5]
            for j in range(4):
                if j % step == 0:
                    k = j // step
                    if md == 0 or j:
                        self.decide(regs[k], self.sub - 1)
                        if self.diag:
                            self.e(f"s_cselect_b32 s{S_TMP}, 1, 0")
                            self.e(f"s_add_u32 s{S_NHI}, s{S_NHI}, s{S_TMP}")
                            self.e(f"s_cmp_eq_u32 s{S_TMP}, 1")
                        self.e(f"s_cbranch_scc{1-md} L_{tag}m{1-md}_{j}")
                    self.label(f"L_{tag}m{md}_{j}")
                    self.emit(self.post_sample(regs[k]))
                t = f"{tag}{md}_{j}"
                self.tile(c0 + j, kind, N, j=j, tag=t, **self.hooks(kind, j, t))
            if md == 0:
                self.e(f"s_branch L_{tag}_next")
        self.label(f"L_{tag}_next")
        self.nops, self.done, self.ldidx, self.blk, self.freed, self.lastread = \
            state[0], state[1], dict(state[2]), dict(state[3]), set(state[4]), state[5]

    def bodies(self, kind, c0, tag, Ns):
        if self.sub > 1:
            return self.bodies2(kind, c0, tag, Ns)
        state = (self.nops, self.done, dict(self.ldidx), dict(self.blk), set(self.freed), self.lastread)
        nmax = max(Ns)
        for md, N in enumerate(Ns):
            self.nops, self.done, self.ldidx, self.blk, self.freed, self.lastread = \
                state[0], state[1], dict(state[2]), dict(state[3]), set(state[4]), state[5]
            self.label(f"L_{tag}m{md}")
            for j in range(4):
                t = f"{tag}{md}_{j}"
                self.tile(c0 + j, kind, N, j=j, tag=t, **self.hooks(kind, j, t))
            if md < len(Ns) - 1:
                self.e(f"s_branch L_{tag}_next")
        self.label(f"L_{tag}_next")
        self.nops, self.done, self.ldidx, self.blk, self.freed, self.lastread = \
            state[0], state[1], dict(state[2]), dict(state[3]), set(state[4]), state[5]

    def peeled(self, kind, c0, tag, N, ckind, weave):
        state = (self.nops, self.done, dict(self.ldidx), dict(self.blk), set(self.freed), self.lastread)
        self.c("first group of a head; the finished head's closing work is woven into its slots")
        self.e(f"s_mov_b32 s{S_CNT}, 32")
        if kind == "K":
            self.e("s_mov_b64 vcc, 0" if self.nopiece else "s_mov_b64 vcc, -1")
        if not (self.late and not self.pd):
            self.control(tag, branch=False)
        for j in range(4):
            t = f"{tag}_{j}"
            if self.sub > 1 and j % (4 // self.sub) == 0:
                self.emit(self.post_sample([self.vH, self.vG, self.vH2, self.vH3][j // (4 // self.sub)]))
            self.tile(c0 + j, kind, N, j=j, tag=t, ckind=ckind if j == 0 else None, czero=j == 0, cczero=j == 1,
                      weave=weave)
        self.nops, self.done, self.ldidx, self.blk, self.freed, self.lastread = state

    def replay(self, kind, c_from, c_to, N):
        keep = self.lines
        self.lines = []
        for c in range(c_from, c_to):
            self.tile(c, kind, N, j=c % 4)
        self.lines = keep

    def warmup(self, waits):
        e = self.e
        e(f"s_lshr_b32 s{S_TMP}, s3, 3")
        e(f"s_lshl_b32 s{S_TMP}, s{S_TMP}, 12")
        for i in range(4):
            off = f" offset:{i*1024}" if i else ""
            e(f"buffer_load_dwordx4 a[{4*i}:{3+4*i}], v{self.vK}, s[{SRD_P}:{SRD_P+3}], s{S_TMP} offen{off}")
            if waits:
                self.nops += 1

    def build(self):
        e = self.e
        NK, NV = self.NK, self.NV
        t0, t1 = self.X, self.X + 1
        self.lastread = -1
        e("s_cmp_ge_u32 s2, 256")
        e("s_cbranch_scc1 L_end")
        e("s_load_dwordx16 s[4:19], s[0:1], 0")
        self.c("s3 = workgroup id, s2 = head pair")
        e("s_mov_b32 s3, s2")
        if self.hmap:
            for i, m in enumerate(self.hmap):
                x = m ^ (1 << i)
                if x:
                    e(f"s_bitcmp1_b32 s3, {i}")
                    e(f"s_cselect_b32 s{S_TMP}, {x}, 0")
                    e(f"s_xor_b32 s2, s2, s{S_TMP}")
        if self.hrot:
            e(f"s_lshl_b32 s{S_TMP}, s2, {self.hrot}")
            e(f"s_lshr_b32 s2, s2, {8-self.hrot}")
            e(f"s_or_b32 s2, s2, s{S_TMP}")
            e(f"s_and_b32 s2, s2, 255")
        if self.diag:
            e(f"s_memrealtime s[{S_T0}:{S_T0+1}]")
        if self.dbgt:
            e(f"s_memrealtime s[{S_T0}:{S_T0+1}]")
        if self.cw3:
            self.c("one dword per 128-byte line of a third of this kernel's code: brings it into the die's L2")
            e(f"s_getpc_b64 s[{S_CM2}:{S_CM2+1}]")
            self.label("L_pc")
            e(f"v_lshlrev_b32 v{self.vG}, 7, v0")
            if self.cw3 == 1:
                e(f"s_bfe_u32 s{S_TMP}, s3, 0x20003")
                e(f"s_lshl_b32 s{S_TMP}, s{S_TMP}, 13")
                e(f"s_min_u32 s{S_TMP}, s{S_TMP}, L_end-L_pc-8064")
                e(f"v_add_u32 v{self.vG}, s{S_TMP}, v{self.vG}")
            assert self.vM == self.vG + 1 and self.vG % 2 == 0
            e(f"v_mov_b32 v{self.vM}, s{S_CM2+1}")
            e(f"v_add_co_u32 v{self.vG}, vcc, s{S_CM2}, v{self.vG}")
            e("s_nop 1")
            e(f"v_addc_co_u32 v{self.vM}, vcc, 0, v{self.vM}, vcc")
            e(f"global_load_dword v{self.A+15}, v[{self.vG}:{self.vM}], off")
            self.nops += 1
        e(f"v_lshlrev_b32 v{self.vK}, 4, v0")
        e(f"s_lshl_b32 s{S_P}, s2, 21")
        e(f"s_add_u32 s{S_P2}, s{S_P}, {self.boff()}")
        e(f"s_mov_b32 s{SRD_D+2}, 0x20000000")
        e(f"s_mov_b32 s{SRD_D+3}, 0x20000")
        e(f"s_mov_b32 s{SRD_P+2}, 0x20000")
        e(f"s_mov_b32 s{SRD_P+3}, 0x20000")
        e(f"s_mov_b32 s{S_PO}, 0")
        e("s_mov_b32 m0, 0")
        e("s_waitcnt lgkmcnt(0)")
        if self.lsearch:
            e("s_mov_b32 s80, 0")
            for i in range(8):
                e(f"s_bfe_u32 s{S_TMP}, s{18 + i // 4}, {(8 << 16) | (8 * (i % 4)):#x}")
                e(f"s_bitcmp1_b32 s3, {i}")
                e(f"s_cselect_b32 s{S_TMP}, s{S_TMP}, 0")
                e(f"s_xor_b32 s80, s80, s{S_TMP}")
            e(f"s_lshl_b32 s80, s80, {self.lsearch}")
            e(f"s_xor_b32 s81, s{S_P}, s80")
            e(f"s_xor_b32 s82, s{S_P2}, s80")
        if self.hsearch:
            e("s_mov_b32 s2, 0")
            for i in range(8):
                e(f"s_bfe_u32 s{S_TMP}, s{18 + i // 4}, {(8 << 16) | (8 * (i % 4)):#x}")
                e(f"s_bitcmp1_b32 s3, {i}")
                e(f"s_cselect_b32 s{S_TMP}, s{S_TMP}, 0")
                e(f"s_xor_b32 s2, s2, s{S_TMP}")
            e(f"s_lshl_b32 s{S_P}, s2, 21")
            e(f"s_add_u32 s{S_P2}, s{S_P}, {self.boff()}")
        e(f"s_mov_b32 s{SRD_D}, s{S_K}")
        e(f"s_mov_b32 s{SRD_D+1}, s{S_K+1}")
        e(f"s_mov_b32 s{SRD_P}, s{S_E}")
        e(f"s_mov_b32 s{SRD_P+1}, s{S_E+1}")
        self.c("start-up burst: first stream loads, block 0 of E (+4 rows of block 1), L2 warm-up share of E")
        NB0 = self.NB0

        def pieces(a, b):
            keep = self.epol
            self.epol = self.e0pol
            if self.ploop and a == 0:
                self.label("L_p0")
                e(self.piece_ins())
                e(f"s_add_u32 m0, m0, {ROWB}")
                e(f"s_add_u32 s{S_PO}, s{S_PO}, 8192")
                e(f"s_cmp_lt_u32 s{S_PO}, 0x20000")
                e("s_cbranch_scc1 L_p0")
                e(f"s_mov_b32 m0, 1024")
                e(f"s_mov_b32 s{S_PO}, 1024")
                for p in range(a, b):
                    self.note_piece(p)
                a = b
            for p in range(a, b):
                e(self.piece_ins())
                self.note_piece(p)
                if p == 15:
                    e(f"s_mov_b32 m0, 1024")
                    e(f"s_mov_b32 s{S_PO}, 1024")
                else:
                    e(f"s_add_u32 m0, m0, {ROWB}")
                    e(f"s_add_u32 s{S_PO}, s{S_PO}, 8192")
            self.epol = keep
        def codewarm():
            e(f"s_getpc_b64 s[{S_CM2}:{S_CM2+1}]")
            e(f"s_lshr_b32 s{S_TMP}, s2, 3")
            e(f"s_mul_i32 s{S_TMP}, s{S_TMP}, {128*self.cw2}")
            e(f"s_add_u32 s{S_CM2}, s{S_CM2}, s{S_TMP}")
            e(f"s_addc_u32 s{S_CM2+1}, s{S_CM2+1}, 0")
            for i in range(self.cw2):
                e(f"s_load_dword s{84+i}, s[{S_CM2}:{S_CM2+1}], {128*i}")
        nfirst = self.efirst
        for L in range(nfirst):
            self.kload(L)
        if self.cw2:
            codewarm()
        pieces(0, 16)
        if self.warm and self.warmfirst:
            self.warmup(True)
        for L in range(nfirst, NB0):
            self.kload(L)
        pieces(16, PRE)
        if self.warm and not self.warmfirst:
            self.warmup(True)
        e(f"s_mov_b32 s{S_TMP2}, m0")
        e(f"s_lshl_b32 s{S_TMP}, s2, 11")
        e(f"s_mov_b32 m0, {LDS_Q}")
        self.srd(SRD_Q, S_Q, S_TMP, 0x800)
        if not self.lateq:
            e(f"buffer_load_dwordx4 v{self.vK}, s[{SRD_Q}:{SRD_Q+3}], 0 offen lds")
            e(f"buffer_load_dwordx4 v{self.vK}, s[{SRD_Q}:{SRD_Q+3}], 0 offen offset:1024 lds")
            self.nops += 2
        e(f"s_mov_b32 m0, s{S_TMP2}")
        self.srd(SRD_O, S_O, S_TMP, 0x800)
        if self.vtlb:
            e(f"s_lshl_b32 s{S_TMP}, s2, 21")
            e(f"s_add_u32 s{S_CM2}, s{S_V}, s{S_TMP}")
            e(f"s_addc_u32 s{S_CM2+1}, s{S_V+1}, 0")
            e(f"s_load_dword s{S_T1}, s[{S_CM2}:{S_CM2+1}], 0")
        self.c("lane constants: LDS address of the projection fragment, LDS address of the q fragments")
        e(f"v_and_b32 v{t0}, 15, v0")
        e(f"v_lshrrev_b32 v{t1}, 4, v0")
        e(f"v_mul_u32_u24 v{self.vE0}, {ROWB}, v{t0}")
        if self.pat in ("h", "w4"):
            e(f"v_bfe_u32 v{self.vE}, v0, 4, 1")
            e(f"v_lshl_add_u32 v{self.vE0}, v{self.vE}, 4, v{self.vE0}")
            e(f"v_lshrrev_b32 v{self.vE}, 5, v0")
            e(f"v_lshl_add_u32 v{self.vE0}, v{self.vE}, {(self.D//128).bit_length()-1}, v{self.vE0}")
        else:
            e(f"v_lshl_add_u32 v{self.vE0}, v{t1}, 4, v{self.vE0}")
        e(f"v_mov_b32 v{self.vE}, v{self.vE0}")
        e(f"v_lshrrev_b32 v{self.vQ}, 2, v{t0}")
        e(f"v_lshlrev_b32 v{self.vQ}, 8, v{self.vQ}")
        e(f"v_lshl_add_u32 v{self.vQ}, v{t1}, 6, v{self.vQ}")
        e(f"v_add_u32 v{self.vQ}, {LDS_Q-(0 if self.direct else 1024)}, v{self.vQ}")
        e(f"s_mov_b32 s{S_SEL_LO}, 0x05040100")
        e(f"s_mov_b32 s{S_SEL_HI}, 0x07060302")
        e(f"s_mov_b32 s{S_SCALE}, 0x3db504f3")
        e(f"s_mov_b32 s{S_LOG2E}, 0x3fb8aa3b")
        if self.nm > 1:
            self.srd(SRD_H, S_DBG, None, 256 if (self.glob or self.sub > 1) else 64)
            e(f"s_getreg_b32 s{S_TMP}, hwreg(HW_REG_HW_ID, 8, 4)")
            e(f"s_getreg_b32 s{S_TMP2}, hwreg(HW_REG_HW_ID, 13, 2)")
            e(f"s_getreg_b32 s{S_XCC}, hwreg(HW_REG_XCC_ID, 0, 3)")
            e(f"s_lshl_b32 s{S_TMP2}, s{S_TMP2}, 4")
            e(f"s_or_b32 s{S_SLOT}, s{S_TMP}, s{S_TMP2}")
            if self.glob:
                e(f"s_mov_b32 s{S_MSK}, 0x7fff7fff")
                e(f"s_mov_b32 s{S_MSK+1}, 0x7fff7fff")
            if self.thtab:
                tab = sum((t - 16) << (4 * i) for i, t in enumerate(self.thtab))
                e(f"s_lshl_b32 s{S_TH}, s{S_XCC}, 2")
                e(f"s_lshr_b32 s{S_TH}, {tab:#x}, s{S_TH}")
                e(f"s_and_b32 s{S_TH}, s{S_TH}, 15")
                e(f"s_add_u32 s{S_TH}, s{S_TH}, 16")
            else:
                e(f"s_bitcmp1_b32 s{S_XCC}, 0")
                e(f"s_cselect_b32 s{S_TH}, {self.th + self.par}, {self.th - self.par}")
            if self.glob:
                e(f"s_mov_b32 s{S_GM}, 255")
                e(f"s_lshl_b64 s[{S_XM}:{S_XM+1}], 1, s{S_XCC}")
                sh = self.gsh
                if self.gws:
                    e(f"s_mov_b32 s{S_TMP}, 0x380000")
                    self.srd(SRD_G, S_WS, S_TMP, 8 << sh)
                else:
                    e(f"s_mov_b32 s{S_TMP}, 128")
                    self.srd(SRD_G, S_DBG, S_TMP, 8 << sh)
                e(f"s_lshl_b32 s{S_XO}, s{S_XCC}, {sh}")

            if self.glob or self.ts or self.sub > 1:
                e(f"v_mov_b32 v{self.vG}, 0")
            e(f"v_mov_b32 v{self.vH}, {1 if self.starthi else 0}")
            if self.sub > 1:
                e(f"s_lshl_b32 s{S_SLOT}, s{S_SLOT}, 1")
                e(f"v_lshlrev_b32 v{self.vL2}, 1, v0")
                assert self.sub == 2 and not self.ts
                e(f"s_mov_b32 s{S_MARK}, 8")
            if self.sub == 1:
                e(f"s_mov_b32 s{S_MARK}, 1")
            if not self.late:
                e(f"s_mov_b32 s{S_MODE}, 0")
            if self.pd:
                e(f"s_mov_b32 s{S_GM}, 16")
        if self.codewarm:
            e(f"s_getpc_b64 s[{S_T1}:{S_T1+1}]")
            e(f"s_lshr_b32 s{S_TMP}, s2, 3")
            e(f"s_and_b32 s{S_TMP}, s{S_TMP}, 15")
            e(f"s_lshl_b32 s{S_TMP}, s{S_TMP}, 10")
            e(f"s_add_u32 s{S_T1}, s{S_T1}, s{S_TMP}")
            e(f"s_addc_u32 s{S_T1+1}, s{S_T1+1}, 0")
            e(f"global_load_dwordx4 a[12:15], v{self.vK}, s[{S_T1}:{S_T1+1}]")
            self.nops += 1
        if self.diag:
            self.srd(SRD_W, S_WS, None, 0x1000000)
            e(f"s_mov_b32 s{S_NHI}, 0")
        if self.direct:
            for r in list(range(self.acc, self.acc + 32)) + list(range(self.T + 16, self.T + 32)) + \
                    list(range(self.W, self.W + 4)):
                e(f"v_mov_b32 v{r}, 0")
        for L in range(NB0, 24 + self.delta):
            self.wait(self.nops - 1 - self.ldidx[divmod(L - NB0, 8)])
            self.kload(L)
        idx = self.blk[0][1]
        if idx > self.done:
            self.wait(self.nops - 1 - idx)
        self.check_read(0)
        e(f"ds_read_b128 v[{self.R}:{self.R+3}], v{self.vE}")
        self.stamp()
        self.c("---- K phase: loop over groups of 4 tiles, two copies of the body (window N / deeper window)")
        e(f"s_mov_b32 s{S_PH}, 0")
        e(f"s_mov_b32 s{S_END}, {PRE//4}")
        if self.direct:
            e(f"s_mov_b32 s{S_CNT}, 32")
        else:
            self.label("L_khead")
            self.peeled("K", 0, "kp", NK[0] + self.NP, "K", self.k_weave())
            e("s_branch L_k_next")
        self.label("L_k")
        self.c("E is complete: fetch q, turn the staging to F, L2 warm-up share of F")
        e(f"s_cmp_eq_u32 s{S_CNT}, s{S_END}")
        e("s_cbranch_scc0 L_nf")
        if self.lateq:
            e(f"s_mov_b32 m0, {LDS_Q}")
        e(f"s_mov_b32 s{SRD_P}, s{S_F}")
        e(f"s_mov_b32 s{SRD_P+1}, s{S_F+1}")
        if self.lateq:
            e(f"buffer_load_dwordx4 v{self.vK}, s[{SRD_Q}:{SRD_Q+3}], 0 offen nt lds")
            e(f"buffer_load_dwordx4 v{self.vK}, s[{SRD_Q}:{SRD_Q+3}], 0 offen offset:1024 nt lds")
        e(f"s_mov_b32 s{S_PO}, 0")
        e(f"s_mov_b32 m0, 8192")
        if self.warm:
            self.warmup(False)
        self.label("L_nf")
        e(f"s_cmp_gt_u32 s{S_CNT}, s{S_END}")
        e("s_cselect_b64 vcc, 0, 0" if self.nopiece else "s_cselect_b64 vcc, -1, 0")
        self.control("k")
        self.bodies("K", 0, "k", NK)
        e(f"s_sub_u32 s{S_CNT}, s{S_CNT}, 1")
        e(f"s_cmp_lg_u32 s{S_CNT}, 0")
        e("s_cbranch_scc1 L_k")
        self.stamp()
        e(f"s_cmp_eq_u32 s{S_PH}, 0")
        e(f"s_mov_b32 s{S_END}, 0")
        e(f"s_mov_b32 s{S_PH}, 8192")
        if self.direct:
            e("s_cbranch_scc0 L_vstart")
            self.peeled("K", 0, "kp", NK[0] + self.NP, "K", self.k_weave())
            e("s_branch L_k_next")
            self.label("L_vstart")
        else:
            e("s_cbranch_scc1 L_khead")
        self.replay("K", 0, 256, max(NK))
        self.c("---- V phase: first group closes head 1 of K (scores, softmax) on the way")
        self.peeled("V", 256, "vp", NV[0] + self.NP, "K", self.k_weave())
        e("s_branch L_v_next")
        self.label("L_v")
        self.control("v")
        self.bodies("V", 256, "v", NV)
        e(f"s_sub_u32 s{S_CNT}, s{S_CNT}, 1")
        e(f"s_cmp_lg_u32 s{S_CNT}, s{S_END}")
        e("s_cbranch_scc1 L_v")
        e(f"s_cmp_eq_u32 s{S_END}, 1")
        e("s_cbranch_scc1 L_tail")
        self.stamp()
        e(f"s_mov_b32 s{S_END}, 1")
        self.peeled("V", 256, "vq", NV[0] + self.NP, "V", self.v_weave())
        e("s_branch L_v_next")
        self.c("---- last 4 tiles, output of head 1")
        self.label("L_tail")
        self.replay("V", 256, 508, max(NV))
        self.stamp()
        self.inloop = False
        for c in range(508, 512):
            self.tile(c, "V", max(NV))
        self.stamp()
        self.flush("V")
        self.emit(self.v_epilogue(1))
        if self.diag:
            e("s_waitcnt vmcnt(0)")
            e(f"s_memrealtime s[{S_T1}:{S_T1+1}]")
            e(f"s_getreg_b32 s{S_TMP2}, hwreg(HW_REG_XCC_ID)")
            e(f"s_and_b32 s{S_TMP2}, s{S_TMP2}, 15")
            e(f"s_lshl_b32 s{S_TMP}, s2, 4")
            e("s_waitcnt lgkmcnt(0)")
            o = self.W
            e(f"v_mov_b32 v{o}, s{S_T0}")
            e(f"v_mov_b32 v{o+1}, s{S_T1}")
            e(f"v_mov_b32 v{o+2}, s{S_TMP2}")
            e(f"s_lshl_b32 s{S_NHI}, s{S_NHI}, 8")
            e(f"v_mov_b32 v{o+3}, s{S_NHI}")
            e(f"v_mov_b32 v{t0}, s{S_TMP}")
            if self.ts:
                e(f"v_lshlrev_b32 v{t1}, 2, v0")
                e(f"s_lshl_b32 s{S_TMP}, s2, 8")
                e(f"s_add_u32 s{S_TMP}, s{S_TMP}, 0x200000")
                e(f"buffer_store_dword v{self.vG}, v{t1}, s[{SRD_W}:{SRD_W+3}], s{S_TMP} offen")
            e("s_mov_b64 exec, 1")
            e(f"buffer_store_dwordx4 v[{o}:{o+3}], v{t0}, s[{SRD_W}:{SRD_W+3}], 0 offen")
        if self.dbgt:
            e("s_waitcnt vmcnt(0)")
            e(f"s_memrealtime s[{S_T1}:{S_T1+1}]")
            e("s_waitcnt lgkmcnt(0)")
            e(f"s_sub_u32 s{S_TMP}, s{S_T1}, s{S_T0}")
            e(f"s_not_b32 s{S_T0}, s{S_T0}")
            e(f"s_atomic_umax s{S_T1}, s[{S_DBG}:{S_DBG+1}], 0x0")
            e(f"s_atomic_umax s{S_T0}, s[{S_DBG}:{S_DBG+1}], 0x4")
            e(f"s_atomic_add s{S_TMP}, s[{S_DBG}:{S_DBG+1}], 0x8")
            e("s_waitcnt lgkmcnt(0)")
        self.label("L_end")
        e("s_endpgm")

        out = HEADER + DOC
        out += f"; @launch grid=(256,1,1) block=(64,1,1) lds={LDS_BYTES}\n"
        out += '.amdgcn_target "amdgcn-amd-amdhsa--gfx950"\n.text\n'
        out += f".globl {NAME}_kernel\n.p2align 8\n.type {NAME}_kernel,@function\n{NAME}_kernel:\n"
        out += "\n".join(self.lines) + "\n"
        if self.cw2:
            out += ".fill CWPAD, 4, 0xbf800000\n    s_endpgm\n"
        if self.codewarm:
            out += ".fill 1280, 4, 0xbf800000\n    s_endpgm\n"
        out += '.section .rodata,"a"\n.p2align 6\n'
        out += f".amdhsa_kernel {NAME}_kernel\n"
        out += f"  .amdhsa_next_free_vgpr {self.nv + self.nagpr}\n"
        out += f"  .amdhsa_next_free_sgpr 96\n"
        out += f"  .amdhsa_accum_offset {self.nv}\n"
        out += "  .amdhsa_group_segment_fixed_size 0\n  .amdhsa_kernarg_size 64\n"
        out += "  .amdhsa_user_sgpr_count 2\n  .amdhsa_user_sgpr_kernarg_segment_ptr 1\n"
        out += "  .amdhsa_system_sgpr_workgroup_id_x 1\n"
        out += "  .amdhsa_float_denorm_mode_32 3\n"
        out += ".end_amdhsa_kernel\n"
        if self.cw2:
            k = next(i for i, l in enumerate(self.lines) if "s_getpc" in l)
            low = sum(8 if l.split()[0].startswith(("buffer_", "ds_", "v_perm_", "v_mfma", "v_cvt_pk")) else
                      0 if l.endswith(":") else 4 for l in self.lines[k:])
            out = out.replace("CWPAD", str(max(1, (max(32 * 128 * self.cw2, 24576 if self.cw3 else 0) + 256 - low) // 4 + 1)))
        return out


if __name__ == "__main__":
    ap = argparse.ArgumentParser()
    tup = lambda s: tuple(int(x) for x in s.split(","))
    ap.add_argument("-o", default=f"cdna_kernels/{NAME}.s")
    ap.add_argument("--NK", type=tup, default=(23, 28))
    ap.add_argument("--NV", type=tup, default=(21, 26))
    ap.add_argument("--delta", type=int, default=6)
    ap.add_argument("--th", type=int, default=24)
    ap.add_argument("--tl", type=int, default=9)
    ap.add_argument("--every", type=int, default=2)
    ap.add_argument("--kpol", default="nt")
    ap.add_argument("--epol", default="")
    ap.add_argument("--outpol", default="")
    ap.add_argument("--sslot", type=int, default=3)
    ap.add_argument("--pslot", type=int, default=2)
    ap.add_argument("--warm", type=int, default=1)
    ap.add_argument("--endhi", type=int, default=0)
    ap.add_argument("--dbgt", action="store_true")
    ap.add_argument("--pd", type=int, default=0)
    ap.add_argument("--late", type=int, default=0)
    ap.add_argument("--lsearch", type=int, default=0)
    ap.add_argument("--hsearch", action="store_true")
    ap.add_argument("--hmap", type=tup, default=None)
    ap.add_argument("--hrot", type=int, default=0)
    ap.add_argument("--thtab", type=tup, default=None)
    ap.add_argument("--lateq", action="store_true")
    ap.add_argument("--starthi", action="store_true")
    ap.add_argument("--warmfirst", action="store_true")
    ap.add_argument("--sub", type=int, default=1)
    ap.add_argument("--cw3", type=int, default=0)
    ap.add_argument("--ploop", action="store_true")
    ap.add_argument("--nodirect", action="store_true")
    ap.add_argument("--cw2", type=int, default=0)
    ap.add_argument("--gws", action="store_true")
    ap.add_argument("--gsh", type=int, default=4)
    ap.add_argument("--novtlb", action="store_true")
    ap.add_argument("--NP", type=int, default=2)
    ap.add_argument("--efirst", type=int, default=20)
    ap.add_argument("--NB0", type=int, default=20)
    ap.add_argument("--e0pol", default="")
    ap.add_argument("--ts", action="store_true")
    ap.add_argument("--nopiece", action="store_true")
    ap.add_argument("--nocomp", action="store_true")
    ap.add_argument("--pat", default="lin")
    ap.add_argument("--D", type=int, default=32)
    ap.add_argument("--codewarm", action="store_true")
    ap.add_argument("--par", type=int, default=0)
    ap.add_argument("--gev", type=int, default=4)
    ap.add_argument("--glob", type=tup, default=None)
    ap.add_argument("--diag", action="store_true")
    a = ap.parse_args()
    g = Gen13(a.NK, a.NV, a.delta, a.th, a.every, a.kpol, a.epol, a.diag, a.outpol, a.sslot, a.pslot,
              warm=a.warm, tl=a.tl, endhi=a.endhi, dbgt=a.dbgt, glob=a.glob, gev=a.gev, par=a.par, codewarm=a.codewarm, pat=a.pat, D=a.D*1024, ts=a.ts, nopiece=a.nopiece, nocomp=a.nocomp, efirst=a.efirst, e0pol=a.e0pol, NB0=a.NB0, vtlb=not a.novtlb, NP=a.NP, gws=a.gws, gsh=a.gsh, cw2=a.cw2, direct=not a.nodirect, cw3=a.cw3, ploop=a.ploop, sub=a.sub, late=a.late, lateq=a.lateq, starthi=a.starthi, warmfirst=a.warmfirst, thtab=a.thtab, hrot=a.hrot, hsearch=a.hsearch, hmap=a.hmap, lsearch=a.lsearch, pd=a.pd)
    s = g.build()
    open(a.o, "w").write(s)
    print(f"wrote {a.o}: nv={g.nv} lines={len(g.lines)}")
```

```python
import argparse
from gen import HEADER, NAME

DOC = """;
;    number N of loads is in flight.  Row pairs are transposed with v_perm_b32 into MFMA fragments
;    (v_mfma_f32_16x16x32_bf16, fp32 accumulation); kp is accumulated transposed, vp straight, so that the
"""

S_Q, S_K, S_V, S_E, S_F, S_O, S_DBG, S_WS = 4, 6, 8, 10, 12, 14, 16, 18
SRD_D, SRD_P, SRD_O, SRD_W, SRD_Q, SRD_H = 20, 24, 28, 32, 56, 60
S_P, S_P2, S_CNT, S_SEL_LO, S_SEL_HI, S_TMP, S_TMP2 = 36, 37, 38, 39, 40, 41, 42
S_SCALE, S_LOG2E, S_END = 43, 44, 45
S_PO, S_PH, S_MARK, S_MODE = 46, 47, 52, 53
S_CMP = 54
S_T0, S_T1 = 48, 50
S_NHI = 68
S_SLOT, S_XCC, S_GM, S_TH = 64, 65, 66, 67
S_MSK, S_CM2, S_XM = 70, 72, 74
SRD_G, S_XO = 76, 69
ROWB = 9 * 1024 + 16
LDS_Q = 16 * ROWB
LDS_BYTES = LDS_Q + 2048
NB = 4
PRE = 20


class Gen13:
    def __init__(self, NK=(23, 28), NV=(21, 26), delta=6, th=24, every=2, kpol="nt", epol="", diag=False,
                 outpol="", sslot=3, pslot=2, N0=52, warm=1, tl=None, endhi=0, dbgt=False, glob=None, gev=4, par=0, codewarm=False, pat='lin', D=32768, ts=False, nopiece=False, nocomp=False, efirst=0, e0pol='', NB0=20, vtlb=True, NP=2, gws=False, gsh=4, cw2=0, cwpos=8, direct=True, cw3=0, ploop=False, sub=1, late=0, hold=False, lateq=False, starthi=False, warmfirst=False, thtab=None, hrot=0, hsearch=False, hmap=None, lsearch=0, pd=0, headstart=None, ssamp=0):
        self.ssamp = ssamp
        self.headstart = headstart
        self.pd = pd
        self.lsearch = lsearch
        self.hsearch, self.hmap = hsearch, hmap
        self.hrot = hrot
        self.thtab = thtab
        self.lateq, self.starthi, self.warmfirst = lateq, starthi, warmfirst
        self.sub, self.late, self.hold = sub, late, hold
        self.cw3, self.ploop = cw3, ploop
        self.direct = direct
        self.cw2, self.cwpos = cw2, cwpos
        self.gws, self.gsh = gws, gsh
        self.vtlb, self.NP = vtlb, NP
        self.efirst, self.e0pol, self.NB0 = efirst, e0pol, NB0
        self.ts, self.nopiece, self.nocomp = ts, nopiece, nocomp
        self.pat, self.D = pat, D
        self.codewarm = codewarm
        self.par = par
        self.gev = gev
        self.glob = glob
        self.dbgt = dbgt
        self.NK, self.NV, self.delta, self.th, self.every = NK, NV, delta, th, every
        self.kpol, self.epol, self.diag, self.outpol = kpol, epol, diag, outpol
        self.sslot, self.pslot, self.N0, self.warm = sslot, pslot, N0, warm
        self.tl, self.endhi = tl, endhi
        self.nm = len(NK)
        self.lines = []
        self.inloop = True
        self.vK, self.vE, self.vQ, self.vE0 = 1, 2, 3, 4
        self.vH, self.vG, self.vM = 5, 10, 11
        self.P = [6, 8]
        self.vL2, self.vH2, self.vH3 = 0, 0, 0
        self.vGA = 30
        self.W, self.R, self.X = 12, 16, 20
        r = 32
        self.T = r; r += 32
        self.acc = r; r += 32
        self.tb = []
        for b in range(NB):
            self.tb.append(r); r += 32
        self.QR, self.A = r, r + 16
        r += 32
        self.nv = r
        self.nagpr = 16 if warm else 0
        self.nops = 0
        self.done = -1
        self.ldidx = {}
        self.blk = {}
        self.freed = set()

    def e(self, s):
        self.lines.append("    " + s)

    def c(self, s):
        self.lines.append("    ; " + s)

    def label(self, s):
        self.lines.append(s + ":")

    def emit(self, ins):
        for s in ins:
            if self.nocomp and s.startswith(("v_perm", "v_mfma")):
                continue
            self.lines.append(s if s.endswith(":") else "    " + s)

    def wait(self, n):
        self.e(f"s_waitcnt vmcnt({n})")
        self.done = max(self.done, self.nops - n - 1)

    def aoff(self, t):
        D = self.D
        if self.pat == "lin":
            return t * 8192
        if self.pat == "h":
            nb = D // 4096
            return (t // nb) * 2 * D + (t % nb) * 4096
        if self.pat == "w4":
            nb = 2 * D // 4096
            return (t // nb) * 4 * D + (t & 1) * 2 * D + ((t % nb) >> 1) * 4096
        nb = 2 * D // 8192
        return (t // nb) * 2 * D + (t & 1) * D + ((t % nb) >> 1) * 8192

    def boff(self):
        return self.D if self.pat in ("h", "w4") else 4096

    def wrapadd(self):
        return 3 * self.D if self.pat == "w4" else self.D

    def nblk(self):
        return {"lin": 4, "h": self.D // 4096, "big": 2 * self.D // 8192, "w4": self.D // 2048}[self.pat]

    def step(self, reg, tau, second):
        inc = self.aoff(tau % 4 + 1) - self.aoff(tau % 4) if (tau % 4 != 3 or self.nblk() > 4) else \
            self.aoff(4) - self.aoff(3)
        if inc >= 0:
            self.e(f"s_add_u32 s{reg}, s{reg}, {inc}")
        else:
            self.e(f"s_sub_u32 s{reg}, s{reg}, {-inc}")
        if tau % 4 == 3 and self.nblk() > 4:
            low = (self.boff() if second else 0) & (self.D - 1)
            self.e(f"s_and_b32 s{S_TMP}, s{reg}, {self.D-1}")
            self.e(f"s_cmp_eq_u32 s{S_TMP}, {low}")
            self.e(f"s_cselect_b32 s{S_TMP}, {self.wrapadd()}, 0")
            self.e(f"s_add_u32 s{reg}, s{reg}, s{S_TMP}")

    def estep(self, c):
        vE = self.vE
        j = c % 4
        nb = self.nblk()
        inc = (self.aoff(j + 1) - self.aoff(j)) // 128
        if j == 3 and nb > 4:
            q = nb // 4
            return [f"s_and_b32 s{S_TMP}, s{S_CNT}, {q-1}", f"s_cmp_eq_u32 s{S_TMP}, 1",
                    *([f"s_cselect_b32 s{S_TMP}, {inc + self.wrapadd()//128}, {inc}"] if -16 <= inc <= 64 else
                      [f"s_cselect_b32 s{S_TMP}, {self.wrapadd()//128}, 0", f"s_add_i32 s{S_TMP}, s{S_TMP}, {inc}"]),
                    f"v_add_u32 v{vE}, s{S_TMP}, v{vE}"]
        if inc >= 0:
            return [f"v_add_u32 v{vE}, {inc}, v{vE}"]
        return [f"v_subrev_u32 v{vE}, {-inc}, v{vE}"]

    def kload(self, L):
        tau, k = divmod(L, 8)
        if tau >= NB:
            assert (tau - NB, k >> 1) in self.freed, (tau, k)
        t = self.tb[tau % NB] + 4 * k
        pol = (" " + self.kpol) if self.kpol else ""
        o, so = k * 1024, S_P
        if o >= 4096:
            o -= 4096; so = S_P2
        off = f" offset:{o}" if o else ""
        if self.lsearch:
            so = 81 if so == S_P else 82
        self.e(f"buffer_load_dwordx4 v[{t}:{t+3}], v{self.vK}, s[{SRD_D}:{SRD_D+3}], s{so} offen{off}{pol}")
        self.ldidx[(tau, k)] = self.nops
        self.nops += 1
        if k == 3:
            self.step(S_P, tau, False)
            if self.lsearch:
                self.e(f"s_xor_b32 s81, s{S_P}, s80")
        if k == 7:
            self.step(S_P2, tau, True)
            if self.lsearch:
                self.e(f"s_xor_b32 s82, s{S_P2}, s80")

    def piece_of(self, c):
        if c < 128 - PRE:
            return PRE + c
        if 128 <= c < 256:
            return c
        return None

    def note_piece(self, p):
        which, b = ("E", p // 16) if p < 128 else ("F", (p - 128) // 16)
        pos = b if which == "E" else (b + 8) % 9
        if p % 16 == 0 and pos in self.blk:
            old = self.blk[pos][0]
            assert old[0] == "E" and self.lastread >= 128 + 16 * old[1] + 15, (p, old, self.lastread)
        self.blk[pos] = ((which, b), self.nops if p % 16 == 15 else 1 << 30)
        self.nops += 1

    def piece_ins(self):
        pol = (" " + self.epol) if self.epol else ""
        return f"buffer_load_dwordx4 v{self.vK}, s[{SRD_P}:{SRD_P+3}], s{S_PO} offen{pol} lds"

    def piece_next(self, j, tag):
        out = [f"s_add_u32 s{S_PO}, s{S_PO}, 8192", f"s_add_u32 m0, m0, {ROWB}"]
        if j == 3:
            out += [f"s_cmp_ge_u32 s{S_PO}, 0x20000", f"s_cbranch_scc0 L_{tag}_np",
                    f"s_sub_u32 s{S_PO}, s{S_PO}, {0x20000-1024}", f"s_sub_u32 m0, m0, {16*ROWB-1024}",
                    f"s_cmp_eq_u32 m0, {9*1024}", f"s_cselect_b32 m0, 0, m0"]
        return out

    def check_read(self, n):
        which, b = ("E" if n < 256 else "F"), (n % 128) // 16
        pos = b if which == "E" else (b + 8) % 9
        content, idx = self.blk[pos]
        assert content == (which, b) and idx <= self.done, (n, content, idx, self.done)

    def perms(self, c, m, half):
        t = self.tb[c % NB]
        out = []
        for ec in range(4 * half, 4 * half + 4):
            sel = S_SEL_HI if ec & 1 else S_SEL_LO
            cc = ec >> 1
            out.append(f"v_perm_b32 v{self.T+4*ec+m}, v{t+4*(2*m+1)+cc}, v{t+4*(2*m)+cc}, s{sel}")
        return out

    def mfmas(self, kind, es, czero=False):
        W = self.W
        out = []
        for ec in es:
            a, tm = self.acc + 4 * ec, self.T + 4 * ec
            x, y = f"v[{tm}:{tm+3}]", f"v[{W}:{W+3}]"
            if kind == "V":
                x, y = y, x
            cin = "0" if czero else f"v[{a}:{a+3}]"
            out.append(f"v_mfma_f32_16x16x32_bf16 v[{a}:{a+3}], {x}, {y}, {cin}")
        return out

    def shuffle(self, c, fix, nxt=True):
        W, R = self.W, self.R
        g = ["s_waitcnt lgkmcnt(0)",
             f"v_perm_b32 v{W}, v{R+2}, v{R}, s{S_SEL_LO}",
             f"v_perm_b32 v{W+2}, v{R+3}, v{R+1}, s{S_SEL_LO}",
             f"v_perm_b32 v{W+1}, v{R+2}, v{R}, s{S_SEL_HI}",
             f"v_perm_b32 v{W+3}, v{R+3}, v{R+1}, s{S_SEL_HI}",
             f"v_permlane32_swap_b32 v{W}, v{W+2}"]
        g += self.estep(c) if nxt else ["s_nop 0"]
        g += [f"v_permlane32_swap_b32 v{W+1}, v{W+3}"]
        if fix:
            g += fix
        g += [f"ds_read_b128 v[{R}:{R+3}], v{self.vE}" if nxt else "s_nop 0"]
        g2 = [f"v_permlane16_swap_b32 v{W}, v{W+1}", f"v_permlane16_swap_b32 v{W+2}, v{W+3}"]
        return g, g2

    def tile(self, c, kind, N, j=0, fix=None, post=None, tag="x", ckind=None, czero=False, cczero=False,
             weave=None):
        nxt = c + 1 < 512
        late = []
        for i in range(8):
            m, half = i >> 1, i & 1
            if kind == "K" and i == self.pslot:
                p = self.piece_of(c)
                self.e(f"s_cbranch_vccz L_{tag}_np")
                if p is not None:
                    self.wait(N - 1)
                    self.note_piece(p)
                else:
                    self.e(f"s_waitcnt vmcnt({N-1})")
                self.e(self.piece_ins())
                self.emit(self.piece_next(j, tag))
                self.label(f"L_{tag}_np")
            L = 8 * (c + 3) + i + self.delta
            if L < 4096:
                self.wait(N - 1)
                self.kload(L)
                if L % 8 == 7 and post:
                    self.emit(post)
            idx = self.ldidx[(c, 2 * m + 1)]
            if L >= 4096 and idx > self.done:
                self.wait(self.nops - 1 - idx)
            assert idx <= self.done, (c, i)
            pm = self.perms(c, m, half)
            if i == 0:
                for a, b in zip(self.mfmas(ckind or kind, range(4, 8), cczero), pm):
                    self.emit([a, b])
            elif i == 7:
                for a, b in zip(self.mfmas(kind, range(4), czero), pm):
                    self.emit([a, b])
            else:
                self.emit(pm)
            if half:
                self.freed.add((c, m))
            if late:
                self.emit(late)
                late = []
            if i == self.sslot:
                self.lastread = c
                if nxt:
                    self.check_read(c + 1)
                g, late = self.shuffle(c, fix, nxt)
                self.emit(g)
            if self.ssamp and self.inloop:
                H = f"s[{SRD_H}:{SRD_H+3}]"
                if (j, i) == (self.ssamp - 1, self.sslot):
                    self.c("post the next progress mark, sample all marks")
                    self.emit([f"s_add_u32 s{S_MARK}, s{S_MARK}, 0x01010101", f"v_mov_b32 v{self.vM}, s{S_MARK}",
                               f"buffer_store_byte v{self.vM}, off, {H}, s{S_SLOT}",
                               f"s_load_dwordx8 s[80:87], s[{S_DBG}:{S_DBG+1}], 0 glc",
                               f"s_load_dwordx2 s[88:89], s[{S_DBG}:{S_DBG+1}], 32 glc"])
                if j == self.ssamp and self.sslot <= i < self.sslot + 5:
                    k = i - self.sslot
                    a = 80 + 2 * k
                    self.emit([f"s_or_b64 s[{a}:{a+1}], s[{a}:{a+1}], s[{S_MSK}:{S_MSK+1}]",
                               f"s_sub_u32 s{a}, s{a}, s{S_MARK}", f"s_sub_u32 s{a+1}, s{a+1}, s{S_MARK}",
                               f"s_and_b64 s[{a}:{a+1}], s[{a}:{a+1}], s[{S_MSK}:{S_MSK+1}]",
                               f"s_bcnt1_i32_b64 s{S_MODE if k == 0 else a}, s[{a}:{a+1}]"] +
                              ([f"s_add_u32 s{S_MODE}, s{S_MODE}, s{a}"] if k else []))
            if self.late and self.inloop and 8 * j + i == self.late:
                H = f"s[{SRD_H}:{SRD_H+3}]"
                self.c("post the next progress mark, sample all marks")
                self.emit([f"s_add_u32 s{S_MARK}, s{S_MARK}, 1", f"v_mov_b32 v{self.vM}, s{S_MARK}",
                           f"buffer_store_byte v{self.vM}, off, {H}, s{S_SLOT}",
                           f"buffer_load_ubyte v{self.vH}, v0, {H}, 0 offen sc1"])
            if weave and (j, i) in weave:
                self.emit(weave[(j, i)])

    def xlane(self, op, a, b):
        return [f"v_mov_b32 v{b}, v{a}", "s_nop 1", f"v_permlane16_swap_b32 v{a}, v{b}", "s_nop 1",
                f"{op} v{a}, v{a}, v{b}",
                f"v_mov_b32 v{b}, v{a}", "s_nop 1", f"v_permlane32_swap_b32 v{a}, v{b}", "s_nop 1",
                f"{op} v{a}, v{a}, v{b}"]

    def zero(self):
        return [f"v_mov_b32 v{self.acc+i}, 0" for i in range(32)]

    def spread(self, w, ins, start, per):
        k = start
        while ins:
            w.setdefault(divmod(k, 8), []).extend(ins[:per])
            ins = ins[per:]
            k += 1
        assert k <= 32

    def k_weave(self):
        acc, X, QR, A = self.acc, self.X, self.QR, self.A
        assert self.sslot == 3
        S = X
        w = {}
        cv = [f"v_cvt_pk_bf16_f32 v{A+4*g+m}, v{acc+4*(2*m)+g}, v{acc+4*(2*m+1)+g}" for g in range(4) for m in range(4)]
        w[(0, 1)] = [f"ds_read_b128 v[{QR+4*g}:{QR+4*g+3}], v{self.vQ} offset:{g*16}" for g in range(4)] + cv[:4]
        w[(0, 2)] = cv[4:12] + [f"v_add_u32 v{self.vQ}, 1024, v{self.vQ}"]
        w[(0, 3)] = cv[12:]
        mf = [f"v_mfma_f32_16x16x32_bf16 v[{S}:{S+3}], v[{A+4*g}:{A+4*g+3}], v[{QR+4*g}:{QR+4*g+3}], "
              + ("0" if g == 0 else f"v[{S}:{S+3}]") for g in range(4)]
        w[(0, 4)] = mf[:2]
        w[(0, 5)] = mf[2:]
        x = X + 4
        p = [f"v_cvt_pk_bf16_f32 v{x+4}, v{S}, v{S+1}", f"v_cvt_pk_bf16_f32 v{x+5}, v{S+2}, v{S+3}"]
        unpack = [f"v_lshlrev_b32 v{x+0}, 16, v{x+4}", f"v_and_b32 v{x+1}, 0xffff0000, v{x+4}",
                  f"v_lshlrev_b32 v{x+2}, 16, v{x+5}", f"v_and_b32 v{x+3}, 0xffff0000, v{x+5}"]
        p += unpack
        p += [f"v_mul_f32 v{x+i}, s{S_SCALE}, v{x+i}" for i in range(4)]
        p += [f"v_cvt_pk_bf16_f32 v{x+4}, v{x}, v{x+1}", f"v_cvt_pk_bf16_f32 v{x+5}, v{x+2}, v{x+3}"]
        p += unpack
        p += [f"v_max3_f32 v{x+6}, v{x}, v{x+1}, v{x+2}", f"v_max_f32 v{x+6}, v{x+6}, v{x+3}"]
        p += self.xlane("v_max_f32", x + 6, x + 7)
        p += [f"v_sub_f32 v{x+i}, v{x+i}, v{x+6}" for i in range(4)]
        p += [f"v_mul_f32 v{x+i}, s{S_LOG2E}, v{x+i}" for i in range(4)]
        p += [f"v_exp_f32 v{x+i}, v{x+i}" for i in range(4)]
        p += ["s_nop 0", f"v_add_f32 v{x+6}, v{x}, v{x+1}", f"v_add_f32 v{x+7}, v{x+2}, v{x+3}",
              f"v_add_f32 v{x+6}, v{x+6}, v{x+7}"]
        p += self.xlane("v_add_f32", x + 6, x + 7)
        p += [f"v_rcp_f32 v{x+6}, v{x+6}", "s_nop 0"]
        p += [f"v_mul_f32 v{x+i}, v{x+i}, v{x+6}" for i in range(4)]
        P0, P1 = self.P
        p += [f"v_mov_b32 v{P0}, v{P1}", f"v_mov_b32 v{P0+1}, v{P1+1}",
              f"v_cvt_pk_bf16_f32 v{P1}, v{x}, v{x+1}", f"v_cvt_pk_bf16_f32 v{P1+1}, v{x+2}, v{x+3}"]
        self.spread(w, p, 8, 4)
        return w

    def v_weave(self):
        acc, X, QR, A, P = self.acc, self.X, self.QR, self.A, self.P[0]
        w = {}
        cv = []
        for ec in range(8):
            a = acc + 4 * ec
            cv += [f"v_cvt_pk_bf16_f32 v{A+2*ec}, v{a}, v{a+1}", f"v_cvt_pk_bf16_f32 v{A+2*ec+1}, v{a+2}, v{a+3}"]
        w[(0, 1)], w[(0, 2)], w[(0, 3)] = cv[:6], cv[6:12], cv[12:]
        mf = [f"v_mfma_f32_16x16x16_bf16 v[{QR+4*(ec&3)}:{QR+4*(ec&3)+3}], v[{P}:{P+1}], v[{A+2*ec}:{A+2*ec+1}], 0"
              for ec in range(8)]
        o = X + 4
        oc = [f"v_cvt_pk_bf16_f32 v{o+m}, v{QR+8*(m&1)}, v{QR+8*(m&1)+4}" for m in range(4)]
        w[(0, 4)], w[(0, 5)] = mf[:2], mf[2:4]
        w[(1, 1)] = oc[:2]
        w[(1, 2)], w[(1, 3)] = mf[4:6], mf[6:]
        pol = (" " + self.outpol) if self.outpol else ""
        w[(1, 6)] = oc[2:] + [f"buffer_store_dwordx4 v[{o}:{o+3}], v{self.vK}, s[{SRD_O}:{SRD_O+3}], 0 offen{pol}"]
        return w

    def v_epilogue(self, head):
        acc, X, P, T = self.acc, self.X, self.P[head], self.T
        p = ["s_nop 3"]
        for ec in range(8):
            a = acc + 4 * ec
            p.append(f"v_cvt_pk_bf16_f32 v{a}, v{a}, v{a+1}")
            p.append(f"v_cvt_pk_bf16_f32 v{a+1}, v{a+2}, v{a+3}")
            if ec:
                a = acc + 4 * (ec - 1)
                p.append(f"v_mfma_f32_16x16x16_bf16 v[{T+4*(ec-1)}:{T+4*(ec-1)+3}], v[{P}:{P+1}], v[{a}:{a+1}], 0")
        a = acc + 28
        p.append("s_nop 0")
        p.append(f"v_mfma_f32_16x16x16_bf16 v[{T+28}:{T+31}], v[{P}:{P+1}], v[{a}:{a+1}], 0")
        p += ["s_nop 4"]
        o = X + 4
        for m in range(4):
            p.append(f"v_cvt_pk_bf16_f32 v{o+m}, v{T+4*(2*m)}, v{T+4*(2*m+1)}")
        off = " offset:1024" if head else ""
        pol = (" " + self.outpol) if self.outpol else ""
        p.append(f"buffer_store_dwordx4 v[{o}:{o+3}], v{self.vK}, s[{SRD_O}:{SRD_O+3}], 0 offen{off}{pol}")
        return p

    def stamp(self):
        if not self.ts:
            return
        g = self.vG
        self.emit([f"s_memrealtime s[{S_T1}:{S_T1+1}]", "s_waitcnt lgkmcnt(0)",
                   f"v_mov_b32_dpp v{g}, v{g} row_shr:1 row_mask:0xf bank_mask:0xf",
                   "s_nop 1", f"v_writelane_b32 v{g}, s{S_T1}, 0"])

    def flush(self, kind):
        self.emit(["s_nop 1"] + self.mfmas(kind, range(4, 8)))

    def srd(self, d, ptr, offreg, nrec):
        if offreg is None:
            self.e(f"s_mov_b32 s{d}, s{ptr}")
            self.e(f"s_mov_b32 s{d+1}, s{ptr+1}")
        else:
            self.e(f"s_add_u32 s{d}, s{ptr}, s{offreg}")
            self.e(f"s_addc_u32 s{d+1}, s{ptr+1}, 0")
        self.e(f"s_mov_b32 s{d+2}, {nrec:#x}")
        self.e(f"s_mov_b32 s{d+3}, 0x20000")

    def hooks(self, kind, j, tag):
        fix = post = None
        if j == 3 and kind == "K":
            fix = [f"s_cmp_eq_u32 s{S_CNT}, 1", f"s_cbranch_scc0 L_{tag}_nw",
                   f"v_add_u32 v{self.vE}, s{S_PH}, v{self.vE0}", f"L_{tag}_nw:"]
        if j == 3 and kind == "V":
            fix = [f"s_cmp_eq_u32 s{S_CNT}, 29", f"s_cbranch_scc0 L_{tag}_nw",
                   f"v_mov_b32 v{self.vE}, v{self.vE0}", f"L_{tag}_nw:",
                   f"s_cmp_eq_u32 s{S_CNT}, 1", f"s_cbranch_scc0 L_{tag}_nx",
                   f"v_add_u32 v{self.vE}, 8192, v{self.vE0}", f"L_{tag}_nx:"]
        if j == 0 and kind == "K":
            post = [f"s_add_u32 s{S_TMP}, s{S_CNT}, s{S_PH}",
                    f"s_cmp_eq_u32 s{S_TMP}, 8193",
                    f"s_cbranch_scc0 L_{tag}_ns",
                    f"s_mov_b32 s{SRD_D}, s{S_V}",
                    f"s_mov_b32 s{SRD_D+1}, s{S_V+1}",
                    f"s_lshl_b32 s{S_P}, s2, 21",
                    f"s_add_u32 s{S_P2}, s{S_P}, {self.boff()}"] + \
                   ([f"s_xor_b32 s81, s{S_P}, s80", f"s_xor_b32 s82, s{S_P2}, s80"] if self.lsearch else []) + \
                   [f"L_{tag}_ns:"]
        return dict(fix=fix, post=post)

    def control(self, tag, branch=True):
        e = self.e
        if self.nm == 1 or self.sub > 1:
            return
        if self.every > 1:
            e(f"s_and_b32 s{S_TMP}, s{S_CNT}, {self.every-1}")
            e(f"s_cbranch_scc1 L_{tag}_sel")
        H = f"s[{SRD_H}:{SRD_H+3}]"
        self.c("how many CUs had reached my last mark when I sampled -> window of this group")
        if self.ssamp:
            e(f"s_cmp_ge_u32 s{S_MODE}, s{S_TH}")
            if branch:
                e(f"s_cbranch_scc1 L_{tag}m1")
            return
        if self.late:
            e(f"s_waitcnt vmcnt({32 - self.late - 1})")
            e(f"v_cmp_le_u32 s[{S_CMP}:{S_CMP+1}], s{S_MARK}, v{self.vH}")
            e("s_nop 0")
            e(f"s_bcnt1_i32_b64 s{S_TMP}, s[{S_CMP}:{S_CMP+1}]")
            if self.pd:
                e(f"s_sub_i32 s{S_TMP2}, s{S_TMP}, s{S_GM}")
                e(f"s_mov_b32 s{S_GM}, s{S_TMP}")
                if self.pd == 2:
                    e(f"s_ashr_i32 s{S_TMP2}, s{S_TMP2}, 1")
                if self.pd == -1:
                    e(f"s_ashr_i32 s{S_TMP2}, s{S_TMP2}, 1")
                    e(f"s_sub_i32 s{S_TMP}, s{S_TMP}, s{S_TMP2}")
                else:
                    e(f"s_add_i32 s{S_TMP}, s{S_TMP}, s{S_TMP2}")
                e(f"s_cmp_ge_i32 s{S_TMP}, s{S_TH}")
            else:
                if self.headstart and tag == "k":
                    e(f"s_cmp_le_u32 s{S_MARK}, s{S_GM}")
                    e(f"s_cselect_b32 s{S_TMP}, 64, s{S_TMP}")
                e(f"s_cmp_ge_u32 s{S_TMP}, s{S_TH}")
            if branch:
                e(f"s_cbranch_scc1 L_{tag}m1")
                if self.nm == 3:
                    e(f"s_add_u32 s{S_TMP}, s{S_TMP}, {self.th - self.tl}")
                    e(f"s_cmp_lt_u32 s{S_TMP}, s{S_TH}")
                    e(f"s_cbranch_scc1 L_{tag}m2")
            return
        e(f"v_cmp_le_u32 s[{S_CMP}:{S_CMP+1}], s{S_MARK}, v{self.vH}")
        if self.glob:
            e(f"v_cmp_ne_u32 s[{S_CM2}:{S_CM2+1}], 0, v{self.vH}")
            e(f"v_readlane_b32 s{S_TH}, v{self.vH}, 15")
        e(f"s_add_u32 s{S_MARK}, s{S_MARK}, 1")
        e(f"v_mov_b32 v{self.vM}, s{S_MARK}")
        if self.glob:
            e(f"s_and_b64 s[{S_CMP}:{S_CMP+1}], s[{S_CMP}:{S_CMP+1}], s[{S_MSK}:{S_MSK+1}]")
        e(f"s_bcnt1_i32_b64 s{S_TMP}, s[{S_CMP}:{S_CMP+1}]")
        e(f"buffer_store_byte v{self.vM}, off, {H}, s{S_SLOT}")
        e(f"buffer_load_ubyte v{self.vH}, v0, {H}, 0 offen sc1")
        if self.glob:
            A, B = self.glob
            e(f"s_cmp_eq_u32 s{S_TH}, 0")
            e(f"s_cselect_b32 s{S_TH}, {self.th}, s{S_TH}")
            e(f"s_cmp_ge_u32 s{S_TMP}, s{S_TH}")
            e(f"s_cselect_b32 s{S_MODE}, 1, 0")
            e(f"s_and_b64 s[{S_CM2}:{S_CM2+1}], s[{S_CM2}:{S_CM2+1}], s[{S_MSK}:{S_MSK+1}]")
            e(f"s_ff1_i32_b64 s{S_TMP2}, s[{S_CM2}:{S_CM2+1}]")
            e(f"s_cmp_eq_u32 s{S_TMP2}, s{S_SLOT}")
            e(f"s_cbranch_scc0 L_{tag}_sel")
            if self.gev > 1:
                e(f"s_and_b32 s{S_TMP2}, s{S_MARK}, {self.gev-1}")
                e(f"s_cbranch_scc1 L_{tag}_sel")
            G = f"s[{SRD_G}:{SRD_G+3}]"
            e(f"v_cmp_le_u32 s[{S_CM2}:{S_CM2+1}], s{S_GM}, v{self.vG}")
            e(f"v_lshlrev_b32 v{self.vGA}, {self.gsh}, v0")
            e("s_mov_b64 exec, 1")
            e(f"buffer_store_dword v{self.vM}, off, {G}, s{S_XO} sc1")
            e("s_mov_b64 exec, -1")
            e(f"s_andn2_b64 s[{S_CM2}:{S_CM2+1}], s[{S_CM2}:{S_CM2+1}], s[{S_XM}:{S_XM+1}]")
            e(f"s_bcnt1_i32_b64 s{S_TMP2}, s[{S_CM2}:{S_CM2+1}]")
            e(f"s_cmp_eq_u32 s{S_GM}, 255")
            e(f"buffer_load_dword v{self.vG}, v{self.vGA}, {G}, 0 offen sc0 sc1")
            e(f"s_mov_b32 s{S_GM}, s{S_MARK}")
            e(f"s_cbranch_scc1 L_{tag}_sel")
            e(f"s_mul_i32 s{S_TMP2}, s{S_TMP2}, {B}")
            e(f"s_sub_u32 s{S_TMP2}, {A}, s{S_TMP2}")
            e(f"v_mov_b32 v{self.X+11}, s{S_TMP2}")
            e(f"buffer_store_byte v{self.X+11}, off, {H}, 0 offset:15")
        else:
            e(f"s_cmp_ge_u32 s{S_TMP}, s{S_TH}")
            e(f"s_cselect_b32 s{S_MODE}, 1, 0")
        if self.nm == 3:
            e(f"s_cmp_lt_u32 s{S_TMP}, {self.tl}")
            e(f"s_cselect_b32 s{S_MODE}, 2, s{S_MODE}")
        self.label(f"L_{tag}_sel")
        if tag == "v" and self.endhi:
            e(f"s_sub_u32 s{S_TMP}, s{S_CNT}, s{S_END}")
            e(f"s_mul_i32 s{S_TMP2}, s{S_END}, {self.endhi}")
            e(f"s_cmp_le_u32 s{S_TMP}, s{S_TMP2}")
            e(f"s_cselect_b32 s{S_MODE}, 1, s{S_MODE}")
        if self.diag:
            e(f"s_add_u32 s{S_NHI}, s{S_NHI}, s{S_MODE}")
        for md in range(1, self.nm if branch else 0):
            e(f"s_cmp_eq_u32 s{S_MODE}, {md}")
            e(f"s_cbranch_scc1 L_{tag}m{md}")

    def post_sample(self, v):
        H = f"s[{SRD_H}:{SRD_H+3}]"
        return [f"s_add_u32 s{S_MARK}, s{S_MARK}, 1", f"v_mov_b32 v{self.vM}, s{S_MARK}",
                f"buffer_store_short v{self.vM}, off, {H}, s{S_SLOT}",
                f"buffer_load_ushort v{v}, v{self.vL2}, {H}, 0 offen sc1"]

    def decide(self, v, back):
        e = self.e
        if back:
            e(f"s_sub_u32 s{S_TMP}, s{S_MARK}, {back}")
            e(f"v_cmp_le_u32 s[{S_CMP}:{S_CMP+1}], s{S_TMP}, v{v}")
        else:
            e(f"v_cmp_le_u32 s[{S_CMP}:{S_CMP+1}], s{S_MARK}, v{v}")
        e("s_nop 0")
        e(f"s_bcnt1_i32_b64 s{S_TMP}, s[{S_CMP}:{S_CMP+1}]")
        e(f"s_cmp_ge_u32 s{S_TMP}, s{S_TH}")

    def bodies2(self, kind, c0, tag, Ns):
        state = (self.nops, self.done, dict(self.ldidx), dict(self.blk), set(self.freed), self.lastread)
        step = 4 // self.sub
        regs = [self.vH, self.vG, self.vH2, self.vH3][:self.sub]
        for md, N in enumerate(Ns):
            self.nops, self.done, self.ldidx, self.blk, self.freed, self.lastread = \
                state[0], state[1], dict(state[2]), dict(state[3]), set(state[4]), state[5]
            for j in range(4):
                if j % step == 0:
                    k = j // step
                    if md == 0 or j:
                        self.decide(regs[k], self.sub - 1)
                        if self.diag:
                            self.e(f"s_cselect_b32 s{S_TMP}, 1, 0")
                            self.e(f"s_add_u32 s{S_NHI}, s{S_NHI}, s{S_TMP}")
                            self.e(f"s_cmp_eq_u32 s{S_TMP}, 1")
                        self.e(f"s_cbranch_scc{1-md} L_{tag}m{1-md}_{j}")
                    self.label(f"L_{tag}m{md}_{j}")
                    self.emit(self.post_sample(regs[k]))
                t = f"{tag}{md}_{j}"
                self.tile(c0 + j, kind, N, j=j, tag=t, **self.hooks(kind, j, t))
            if md == 0:
                self.e(f"s_branch L_{tag}_next")
        self.label(f"L_{tag}_next")
        self.nops, self.done, self.ldidx, self.blk, self.freed, self.lastread = \
            state[0], state[1], dict(state[2]), dict(state[3]), set(state[4]), state[5]

    def bodies(self, kind, c0, tag, Ns):
        if self.sub > 1:
            return self.bodies2(kind, c0, tag, Ns)
        state = (self.nops, self.done, dict(self.ldidx), dict(self.blk), set(self.freed), self.lastread)
        nmax = max(Ns)
        for md, N in enumerate(Ns):
            self.nops, self.done, self.ldidx, self.blk, self.freed, self.lastread = \
                state[0], state[1], dict(state[2]), dict(state[3]), set(state[4]), state[5]
            self.label(f"L_{tag}m{md}")
            for j in range(4):
                t = f"{tag}{md}_{j}"
                self.tile(c0 + j, kind, N, j=j, tag=t, **self.hooks(kind, j, t))
            if md < len(Ns) - 1:
                self.e(f"s_branch L_{tag}_next")
        self.label(f"L_{tag}_next")
        self.nops, self.done, self.ldidx, self.blk, self.freed, self.lastread = \
            state[0], state[1], dict(state[2]), dict(state[3]), set(state[4]), state[5]

    def peeled(self, kind, c0, tag, N, ckind, weave):
        state = (self.nops, self.done, dict(self.ldidx), dict(self.blk), set(self.freed), self.lastread)
        self.c("first group of a head; the finished head's closing work is woven into its slots")
        self.e(f"s_mov_b32 s{S_CNT}, 32")
        if kind == "K":
            self.e("s_mov_b64 vcc, 0" if self.nopiece else "s_mov_b64 vcc, -1")
        if not (self.late and not self.pd) and not self.ssamp:
            self.control(tag, branch=False)
        for j in range(4):
            t = f"{tag}_{j}"
            if self.sub > 1 and j % (4 // self.sub) == 0:
                self.emit(self.post_sample([self.vH, self.vG, self.vH2, self.vH3][j // (4 // self.sub)]))
            self.tile(c0 + j, kind, N, j=j, tag=t, ckind=ckind if j == 0 else None, czero=j == 0, cczero=j == 1,
                      weave=weave)
        self.nops, self.done, self.ldidx, self.blk, self.freed, self.lastread = state

    def replay(self, kind, c_from, c_to, N):
        keep = self.lines
        self.lines = []
        for c in range(c_from, c_to):
            self.tile(c, kind, N, j=c % 4)
        self.lines = keep

    def warmup(self, waits):
        e = self.e
        e(f"s_lshr_b32 s{S_TMP}, s3, 3")
        e(f"s_lshl_b32 s{S_TMP}, s{S_TMP}, 12")
        for i in range(4):
            off = f" offset:{i*1024}" if i else ""
            e(f"buffer_load_dwordx4 a[{4*i}:{3+4*i}], v{self.vK}, s[{SRD_P}:{SRD_P+3}], s{S_TMP} offen{off}")
            if waits:
                self.nops += 1

    def build(self):
        e = self.e
        NK, NV = self.NK, self.NV
        t0, t1 = self.X, self.X + 1
        self.lastread = -1
        e("s_cmp_ge_u32 s2, 256")
        e("s_cbranch_scc1 L_end")
        e("s_load_dwordx16 s[4:19], s[0:1], 0")
        self.c("s3 = workgroup id, s2 = head pair")
        e("s_mov_b32 s3, s2")
        if self.hmap:
            for i, m in enumerate(self.hmap):
                x = m ^ (1 << i)
                if x:
                    e(f"s_bitcmp1_b32 s3, {i}")
                    e(f"s_cselect_b32 s{S_TMP}, {x}, 0")
                    e(f"s_xor_b32 s2, s2, s{S_TMP}")
        if self.hrot:
            e(f"s_lshl_b32 s{S_TMP}, s2, {self.hrot}")
            e(f"s_lshr_b32 s2, s2, {8-self.hrot}")
            e(f"s_or_b32 s2, s2, s{S_TMP}")
            e(f"s_and_b32 s2, s2, 255")
        if self.diag:
            e(f"s_memrealtime s[{S_T0}:{S_T0+1}]")
        if self.dbgt:
            e(f"s_memrealtime s[{S_T0}:{S_T0+1}]")
        if self.cw3:
            self.c("one dword per 128-byte line of a third of this kernel's code: brings it into the die's L2")
            e(f"s_getpc_b64 s[{S_CM2}:{S_CM2+1}]")
            self.label("L_pc")
            e(f"v_lshlrev_b32 v{self.vG}, 7, v0")
            if self.cw3 == 1:
                e(f"s_bfe_u32 s{S_TMP}, s3, 0x20003")
                e(f"s_lshl_b32 s{S_TMP}, s{S_TMP}, 13")
                e(f"s_min_u32 s{S_TMP}, s{S_TMP}, L_end-L_pc-8064")
                e(f"v_add_u32 v{self.vG}, s{S_TMP}, v{self.vG}")
            assert self.vM == self.vG + 1 and self.vG % 2 == 0
            e(f"v_mov_b32 v{self.vM}, s{S_CM2+1}")
            e(f"v_add_co_u32 v{self.vG}, vcc, s{S_CM2}, v{self.vG}")
            e("s_nop 1")
            e(f"v_addc_co_u32 v{self.vM}, vcc, 0, v{self.vM}, vcc")
            e(f"global_load_dword v{self.A+15}, v[{self.vG}:{self.vM}], off")
            self.nops += 1
        e(f"v_lshlrev_b32 v{self.vK}, 4, v0")
        e(f"s_lshl_b32 s{S_P}, s2, 21")
        e(f"s_add_u32 s{S_P2}, s{S_P}, {self.boff()}")
        e(f"s_mov_b32 s{SRD_D+2}, 0x20000000")
        e(f"s_mov_b32 s{SRD_D+3}, 0x20000")
        e(f"s_mov_b32 s{SRD_P+2}, 0x20000")
        e(f"s_mov_b32 s{SRD_P+3}, 0x20000")
        e(f"s_mov_b32 s{S_PO}, 0")
        e("s_mov_b32 m0, 0")
        e("s_waitcnt lgkmcnt(0)")
        if self.lsearch:
            e("s_mov_b32 s80, 0")
            for i in range(8):
                e(f"s_bfe_u32 s{S_TMP}, s{18 + i // 4}, {(8 << 16) | (8 * (i % 4)):#x}")
                e(f"s_bitcmp1_b32 s3, {i}")
                e(f"s_cselect_b32 s{S_TMP}, s{S_TMP}, 0")
                e(f"s_xor_b32 s80, s80, s{S_TMP}")
            e(f"s_lshl_b32 s80, s80, {self.lsearch}")
            e(f"s_xor_b32 s81, s{S_P}, s80")
            e(f"s_xor_b32 s82, s{S_P2}, s80")
        if self.hsearch:
            e("s_mov_b32 s2, 0")
            for i in range(8):
                e(f"s_bfe_u32 s{S_TMP}, s{18 + i // 4}, {(8 << 16) | (8 * (i % 4)):#x}")
                e(f"s_bitcmp1_b32 s3, {i}")
                e(f"s_cselect_b32 s{S_TMP}, s{S_TMP}, 0")
                e(f"s_xor_b32 s2, s2, s{S_TMP}")
            e(f"s_lshl_b32 s{S_P}, s2, 21")
            e(f"s_add_u32 s{S_P2}, s{S_P}, {self.boff()}")
        e(f"s_mov_b32 s{SRD_D}, s{S_K}")
        e(f"s_mov_b32 s{SRD_D+1}, s{S_K+1}")
        e(f"s_mov_b32 s{SRD_P}, s{S_E}")
        e(f"s_mov_b32 s{SRD_P+1}, s{S_E+1}")
        self.c("start-up burst: first stream loads, block 0 of E (+4 rows of block 1), L2 warm-up share of E")
        NB0 = self.NB0

        def pieces(a, b):
            keep = self.epol
            self.epol = self.e0pol
            if self.ploop and a == 0:
                self.label("L_p0")
                e(self.piece_ins())
                e(f"s_add_u32 m0, m0, {ROWB}")
                e(f"s_add_u32 s{S_PO}, s{S_PO}, 8192")
                e(f"s_cmp_lt_u32 s{S_PO}, 0x20000")
                e("s_cbranch_scc1 L_p0")
                e(f"s_mov_b32 m0, 1024")
                e(f"s_mov_b32 s{S_PO}, 1024")
                for p in range(a, b):
                    self.note_piece(p)
                a = b
            for p in range(a, b):
                e(self.piece_ins())
                self.note_piece(p)
                if p == 15:
                    e(f"s_mov_b32 m0, 1024")
                    e(f"s_mov_b32 s{S_PO}, 1024")
                else:
                    e(f"s_add_u32 m0, m0, {ROWB}")
                    e(f"s_add_u32 s{S_PO}, s{S_PO}, 8192")
            self.epol = keep
        def codewarm():
            e(f"s_getpc_b64 s[{S_CM2}:{S_CM2+1}]")
            e(f"s_lshr_b32 s{S_TMP}, s2, 3")
            e(f"s_mul_i32 s{S_TMP}, s{S_TMP}, {128*self.cw2}")
            e(f"s_add_u32 s{S_CM2}, s{S_CM2}, s{S_TMP}")
            e(f"s_addc_u32 s{S_CM2+1}, s{S_CM2+1}, 0")
            for i in range(self.cw2):
                e(f"s_load_dword s{84+i}, s[{S_CM2}:{S_CM2+1}], {128*i}")
        nfirst = self.efirst
        for L in range(nfirst):
            self.kload(L)
        if self.cw2:
            codewarm()
        pieces(0, 16)
        if self.warm and self.warmfirst:
            self.warmup(True)
        for L in range(nfirst, NB0):
            self.kload(L)
        pieces(16, PRE)
        if self.warm and not self.warmfirst:
            self.warmup(True)
        e(f"s_mov_b32 s{S_TMP2}, m0")
        e(f"s_lshl_b32 s{S_TMP}, s2, 11")
        e(f"s_mov_b32 m0, {LDS_Q}")
        self.srd(SRD_Q, S_Q, S_TMP, 0x800)
        if not self.lateq:
            e(f"buffer_load_dwordx4 v{self.vK}, s[{SRD_Q}:{SRD_Q+3}], 0 offen lds")
            e(f"buffer_load_dwordx4 v{self.vK}, s[{SRD_Q}:{SRD_Q+3}], 0 offen offset:1024 lds")
            self.nops += 2
        e(f"s_mov_b32 m0, s{S_TMP2}")
        self.srd(SRD_O, S_O, S_TMP, 0x800)
        if self.vtlb:
            e(f"s_lshl_b32 s{S_TMP}, s2, 21")
            e(f"s_add_u32 s{S_CM2}, s{S_V}, s{S_TMP}")
            e(f"s_addc_u32 s{S_CM2+1}, s{S_V+1}, 0")
            e(f"s_load_dword s{S_T1}, s[{S_CM2}:{S_CM2+1}], 0")
        self.c("lane constants: LDS address of the projection fragment, LDS address of the q fragments")
        e(f"v_and_b32 v{t0}, 15, v0")
        e(f"v_lshrrev_b32 v{t1}, 4, v0")
        e(f"v_mul_u32_u24 v{self.vE0}, {ROWB}, v{t0}")
        if self.pat in ("h", "w4"):
            e(f"v_bfe_u32 v{self.vE}, v0, 4, 1")
            e(f"v_lshl_add_u32 v{self.vE0}, v{self.vE}, 4, v{self.vE0}")
            e(f"v_lshrrev_b32 v{self.vE}, 5, v0")
            e(f"v_lshl_add_u32 v{self.vE0}, v{self.vE}, {(self.D//128).bit_length()-1}, v{self.vE0}")
        else:
            e(f"v_lshl_add_u32 v{self.vE0}, v{t1}, 4, v{self.vE0}")
        e(f"v_mov_b32 v{self.vE}, v{self.vE0}")
        e(f"v_lshrrev_b32 v{self.vQ}, 2, v{t0}")
        e(f"v_lshlrev_b32 v{self.vQ}, 8, v{self.vQ}")
        e(f"v_lshl_add_u32 v{self.vQ}, v{t1}, 6, v{self.vQ}")
        e(f"v_add_u32 v{self.vQ}, {LDS_Q-(0 if self.direct else 1024)}, v{self.vQ}")
        e(f"s_mov_b32 s{S_SEL_LO}, 0x05040100")
        e(f"s_mov_b32 s{S_SEL_HI}, 0x07060302")
        e(f"s_mov_b32 s{S_SCALE}, 0x3db504f3")
        e(f"s_mov_b32 s{S_LOG2E}, 0x3fb8aa3b")
        if self.nm > 1:
            self.srd(SRD_H, S_DBG, None, 256 if (self.glob or self.sub > 1) else 64)
            e(f"s_getreg_b32 s{S_TMP}, hwreg(HW_REG_HW_ID, 8, 4)")
            e(f"s_getreg_b32 s{S_TMP2}, hwreg(HW_REG_HW_ID, 13, 2)")
            e(f"s_getreg_b32 s{S_XCC}, hwreg(HW_REG_XCC_ID, 0, 3)")
            if self.ssamp:
                e(f"s_mul_i32 s{S_TMP2}, s{S_TMP2}, 10")
                e(f"s_min_u32 s{S_TMP}, s{S_TMP}, 9")
                e(f"s_add_u32 s{S_SLOT}, s{S_TMP}, s{S_TMP2}")
                e(f"s_mov_b32 s{S_MSK}, 0x80808080")
                e(f"s_mov_b32 s{S_MSK+1}, 0x80808080")
            else:
                e(f"s_lshl_b32 s{S_TMP2}, s{S_TMP2}, 4")
                e(f"s_or_b32 s{S_SLOT}, s{S_TMP}, s{S_TMP2}")
            if self.glob:
                e(f"s_mov_b32 s{S_MSK}, 0x7fff7fff")
                e(f"s_mov_b32 s{S_MSK+1}, 0x7fff7fff")
            if self.headstart:
                tab = sum(t << (4 * i) for i, t in enumerate(self.headstart))
                e(f"s_lshl_b32 s{S_GM}, s{S_XCC}, 2")
                e(f"s_lshr_b32 s{S_GM}, {tab:#x}, s{S_GM}")
                e(f"s_and_b32 s{S_GM}, s{S_GM}, 15")
            if self.thtab:
                tab = sum((t - 16) << (4 * i) for i, t in enumerate(self.thtab))
                e(f"s_lshl_b32 s{S_TH}, s{S_XCC}, 2")
                e(f"s_lshr_b32 s{S_TH}, {tab:#x}, s{S_TH}")
                e(f"s_and_b32 s{S_TH}, s{S_TH}, 15")
                e(f"s_add_u32 s{S_TH}, s{S_TH}, 16")
            else:
                e(f"s_bitcmp1_b32 s{S_XCC}, 0")
                e(f"s_cselect_b32 s{S_TH}, {self.th + self.par}, {self.th - self.par}")
            if self.glob:
                e(f"s_mov_b32 s{S_GM}, 255")
                e(f"s_lshl_b64 s[{S_XM}:{S_XM+1}], 1, s{S_XCC}")
                sh = self.gsh
                if self.gws:
                    e(f"s_mov_b32 s{S_TMP}, 0x380000")
                    self.srd(SRD_G, S_WS, S_TMP, 8 << sh)
                else:
                    e(f"s_mov_b32 s{S_TMP}, 128")
                    self.srd(SRD_G, S_DBG, S_TMP, 8 << sh)
                e(f"s_lshl_b32 s{S_XO}, s{S_XCC}, {sh}")

            if self.glob or self.ts or self.sub > 1:
                e(f"v_mov_b32 v{self.vG}, 0")
            e(f"v_mov_b32 v{self.vH}, {1 if self.starthi else 0}")
            if self.sub > 1:
                e(f"s_lshl_b32 s{S_SLOT}, s{S_SLOT}, 1")
                e(f"v_lshlrev_b32 v{self.vL2}, 1, v0")
                assert self.sub == 2 and not self.ts
                e(f"s_mov_b32 s{S_MARK}, 8")
            if self.ssamp:
                e(f"s_mov_b32 s{S_MARK}, 0")
            elif self.sub == 1:
                e(f"s_mov_b32 s{S_MARK}, 1")
            if not self.late:
                e(f"s_mov_b32 s{S_MODE}, {64 if (self.ssamp and self.starthi) else 0}")
            if self.pd:
                e(f"s_mov_b32 s{S_GM}, 16")
        if self.codewarm:
            e(f"s_getpc_b64 s[{S_T1}:{S_T1+1}]")
            e(f"s_lshr_b32 s{S_TMP}, s2, 3")
            e(f"s_and_b32 s{S_TMP}, s{S_TMP}, 15")
            e(f"s_lshl_b32 s{S_TMP}, s{S_TMP}, 10")
            e(f"s_add_u32 s{S_T1}, s{S_T1}, s{S_TMP}")
            e(f"s_addc_u32 s{S_T1+1}, s{S_T1+1}, 0")
            e(f"global_load_dwordx4 a[12:15], v{self.vK}, s[{S_T1}:{S_T1+1}]")
            self.nops += 1
        if self.diag:
            self.srd(SRD_W, S_WS, None, 0x1000000)
            e(f"s_mov_b32 s{S_NHI}, 0")
        if self.direct:
            for r in list(range(self.acc, self.acc + 32)) + list(range(self.T + 16, self.T + 32)) + \
                    list(range(self.W, self.W + 4)):
                e(f"v_mov_b32 v{r}, 0")
        for L in range(NB0, 24 + self.delta):
            self.wait(self.nops - 1 - self.ldidx[divmod(L - NB0, 8)])
            self.kload(L)
        idx = self.blk[0][1]
        if idx > self.done:
            self.wait(self.nops - 1 - idx)
        self.check_read(0)
        e(f"ds_read_b128 v[{self.R}:{self.R+3}], v{self.vE}")
        self.stamp()
        self.c("---- K phase: loop over groups of 4 tiles, two copies of the body (window N / deeper window)")
        e(f"s_mov_b32 s{S_PH}, 0")
        e(f"s_mov_b32 s{S_END}, {PRE//4}")
        if self.direct:
            e(f"s_mov_b32 s{S_CNT}, 32")
        else:
            self.label("L_khead")
            self.peeled("K", 0, "kp", NK[0] + self.NP, "K", self.k_weave())
            e("s_branch L_k_next")
        self.label("L_k")
        self.c("E is complete: fetch q, turn the staging to F, L2 warm-up share of F")
        e(f"s_cmp_eq_u32 s{S_CNT}, s{S_END}")
        e("s_cbranch_scc0 L_nf")
        if self.lateq:
            e(f"s_mov_b32 m0, {LDS_Q}")
        e(f"s_mov_b32 s{SRD_P}, s{S_F}")
        e(f"s_mov_b32 s{SRD_P+1}, s{S_F+1}")
        if self.lateq:
            e(f"buffer_load_dwordx4 v{self.vK}, s[{SRD_Q}:{SRD_Q+3}], 0 offen nt lds")
            e(f"buffer_load_dwordx4 v{self.vK}, s[{SRD_Q}:{SRD_Q+3}], 0 offen offset:1024 nt lds")
        e(f"s_mov_b32 s{S_PO}, 0")
        e(f"s_mov_b32 m0, 8192")
        if self.warm:
            self.warmup(False)
        self.label("L_nf")
        e(f"s_cmp_gt_u32 s{S_CNT}, s{S_END}")
        e("s_cselect_b64 vcc, 0, 0" if self.nopiece else "s_cselect_b64 vcc, -1, 0")
        self.control("k")
        self.bodies("K", 0, "k", NK)
        e(f"s_sub_u32 s{S_CNT}, s{S_CNT}, 1")
        e(f"s_cmp_lg_u32 s{S_CNT}, 0")
        e("s_cbranch_scc1 L_k")
        self.stamp()
        e(f"s_cmp_eq_u32 s{S_PH}, 0")
        e(f"s_mov_b32 s{S_END}, 0")
        e(f"s_mov_b32 s{S_PH}, 8192")
        if self.direct:
            e("s_cbranch_scc0 L_vstart")
            self.peeled("K", 0, "kp", NK[0] + self.NP, "K", self.k_weave())
            e("s_branch L_k_next")
            self.label("L_vstart")
        else:
            e("s_cbranch_scc1 L_khead")
        self.replay("K", 0, 256, max(NK))
        self.c("---- V phase: first group closes head 1 of K (scores, softmax) on the way")
        self.peeled("V", 256, "vp", NV[0] + self.NP, "K", self.k_weave())
        e("s_branch L_v_next")
        self.label("L_v")
        self.control("v")
        self.bodies("V", 256, "v", NV)
        e(f"s_sub_u32 s{S_CNT}, s{S_CNT}, 1")
        e(f"s_cmp_lg_u32 s{S_CNT}, s{S_END}")
        e("s_cbranch_scc1 L_v")
        e(f"s_cmp_eq_u32 s{S_END}, 1")
        e("s_cbranch_scc1 L_tail")
        self.stamp()
        e(f"s_mov_b32 s{S_END}, 1")
        self.peeled("V", 256, "vq", NV[0] + self.NP, "V", self.v_weave())
        e("s_branch L_v_next")
        self.c("---- last 4 tiles, output of head 1")
        self.label("L_tail")
        self.replay("V", 256, 508, max(NV))
        self.stamp()
        self.inloop = False
        for c in range(508, 512):
            self.tile(c, "V", max(NV))
        self.stamp()
        self.flush("V")
        self.emit(self.v_epilogue(1))
        if self.diag:
            e("s_waitcnt vmcnt(0)")
            e(f"s_memrealtime s[{S_T1}:{S_T1+1}]")
            e(f"s_getreg_b32 s{S_TMP2}, hwreg(HW_REG_XCC_ID)")
            e(f"s_and_b32 s{S_TMP2}, s{S_TMP2}, 15")
            e(f"s_lshl_b32 s{S_TMP}, s2, 4")
            e("s_waitcnt lgkmcnt(0)")
            o = self.W
            e(f"v_mov_b32 v{o}, s{S_T0}")
            e(f"v_mov_b32 v{o+1}, s{S_T1}")
            e(f"v_mov_b32 v{o+2}, s{S_TMP2}")
            e(f"s_lshl_b32 s{S_NHI}, s{S_NHI}, 8")
            e(f"v_mov_b32 v{o+3}, s{S_NHI}")
            e(f"v_mov_b32 v{t0}, s{S_TMP}")
            if self.ts:
                e(f"v_lshlrev_b32 v{t1}, 2, v0")
                e(f"s_lshl_b32 s{S_TMP}, s2, 8")
                e(f"s_add_u32 s{S_TMP}, s{S_TMP}, 0x200000")
                e(f"buffer_store_dword v{self.vG}, v{t1}, s[{SRD_W}:{SRD_W+3}], s{S_TMP} offen")
            e("s_mov_b64 exec, 1")
            e(f"buffer_store_dwordx4 v[{o}:{o+3}], v{t0}, s[{SRD_W}:{SRD_W+3}], 0 offen")
        if self.dbgt:
            e("s_waitcnt vmcnt(0)")
            e(f"s_memrealtime s[{S_T1}:{S_T1+1}]")
            e("s_waitcnt lgkmcnt(0)")
            e(f"s_sub_u32 s{S_TMP}, s{S_T1}, s{S_T0}")
            e(f"s_not_b32 s{S_T0}, s{S_T0}")
            e(f"s_atomic_umax s{S_T1}, s[{S_DBG}:{S_DBG+1}], 0x0")
            e(f"s_atomic_umax s{S_T0}, s[{S_DBG}:{S_DBG+1}], 0x4")
            e(f"s_atomic_add s{S_TMP}, s[{S_DBG}:{S_DBG+1}], 0x8")
            e("s_waitcnt lgkmcnt(0)")
        self.label("L_end")
        e("s_endpgm")

        out = HEADER + DOC
        out += f"; @launch grid=(256,1,1) block=(64,1,1) lds={LDS_BYTES}\n"
        out += '.amdgcn_target "amdgcn-amd-amdhsa--gfx950"\n.text\n'
        out += f".globl {NAME}_kernel\n.p2align 8\n.type {NAME}_kernel,@function\n{NAME}_kernel:\n"
        out += "\n".join(self.lines) + "\n"
        if self.cw2:
            out += ".fill CWPAD, 4, 0xbf800000\n    s_endpgm\n"
        if self.codewarm:
            out += ".fill 1280, 4, 0xbf800000\n    s_endpgm\n"
        out += '.section .rodata,"a"\n.p2align 6\n'
        out += f".amdhsa_kernel {NAME}_kernel\n"
        out += f"  .amdhsa_next_free_vgpr {self.nv + self.nagpr}\n"
        out += f"  .amdhsa_next_free_sgpr 96\n"
        out += f"  .amdhsa_accum_offset {self.nv}\n"
        out += "  .amdhsa_group_segment_fixed_size 0\n  .amdhsa_kernarg_size 64\n"
        out += "  .amdhsa_user_sgpr_count 2\n  .amdhsa_user_sgpr_kernarg_segment_ptr 1\n"
        out += "  .amdhsa_system_sgpr_workgroup_id_x 1\n"
        out += "  .amdhsa_float_denorm_mode_32 3\n"
        out += ".end_amdhsa_kernel\n"
        if self.cw2:
            k = next(i for i, l in enumerate(self.lines) if "s_getpc" in l)
            low = sum(8 if l.split()[0].startswith(("buffer_", "ds_", "v_perm_", "v_mfma", "v_cvt_pk")) else
                      0 if l.endswith(":") else 4 for l in self.lines[k:])
            out = out.replace("CWPAD", str(max(1, (max(32 * 128 * self.cw2, 24576 if self.cw3 else 0) + 256 - low) // 4 + 1)))
        return out


if __name__ == "__main__":
    ap = argparse.ArgumentParser()
    tup = lambda s: tuple(int(x) for x in s.split(","))
    ap.add_argument("-o", default=f"cdna_kernels/{NAME}.s")
    ap.add_argument("--NK", type=tup, default=(23, 28))
    ap.add_argument("--NV", type=tup, default=(21, 26))
    ap.add_argument("--delta", type=int, default=6)
    ap.add_argument("--th", type=int, default=24)
    ap.add_argument("--tl", type=int, default=9)
    ap.add_argument("--every", type=int, default=2)
    ap.add_argument("--kpol", default="nt")
    ap.add_argument("--epol", default="")
    ap.add_argument("--outpol", default="")
    ap.add_argument("--sslot", type=int, default=3)
    ap.add_argument("--pslot", type=int, default=2)
    ap.add_argument("--warm", type=int, default=1)
    ap.add_argument("--endhi", type=int, default=0)
    ap.add_argument("--dbgt", action="store_true")
    ap.add_argument("--ssamp", type=int, default=0)
    ap.add_argument("--headstart", type=tup, default=None)
    ap.add_argument("--pd", type=int, default=0)
    ap.add_argument("--late", type=int, default=0)
    ap.add_argument("--lsearch", type=int, default=0)
    ap.add_argument("--hsearch", action="store_true")
    ap.add_argument("--hmap", type=tup, default=None)
    ap.add_argument("--hrot", type=int, default=0)
    ap.add_argument("--thtab", type=tup, default=None)
    ap.add_argument("--lateq", action="store_true")
    ap.add_argument("--starthi", action="store_true")
    ap.add_argument("--warmfirst", action="store_true")
    ap.add_argument("--sub", type=int, default=1)
    ap.add_argument("--cw3", type=int, default=0)
    ap.add_argument("--ploop", action="store_true")
    ap.add_argument("--nodirect", action="store_true")
    ap.add_argument("--cw2", type=int, default=0)
    ap.add_argument("--gws", action="store_true")
    ap.add_argument("--gsh", type=int, default=4)
    ap.add_argument("--novtlb", action="store_true")
    ap.add_argument("--NP", type=int, default=2)
    ap.add_argument("--efirst", type=int, default=20)
    ap.add_argument("--NB0", type=int, default=20)
    ap.add_argument("--e0pol", default="")
    ap.add_argument("--ts", action="store_true")
    ap.add_argument("--nopiece", action="store_true")
    ap.add_argument("--nocomp", action="store_true")
    ap.add_argument("--pat", default="lin")
    ap.add_argument("--D", type=int, default=32)
    ap.add_argument("--codewarm", action="store_true")
    ap.add_argument("--par", type=int, default=0)
    ap.add_argument("--gev", type=int, default=4)
    ap.add_argument("--glob", type=tup, default=None)
    ap.add_argument("--diag", action="store_true")
    a = ap.parse_args()
    g = Gen13(a.NK, a.NV, a.delta, a.th, a.every, a.kpol, a.epol, a.diag, a.outpol, a.sslot, a.pslot,
              warm=a.warm, tl=a.tl, endhi=a.endhi, dbgt=a.dbgt, glob=a.glob, gev=a.gev, par=a.par, codewarm=a.codewarm, pat=a.pat, D=a.D*1024, ts=a.ts, nopiece=a.nopiece, nocomp=a.nocomp, efirst=a.efirst, e0pol=a.e0pol, NB0=a.NB0, vtlb=not a.novtlb, NP=a.NP, gws=a.gws, gsh=a.gsh, cw2=a.cw2, direct=not a.nodirect, cw3=a.cw3, ploop=a.ploop, sub=a.sub, late=a.late, lateq=a.lateq, starthi=a.starthi, warmfirst=a.warmfirst, thtab=a.thtab, hrot=a.hrot, hsearch=a.hsearch, hmap=a.hmap, lsearch=a.lsearch, pd=a.pd, headstart=a.headstart, ssamp=a.ssamp)
    s = g.build()
    open(a.o, "w").write(s)
    print(f"wrote {a.o}: nv={g.nv} lines={len(g.lines)}")
```
